```python
import torch

def _softmax(x, axis=-1):
    return torch.softmax(x, dim=axis)
def _gelu(x):
    return torch.nn.functional.gelu(x, approximate="tanh")
def _silu(x):
    return torch.nn.functional.silu(x)
def _sigmoid(x):
    return torch.sigmoid(x)
def _layernorm(x, axis=-1, eps=1e-5):
    m = x.mean(dim=axis, keepdim=True)
    v = x.var(dim=axis, keepdim=True, unbiased=False)
    return (x - m) / torch.sqrt(v + eps)
def _scatter_add(tgt, idx, src, axis=0):
    return tgt.clone().index_add_(axis, idx, src)
def _segment_sum(src, seg, n):
    out = torch.zeros((n,) + src.shape[1:], dtype=src.dtype)
    return out.index_add_(0, seg, src)
def _pad(x, pw):
    flat = tuple(v for pair in reversed(pw) for v in pair)
    return torch.nn.functional.pad(x, flat)

kernel_name = 'gated_mix__mha_block_cached__mixer_token_mlp__decode'

def setup_inputs():

    _w = (lambda a: (lambda t: t.to(torch.bfloat16) if t.is_floating_point() else t)(torch.as_tensor(a)))
    def _A_setup():
        B, Sq, D = 8, 1, 512
        H, Sk, Dh = 32, 4096, 128
        return {
            "x": _w((lambda *s: torch.randn(*s, dtype=torch.bfloat16) * 0.05)(B, Sq, D)),
            "k_cache": _w((lambda *s: torch.randn(*s, dtype=torch.bfloat16) * 6.4)(B, H, Sk, Dh)),
            "v_cache": _w((lambda *s: torch.randn(*s, dtype=torch.bfloat16) * 1.6)(B, H, Sk, Dh)),
            "wq": _w((lambda *s: torch.randn(*s, dtype=torch.bfloat16) * 6.4)(D, H * Dh) * (D ** -0.5)),
            "wo": _w((lambda *s: torch.randn(*s, dtype=torch.bfloat16) * 1.6)(H * Dh, D) * ((H * Dh) ** -0.5)),
        }
    _A_in = _A_setup()

    def _B_setup():
        B, S, D, F = 8, 1, 512, 1792
        return {
            "x": _w((lambda *s: torch.randn(*s, dtype=torch.bfloat16) * 0.05)(B, S, D)),
            "w1": _w((lambda *s: torch.randn(*s, dtype=torch.bfloat16) * 3.2)(S, F) * (S ** -0.5)),
            "b1": _w((lambda *s: torch.randn(*s, dtype=torch.bfloat16) * 3.2)(F) * 0.02),
            "w2": _w((lambda *s: torch.randn(*s, dtype=torch.bfloat16) * 0.1)(F, S) * (F ** -0.5)),
            "b2": _w((lambda *s: torch.randn(*s, dtype=torch.bfloat16) * 0.1)(S) * 0.02),
        }
    _B_in = _B_setup()

    return {
        "A_x": _A_in["x"],
        "A_k_cache": _A_in["k_cache"],
        "A_v_cache": _A_in["v_cache"],
        "A_wq": _A_in["wq"],
        "A_wo": _A_in["wo"],
        "B_x": _B_in["x"],
        "B_w1": _B_in["w1"],
        "B_b1": _B_in["b1"],
        "B_w2": _B_in["w2"],
        "B_b2": _B_in["b2"],
        "gate_w": _w((lambda *s: torch.randn(*s, dtype=torch.bfloat16) * 0.05)(512) * 16.0),
    }

def reference(A_x, A_k_cache, A_v_cache, A_wq, A_wo, B_x, B_w1, B_b1, B_w2, B_b2, gate_w):
    def _A_ref(x, k_cache, v_cache, wq, wo):
        B, Sq, D = x.shape
        H, Dh = 32, 128
        q = (lambda x, *d: x.permute(*d))((x @ wq).reshape(B, Sq, H, Dh), 0, 2, 1, 3)
        scores = torch.einsum("bhqd,bhkd->bhqk", q, k_cache) * (Dh ** -0.5)
        p = _softmax(scores, axis=-1)
        o = torch.einsum("bhqk,bhkd->bhqd", p, v_cache)
        return (lambda x, *d: x.permute(*d))(o, 0, 2, 1, 3).reshape(B, Sq, H * Dh) @ wo

    def _B_ref(x, w1, b1, w2, b2):
        B, S, D = x.shape
        h = _layernorm(x, axis=-1)
        u = torch.einsum("bsd,sf->bdf", h, w1) + b1
        u = _gelu(u)
        y = torch.einsum("bdf,fs->bds", u, w2) + b2
        return (lambda x, *d: x.permute(*d))(y, 0, 2, 1)

    x = A_x
    g = _sigmoid((x * gate_w).sum(-1, keepdims=True))
    a = _A_ref(x, A_k_cache, A_v_cache, A_wq, A_wo)
    b = _B_ref(x, B_w1, B_b1, B_w2, B_b2)
    return g * a + (1 - g) * b
```

```python
import re

TRANS = ("v_exp_f32", "v_log_f32", "v_rcp_f32", "v_rsq_f32", "v_sqrt_f32", "v_sin_f32", "v_cos_f32")
RMW = ("v_fmac_f32", "v_dot2c_f32_bf16", "v_writelane_b32", "v_fmaak_never")


def regs_of(tok):
    tok = tok.strip()
    neg = tok.lstrip("-")
    m = re.fullmatch(r"(?:abs\()?([vsa])(\d+)\)?", neg)
    if m:
        return [(m.group(1), int(m.group(2)))]
    m = re.fullmatch(r"([vsa])\[(\d+):(\d+)\]", neg)
    if m:
        return [(m.group(1), i) for i in range(int(m.group(2)), int(m.group(3)) + 1)]
    if neg == "vcc":
        return [("s", 106), ("s", 107)]
    if neg == "exec":
        return [("s", 126), ("s", 127)]
    if neg == "m0":
        return [("s", 124)]
    return []


class Ins:
    __slots__ = ("text", "op", "defs", "uses", "kind", "dpp", "srcc", "srcab", "label", "lanesel", "states")

    def __init__(self, text):
        self.text = text
        self.label = None
        self.defs, self.uses, self.srcc, self.srcab, self.lanesel = set(), set(), set(), set(), set()
        self.kind = "other"
        self.dpp = False
        self.states = 1
        t = text.split(";")[0].strip()
        if t.endswith(":"):
            self.label = t[:-1]
            self.op = ""
            self.kind = "label"
            self.states = 0
            return
        if not t or t.startswith("."):
            self.op = ""
            self.kind = "directive"
            self.states = 0
            return
        parts = t.split(None, 1)
        self.op = op = parts[0]
        rest = parts[1] if len(parts) > 1 else ""
        ops = [o.strip() for o in rest.split(",")] if rest else []
        if ops:
            ops[-1] = ops[-1].split()[0] if ops[-1].split() else ops[-1]
        ops = [o.split()[0] if o.split() else o for o in ops]
        R = [regs_of(o) for o in ops]
        flat = lambda l: set(r for x in l for r in x)
        base = op.replace("_e32", "").replace("_e64", "").replace("_dpp", "")
        self.dpp = ("_dpp" in op) or ("row_" in rest) or ("quad_perm" in rest)
        if op == "s_nop":
            self.kind = "nop"
            self.states = int(ops[0], 0) + 1
        elif op.startswith("v_mfma"):
            self.kind = "mfma"
            self.defs = flat(R[:1]); self.srcab = flat(R[1:3]); self.srcc = flat(R[3:4])
            self.uses = self.srcab | self.srcc
        elif op.startswith("v_"):
            self.kind = "valu"
            if base.startswith("v_cmp"):
                self.defs = flat(R[:1]); self.uses = flat(R[1:])
            elif base in ("v_readlane_b32",):
                self.defs = flat(R[:1]); self.uses = flat(R[1:]); self.lanesel = flat(R[2:3])
            elif base in ("v_readfirstlane_b32",):
                self.defs = flat(R[:1]); self.uses = flat(R[1:])
            elif base.startswith("v_permlane"):
                self.defs = flat(R[:2]); self.uses = flat(R[:2])
            elif base == "v_cndmask_b32":
                self.defs = flat(R[:1]); self.uses = flat(R[1:])
                if len(ops) == 3:
                    self.uses |= set(regs_of("vcc"))
            else:
                self.defs = flat(R[:1]); self.uses = flat(R[1:])
                if base in RMW or self.dpp:
                    self.uses |= self.defs
                if base == "v_writelane_b32":
                    self.lanesel = flat(R[2:3])
        elif op.startswith(("buffer_load", "global_load")):
            self.kind = "vmem"
            self.defs = flat(R[:1]); self.uses = flat(R[1:])
        elif op.startswith(("buffer_store", "buffer_atomic")):
            self.kind = "vmem_st"
            self.uses = flat(R); self.srcc = flat(R[:1])
        elif op.startswith("global_store"):
            self.kind = "vmem_st"
            self.uses = flat(R); self.srcc = flat(R[1:2])
        elif op.startswith("global_atomic"):
            self.kind = "vmem_st"
            self.uses = flat(R)
        elif op.startswith("ds_read"):
            self.kind = "ds"
            self.defs = flat(R[:1]); self.uses = flat(R[1:])
        elif op.startswith("ds_"):
            self.kind = "ds"
            self.uses = flat(R)
        elif op.startswith("s_"):
            self.kind = "salu"
            if op.startswith(("s_cmp", "s_cbranch", "s_branch", "s_waitcnt", "s_barrier", "s_setprio", "s_endpgm", "s_sleep")):
                self.uses = flat(R)
            else:
                self.defs = flat(R[:1]); self.uses = flat(R[1:])


def is_wide_store(i):
    return i.kind == "vmem_st" and ("x3" in i.op or "x4" in i.op)


def need(prev, cur):
    n = 0
    pv = set(r for r in prev.defs if r[0] in "va")
    ps = set(r for r in prev.defs if r[0] == "s")
    cur_v_uses = set(r for r in cur.uses if r[0] in "va")
    cur_s_uses = set(r for r in cur.uses if r[0] == "s")
    cur_vdefs = set(r for r in cur.defs if r[0] in "va")
    isdot = lambda i: i.op.startswith("v_dot2")
    if prev.kind == "valu":
        if cur.kind == "valu" and cur.dpp and pv & cur_v_uses:
            n = max(n, 2)
        if cur.kind == "mfma" and pv & cur.uses:
            n = max(n, 2)
        if cur.kind == "valu" and cur.op.startswith("v_permlane") and pv & cur_v_uses:
            n = max(n, 2)
        if cur.kind == "valu" and cur.op.startswith(("v_readlane", "v_readfirstlane")) and pv & cur_v_uses:
            n = max(n, 1)
        if prev.op.replace("_e32", "").replace("_e64", "") in TRANS and cur.kind in ("valu", "mfma", "vmem", "vmem_st", "ds") and pv & cur_v_uses:
            n = max(n, 1)
        if isdot(prev) and (pv & (cur_v_uses | cur_vdefs)):
            if isdot(cur) and cur.op == prev.op:
                t = cur.text.split(";")[0]
                o = [x.strip().split()[0] for x in t.split(None, 1)[1].split(",")]
                ab = set(regs_of(o[1])) | set(regs_of(o[2]))
                if pv & ab:
                    n = max(n, 3)
            else:
                n = max(n, 3)
        if ps:
            if cur.kind == "valu" and ps & cur.lanesel:
                n = max(n, 4)
            elif cur.kind in ("valu", "mfma") and ps & cur_s_uses:
                n = max(n, 2)
            if cur.kind in ("vmem", "vmem_st") and ps & cur_s_uses:
                n = max(n, 5)
            if cur.kind == "salu" and ps & cur_s_uses:
                n = max(n, 1)
    if prev.kind == "mfma":
        passes = 8 if "32x32" in prev.op else 4
        big = {4: 8, 8: 12}[passes]
        if cur.kind == "mfma":
            if pv & cur.srcab:
                n = max(n, big)
            if pv & cur.srcc and cur.srcc != prev.defs:
                n = max(n, {4: 6, 8: 10}[passes])
            if pv & cur.defs and cur.defs != prev.defs:
                n = max(n, big)
        elif cur.kind in ("valu", "vmem", "vmem_st", "ds"):
            if pv & (cur_v_uses | cur_vdefs):
                n = max(n, big)
        if cur.kind == "valu" and prev.srcc & cur_vdefs:
            n = max(n, {4: 3, 8: 7}[passes])
    if is_wide_store(prev) and prev.srcc & cur_vdefs:
        n = max(n, 2 if cur.kind == "valu" else 1)
    if prev.kind == "ds" and prev.op.startswith("ds_write") and ("b128" in prev.op or "b96" in prev.op) and cur.kind == "valu" and (prev.uses & cur_vdefs):
        n = max(n, 0)
    return n


WINDOW = 24


def required(hist, cur):
    dist = 0
    extra = 0
    for p in reversed(hist[-WINDOW:]):
        if p.states == 0:
            continue
        r = need(p, cur)
        if r > dist:
            extra = max(extra, r - dist)
        dist += p.states
        if dist >= 21:
            break
    return extra


class Asm:
    def __init__(self):
        self.raw = []

    def __call__(self, s):
        for l in s.split("\n"):
            l = l.strip()
            if l:
                self.raw.append(l)

    def finish(self):
        out = []
        for l in self.raw:
            i = Ins(l)
            if i.states and i.kind not in ("nop",):
                e = required(out, i)
                while e > 0:
                    k = min(e, 16)
                    out.append(Ins(f"s_nop {k-1}"))
                    e -= k
            out.append(i)
        labels = {i.label: k for k, i in enumerate(out) if i.label}
        for k, i in enumerate(out):
            if i.op.startswith(("s_cbranch", "s_branch")):
                tgt = i.text.split(";")[0].split()[-1]
                if tgt not in labels:
                    raise RuntimeError("unknown label " + tgt)
                hist = list(out[max(0, k - WINDOW):k + 1])
                for j in out[labels[tgt]:labels[tgt] + WINDOW]:
                    if j.states and j.kind != "nop":
                        e = required(hist, j)
                        if e > 0:
                            raise RuntimeError(f"hazard across branch {i.text} -> {j.text}: {e} more states")
                    hist.append(j)
        return "\n".join(("" if (i.label or i.kind == "directive") else "    ") + i.text for i in out) + "\n"
```

```python
import sys, struct
from asmlib import Asm

NAME = "gated_mix__mha_block_cached__mixer_token_mlp__decode_kernel"


def f2u(x):
    return struct.unpack("<I", struct.pack("<f", x))[0]


def bitrev4(j):
    return ((j & 1) << 3) | ((j & 2) << 1) | ((j & 4) >> 1) | ((j & 8) >> 3)


SPIN_LIMIT = 0x40000
DPPF = "row_mask:0xf bank_mask:0xf"

L_QP, L_OP, L_ML, L_YP, L_SC = 0, 2048, 4096, 4352, 8192
LDS_BYTES = 8192 + 16384

S_WG, S_WAVE = 2, 3
P_X, P_K, P_V, P_WQ, P_WO, P_BX, P_W1, P_B1 = 8, 10, 12, 14, 16, 18, 20, 22
P_W2, P_B2, P_GW, P_OUT, P_DBG, P_WS = 24, 26, 28, 30, 32, 34
S_B, S_H, S_ROLE = 36, 37, 38
S_HI16, S_MI1, S_MI0 = 39, 40, 42
S_LOG2E, S_SCALE = 44, 45
S_T0, S_T1, S_T2, S_T3 = 46, 47, 48, 49
S_CNT = 50
SRD_A, SRD_B, SRD_C, SRD_D, SRD_E = 52, 56, 60, 64, 68
S_OFFA, S_OFFB = 72, 73
S_STAMP = 76


def srd(a, reg, ptr, add_lo=None, add_hi=None, size=0):
    if add_lo is None:
        a(f"s_mov_b32 s{reg}, s{ptr}\ns_mov_b32 s{reg+1}, s{ptr+1}")
    else:
        a(f"s_add_u32 s{reg}, s{ptr}, {add_lo}")
        a(f"s_addc_u32 s{reg+1}, s{ptr+1}, {add_hi if add_hi is not None else 0}")
    a(f"s_mov_b32 s{reg+2}, {size}\ns_mov_b32 s{reg+3}, 0x20000")


def reduce64(a, op, v, t):
    for n in (8, 4, 2, 1):
        a(f"{op}_dpp v{v}, v{v}, v{v} row_ror:{n} {DPPF}")
    cross_rows(a, op, v, t)


def cross_rows(a, op, v, t):
    a(f"v_mov_b32 v{t}, v{v}")
    a(f"v_permlane16_swap_b32 v{v}, v{t}")
    a(f"{op} v{v}, v{v}, v{t}")
    a(f"v_mov_b32 v{t}, v{v}")
    a(f"v_permlane32_swap_b32 v{v}, v{t}")
    a(f"{op} v{v}, v{v}, v{t}")


def rne_bf16(a, v):
    a(f"v_cvt_pk_bf16_f32 v{v}, v{v}, v{v}")
    a(f"v_and_b32 v{v}, s{S_HI16}, v{v}")


def make_masks(a, vlane, m0, t0, t1):
    a(f"v_and_b32 v{t0}, 15, v{vlane}")
    a(f"v_and_b32 v{t1}, 1, v{t0}")
    a(f"v_lshlrev_b32 v{t1}, 4, v{t1}")
    a(f"v_mov_b32 v{m0}, 0xffff")
    a(f"v_lshlrev_b32 v{t1}, v{t1}, v{m0}")
    a(f"v_lshrrev_b32 v{t0}, 1, v{t0}")
    for r in range(4):
        a(f"v_cmp_eq_u32 vcc, {r}, v{t0}")
        a(f"v_cndmask_b32 v{m0+r}, 0, v{t1}, vcc")


def gen(D=5, stamps=False, kvflags="nt", prio=2, PF=32, wo_depth=2, sc="sc1"):
    a = Asm()
    a(f".amdgcn_target \"amdgcn-amd-amdhsa--gfx950\"\n.text\n.globl {NAME}\n.p2align 8\n.type {NAME},@function\n{NAME}:")
    a(f"s_cmp_ge_u32 s{S_WG}, 256\ns_cbranch_scc1 L_done")
    a("s_load_dwordx16 s[8:23], s[0:1], 0")
    a("s_load_dwordx8 s[24:31], s[0:1], 64")
    a("s_load_dwordx4 s[32:35], s[0:1], 96")
    if stamps:
        a(f"s_memrealtime s[{S_STAMP}:{S_STAMP+1}]")
    a(f"v_lshrrev_b32 v1, 6, v0")
    a(f"v_and_b32 v0, 63, v0")
    a(f"v_readfirstlane_b32 s{S_WAVE}, v1")
    a(f"s_lshr_b32 s{S_B}, s{S_WG}, 5\ns_and_b32 s{S_H}, s{S_WG}, 31")
    a(f"s_and_b32 s{S_ROLE}, s{S_WAVE}, 3")
    a(f"s_mov_b32 s{S_HI16}, 0xffff0000")
    a(f"s_mov_b32 s{S_MI1}, 0xcccccccc\ns_mov_b32 s{S_MI1+1}, 0xcccccccc")
    a(f"s_mov_b32 s{S_MI0}, 0xaaaaaaaa\ns_mov_b32 s{S_MI0+1}, 0xaaaaaaaa")
    a(f"s_mov_b32 s{S_LOG2E}, {f2u(1.4426950408889634):#x}")
    a(f"s_mov_b32 s{S_SCALE}, {f2u(128 ** -0.5):#x}")
    a(f"s_cmp_ge_u32 s{S_WAVE}, 4\ns_cbranch_scc1 L_aux")
    streamer(a, D, stamps, kvflags, prio, PF)
    a("L_aux:")
    aux(a, stamps, wo_depth, sc)
    a("L_done:\ns_endpgm")
    body = a.finish()
    head = open(HEAD).read()
    tail = f""".section .rodata,"a"
.p2align 6
.amdhsa_kernel {NAME}
  .amdhsa_next_free_vgpr 256
  .amdhsa_next_free_sgpr 96
  .amdhsa_accum_offset 256
  .amdhsa_group_segment_fixed_size 0
  .amdhsa_kernarg_size 112
  .amdhsa_user_sgpr_count 2
  .amdhsa_user_sgpr_kernarg_segment_ptr 1
  .amdhsa_system_sgpr_workgroup_id_x 1
  .amdhsa_float_denorm_mode_32 3
.end_amdhsa_kernel
"""
    return head + f"; @launch grid=(256,1,1) block=(512,1,1) lds={LDS_BYTES}\n" + body + tail


def stamp(a, idx, t0, t1):
    a(f"s_memrealtime s[{S_STAMP+2}:{S_STAMP+3}]")
    a("s_waitcnt lgkmcnt(0)")
    a(f"s_lshl_b32 s{S_STAMP+4}, s{S_WG}, 3\ns_add_u32 s{S_STAMP+4}, s{S_STAMP+4}, s{S_WAVE}\ns_lshl_b32 s{S_STAMP+4}, s{S_STAMP+4}, 7")
    a(f"s_add_u32 s{S_STAMP+4}, s{S_STAMP+4}, {0x100000 + idx*8}")
    a(f"v_mov_b32 v{t0}, s{S_STAMP+2}\nv_mov_b32 v{t0+1}, s{S_STAMP+3}\nv_mov_b32 v{t1}, s{S_STAMP+4}")
    a(f"global_store_dwordx2 v{t1}, v[{t0}:{t0+1}], s[{P_WS}:{P_WS+1}]")


def stamp0(a, t0, t1):
    a(f"s_lshl_b32 s{S_STAMP+4}, s{S_WG}, 3\ns_add_u32 s{S_STAMP+4}, s{S_STAMP+4}, s{S_WAVE}\ns_lshl_b32 s{S_STAMP+4}, s{S_STAMP+4}, 7")
    a(f"s_add_u32 s{S_STAMP+4}, s{S_STAMP+4}, {0x100000}")
    a(f"s_getreg_b32 s{S_STAMP+5}, hwreg(HW_REG_XCC_ID)")
    a(f"v_mov_b32 v{t0}, s{S_STAMP}\nv_mov_b32 v{t0+1}, s{S_STAMP+1}\nv_mov_b32 v{t1}, s{S_STAMP+4}")
    a(f"global_store_dwordx2 v{t1}, v[{t0}:{t0+1}], s[{P_WS}:{P_WS+1}]")
    a(f"v_mov_b32 v{t0}, s{S_STAMP+5}")
    a(f"global_store_dword v{t1}, v{t0}, s[{P_WS}:{P_WS+1}] offset:120")


def streamer(a, D, stamps, kvflags, prio, PF):
    V_LANE, V_OFF, V_SCA = 0, 1, 2
    V_Q, V_MASK, V_A0, V_A1, V_ACC = 4, 8, 12, 16, 20
    V_P, V_T, V_U, V_X, V_S = 24, 26, 28, 30, 32
    V_T0, V_T1, V_M, V_L, V_P2, V_SN, V_P2N, V_NM = 33, 34, 35, 36, 37, 38, 39, 40
    V_TMP = 44
    RING, PFB = 96, 128
    R = 8
    assert D < R and PF % 16 == 0 and PF <= 32

    def dreg(n):
        return PFB + 4 * n if n < PF else RING + 4 * ((n - PF) % R)

    if prio:
        a(f"s_setprio {prio}")
    a(f"v_lshlrev_b32 v{V_OFF}, 4, v{V_LANE}")
    a(f"s_lshl_b32 s{S_T0}, s{S_ROLE}, 12")
    a(f"v_add_u32 v{V_OFF}, s{S_T0}, v{V_OFF}")
    a(f"s_lshl_b32 s{S_T0}, s{S_WG}, 20\ns_lshr_b32 s{S_T1}, s{S_WG}, 12")
    a("s_waitcnt lgkmcnt(0)")
    srd(a, SRD_A, P_K, f"s{S_T0}", f"s{S_T1}", 0x100000)
    srd(a, SRD_B, P_V, f"s{S_T0}", f"s{S_T1}", 0x100000)
    a(f"s_mov_b32 s{S_OFFA}, 0\ns_mov_b32 s{S_OFFB}, 0")

    def issue(n):
        r = dreg(n)
        s, so = (SRD_A, S_OFFA) if n < 256 else (SRD_B, S_OFFB)
        a(f"buffer_load_dwordx4 v[{r}:{r+3}], v{V_OFF}, s[{s}:{s+3}], s{so} offen offset:{(n & 3) * 1024} {kvflags}")
        if n & 3 == 3:
            a(f"s_add_u32 s{so}, s{so}, 16384")

    for n in range(PF):
        issue(n)
    if stamps:
        stamp0(a, 44, 46)
    make_masks(a, V_LANE, V_MASK, V_T0, V_T1)
    a(f"v_lshlrev_b32 v{V_SCA}, 2, v{V_LANE}")
    a(f"s_lshl_b32 s{S_T0}, s{S_ROLE}, 12\ns_add_u32 s{S_T0}, s{S_T0}, {L_SC}")
    a(f"v_add_u32 v{V_SCA}, s{S_T0}, v{V_SCA}")
    a(f"v_mov_b32 v{V_M}, 0xff800000")
    a(f"v_mov_b32 v{V_L}, 0")
    for r in range(4):
        a(f"v_mov_b32 v{V_ACC+r}, 0")
    a(f"v_and_b32 v{V_T0}, 15, v{V_LANE}\nv_lshlrev_b32 v{V_T0}, 5, v{V_T0}")
    a("s_barrier")
    for w in range(4):
        a(f"ds_read_b128 v[{V_TMP+8*w}:{V_TMP+8*w+3}], v{V_T0} offset:{L_QP + 512*w}")
        a(f"ds_read_b128 v[{V_TMP+8*w+4}:{V_TMP+8*w+7}], v{V_T0} offset:{L_QP + 512*w + 16}")
    a("s_waitcnt lgkmcnt(0)")
    for e in range(8):
        a(f"v_add_f32 v{V_TMP+e}, v{V_TMP+e}, v{V_TMP+8+e}")
        a(f"v_add_f32 v{V_TMP+16+e}, v{V_TMP+16+e}, v{V_TMP+24+e}")
    for e in range(8):
        a(f"v_add_f32 v{V_TMP+e}, v{V_TMP+e}, v{V_TMP+16+e}")
    for r in range(4):
        a(f"v_cvt_pk_bf16_f32 v{V_Q+r}, v{V_TMP+2*r}, v{V_TMP+2*r+1}")
    if stamps:
        stamp(a, 1, 44, 46)

    state = {"issued": PF}

    def wait_for(n, issued):
        a(f"s_waitcnt vmcnt({min(63, issued - n - 1)})")

    def k_reduce(j):
        if j & 1:
            t = V_T + ((j >> 1) & 1)
            a(f"v_add_f32_dpp v{t}, v{V_P}, v{V_P} row_ror:8 row_mask:0xf bank_mask:0x3")
            a(f"v_add_f32_dpp v{t}, v{V_P+1}, v{V_P+1} row_ror:8 row_mask:0xf bank_mask:0xc")
        if j & 3 == 3:
            u = V_U + ((j >> 2) & 1)
            a(f"v_add_f32_dpp v{u}, v{V_T}, v{V_T} row_ror:12 row_mask:0xf bank_mask:0x5")
            a(f"v_add_f32_dpp v{u}, v{V_T+1}, v{V_T+1} row_ror:4 row_mask:0xf bank_mask:0xa")
        if j & 7 == 7:
            x = V_X + ((j >> 3) & 1)
            a(f"v_cndmask_b32 v{V_T0}, v{V_U}, v{V_U+1}, s[{S_MI1}:{S_MI1+1}]")
            a(f"v_cndmask_b32 v{V_T1}, v{V_U+1}, v{V_U}, s[{S_MI1}:{S_MI1+1}]")
            a(f"v_add_f32_dpp v{x}, v{V_T1}, v{V_T0} quad_perm:[2,3,0,1] {DPPF}")
        if j == 15:
            a(f"v_cndmask_b32 v{V_T0}, v{V_X}, v{V_X+1}, s[{S_MI0}:{S_MI0+1}]")
            a(f"v_cndmask_b32 v{V_T1}, v{V_X+1}, v{V_X}, s[{S_MI0}:{S_MI0+1}]")
            a(f"v_add_f32_dpp v{V_S}, v{V_T1}, v{V_T0} quad_perm:[1,0,3,2] {DPPF}")
            rne_bf16(a, V_S)
            a(f"v_mul_f32 v{V_S}, s{S_SCALE}, v{V_S}")
            rne_bf16(a, V_S)
            a(f"v_max_f32 v{V_M}, v{V_M}, v{V_S}")
            a(f"ds_write_b32 v{V_SCA}, v{V_S}")
            a(f"v_add_u32 v{V_SCA}, 0x100, v{V_SCA}")

    def k_group(n0, static):
        for j in range(16):
            n = n0 + j
            if static:
                issued = state["issued"]
                wait_for(n, issued)
                while state["issued"] < n + D + 1 and state["issued"] >= n + 1 and state["issued"] <= n + D:
                    issue(state["issued"])
                    state["issued"] += 1
            else:
                a(f"s_waitcnt vmcnt({D-1})")
                issue(n + D)
            r = dreg(n)
            p = V_P + (j & 1)
            a(f"v_dot2_f32_bf16 v{p}, v{r}, v{V_Q}, 0")
            for e in range(1, 4):
                a(f"v_dot2_f32_bf16 v{p}, v{r+e}, v{V_Q+e}, v{p}")
            k_reduce(j)

    for g in range(PF // 16):
        k_group(16 * g, True)
    g0 = PF // 16
    assert state["issued"] == PF + D, state
    a(f"s_mov_b32 s{S_CNT}, {15 - g0}")
    a("L_kloop:")
    k_group(16 * g0, False)
    a(f"s_sub_u32 s{S_CNT}, s{S_CNT}, 1\ns_cmp_lg_u32 s{S_CNT}, 0\ns_cbranch_scc1 L_kloop")
    state["issued"] = 240 + D
    k_group(240, True)
    if stamps:
        stamp(a, 2, 44, 46)
    reduce64(a, "v_max_f32", V_M, V_T0)
    a(f"v_add_u32 v{V_SCA}, {-16*256 & 0xffffffff:#x}, v{V_SCA}")
    a("s_waitcnt lgkmcnt(0)")
    a(f"ds_read_b32 v{V_SN}, v{V_SCA}")

    def probs(dst):
        a("s_waitcnt lgkmcnt(0)")
        a(f"v_sub_f32 v{V_T0}, v{V_SN}, v{V_M}")
        a(f"v_mul_f32 v{V_T0}, s{S_LOG2E}, v{V_T0}")
        a(f"v_exp_f32 v{V_T0}, v{V_T0}")
        a(f"v_add_f32 v{V_L}, v{V_L}, v{V_T0}")
        a(f"v_cvt_pk_bf16_f32 v{dst}, v{V_T0}, v{V_T0}")

    def build_a(dst, src, j):
        for r in range(4):
            a(f"v_and_b32_dpp v{dst+r}, v{src}, v{V_MASK+r} row_newbcast:{bitrev4(j)} {DPPF}")

    probs(V_P2)
    build_a(V_A0, V_P2, 0)

    def v_group(n0, static, last):
        for j in range(16):
            n = n0 + j
            if static:
                wait_for(n, state["issued"])
                if state["issued"] < 512:
                    issue(state["issued"])
                    state["issued"] += 1
            else:
                a(f"s_waitcnt vmcnt({D-1})")
                issue(n + D)
            r = dreg(n)
            A = V_A0 if j % 2 == 0 else V_A1
            An = V_A1 if j % 2 == 0 else V_A0
            a(f"v_mfma_f32_16x16x32_bf16 v[{V_ACC}:{V_ACC+3}], v[{A}:{A+3}], v[{r}:{r+3}], v[{V_ACC}:{V_ACC+3}]")
            if j < 15:
                build_a(An, V_P2, j + 1)
            elif not last:
                build_a(An, V_P2N, 0)
                a(f"v_mov_b32 v{V_P2}, v{V_P2N}")
            if not last:
                if j == 1:
                    a(f"v_add_u32 v{V_SCA}, 0x100, v{V_SCA}")
                    a(f"ds_read_b32 v{V_SN}, v{V_SCA}")
                if j == 6:
                    probs(V_P2N)
            elif j == 1:
                reduce64(a, "v_add_f32", V_L, V_T0)

    assert state["issued"] == 256 + D
    a(f"s_mov_b32 s{S_CNT}, 15")
    a("L_vloop:")
    v_group(256, False, False)
    a(f"s_sub_u32 s{S_CNT}, s{S_CNT}, 1\ns_cmp_lg_u32 s{S_CNT}, 0\ns_cbranch_scc1 L_vloop")
    state["issued"] = 496 + D
    v_group(496, True, True)
    if stamps:
        stamp(a, 3, 44, 46)
    a(f"v_and_b32 v{V_T0}, 15, v{V_LANE}\nv_lshlrev_b32 v{V_T0}, 5, v{V_T0}")
    a(f"v_lshrrev_b32 v{V_T1}, 4, v{V_LANE}\nv_lshlrev_b32 v{V_T1}, 4, v{V_T1}")
    a(f"s_lshl_b32 s{S_T0}, s{S_ROLE}, 9")
    a(f"v_add3_u32 v{V_T0}, v{V_T0}, v{V_T1}, s{S_T0}")
    a(f"s_lshl_b32 s{S_T0}, s{S_ROLE}, 2")
    a(f"v_mov_b32 v{V_T1}, s{S_T0}")
    a("s_mov_b64 exec, 1")
    a(f"ds_write_b32 v{V_T1}, v{V_M} offset:{L_ML}")
    a(f"ds_write_b32 v{V_T1}, v{V_L} offset:{L_ML+16}")
    a("s_mov_b32 exec_lo, -1\ns_mov_b32 exec_hi, 0")
    a(f"ds_write_b128 v{V_T0}, v[{V_ACC}:{V_ACC+3}] offset:{L_OP}")
    a("s_waitcnt lgkmcnt(0)\ns_barrier\ns_endpgm")


def aux(a, stamps, wo_depth, sc):
    V_LANE, V_G, V_C = 0, 1, 2
    V_MASK, V_A0, V_A1, V_ACC = 4, 8, 12, 16
    V_X0, V_X1, V_T0, V_T1, V_T2, V_T3 = 20, 21, 22, 23, 24, 25
    V_OFF, V_H, V_GATE, V_Y1, V_Y2, V_C1, V_C2 = 26, 27, 28, 29, 30, 31, 32
    V_W1, V_B1, V_W2 = 36, 43, 50
    V_E = 60
    WB = 128
    a(f"v_lshrrev_b32 v{V_G}, 4, v{V_LANE}\nv_and_b32 v{V_C}, 15, v{V_LANE}")
    a(f"v_lshlrev_b32 v{V_T0}, 3, v{V_C}\nv_lshl_add_u32 v{V_T0}, v{V_G}, 1, v{V_T0}")
    a(f"s_lshl_b32 s{S_T0}, s{S_ROLE}, 8")
    a(f"v_add_u32 v{V_T0}, s{S_T0}, v{V_T0}")
    a(f"v_lshlrev_b32 v{V_OFF}, 13, v{V_G}\nv_lshl_add_u32 v{V_OFF}, v{V_C}, 4, v{V_OFF}")
    a(f"s_lshl_b32 s{S_T0}, s{S_B}, 10\ns_lshl_b32 s{S_T1}, s{S_H}, 8")
    a(f"s_sub_u32 s{S_T2}, 0x400000, s{S_T1}")
    a(f"s_lshl_b32 s{S_OFFA}, s{S_ROLE}, 20")
    a("s_waitcnt lgkmcnt(0)")
    srd(a, SRD_A, P_X, f"s{S_T0}", None, 1024 + 64)
    srd(a, SRD_B, P_WQ, f"s{S_T1}", None, f"s{S_T2}")
    a(f"buffer_load_ushort v{V_X0}, v{V_T0}, s[{SRD_A}:{SRD_A+3}], 0 offen")
    a(f"buffer_load_ushort v{V_X1}, v{V_T0}, s[{SRD_A}:{SRD_A+3}], 0 offen offset:128")
    for j in range(32):
        a(f"buffer_load_dwordx4 v[{WB+4*j}:{WB+4*j+3}], v{V_OFF}, s[{SRD_B}:{SRD_B+3}], s{S_OFFA} offen")
        if j < 31:
            a(f"s_add_u32 s{S_OFFA}, s{S_OFFA}, 32768")
    if stamps:
        stamp0(a, 60, 62)
        NS = 2
    else:
        NS = 0
    make_masks(a, V_LANE, V_MASK, V_T1, V_T2)
    for r in range(4):
        a(f"v_mov_b32 v{V_ACC+r}, 0")
    a(f"s_waitcnt vmcnt({32+NS})")
    a(f"v_lshl_or_b32 v{V_X0}, v{V_X0}, 16, v{V_X0}\nv_lshl_or_b32 v{V_X1}, v{V_X1}, 16, v{V_X1}")

    def build_a(dst, src, i):
        for r in range(4):
            a(f"v_and_b32_dpp v{dst+r}, v{src}, v{V_MASK+r} row_newbcast:{i} {DPPF}")

    def project(srcs, waits):
        build_a(V_A0, srcs[0], 0)
        for j in range(32):
            A, An = (V_A0, V_A1) if j % 2 == 0 else (V_A1, V_A0)
            if j < 31:
                build_a(An, srcs[(j + 1) >> 4], (j + 1) & 15)
            if waits:
                a(f"s_waitcnt vmcnt({31 - j + NS})")
            a(f"v_mfma_f32_16x16x32_bf16 v[{V_ACC}:{V_ACC+3}], v[{A}:{A+3}], v[{WB+4*j}:{WB+4*j+3}], v[{V_ACC}:{V_ACC+3}]")

    project((V_X0, V_X1), True)
    a(f"v_lshlrev_b32 v{V_T0}, 5, v{V_C}\nv_lshl_add_u32 v{V_T0}, v{V_G}, 4, v{V_T0}")
    a(f"s_lshl_b32 s{S_T0}, s{S_ROLE}, 9")
    a(f"v_add_u32 v{V_T0}, s{S_T0}, v{V_T0}")
    a("s_mov_b32 exec_lo, -1\ns_mov_b32 exec_hi, 0")
    a(f"ds_write_b128 v{V_T0}, v[{V_ACC}:{V_ACC+3}] offset:{L_QP}")
    a("s_mov_b64 exec, -1")
    a("s_waitcnt lgkmcnt(0)\ns_barrier")
    if stamps:
        stamp(a, 1, 60, 62)

    a(f"s_lshl_b32 s{S_T0}, s{S_WG}, 11")
    srd(a, SRD_C, P_WS, f"s{S_T0}", None, 2048)
    a(f"v_lshlrev_b32 v{V_T0}, 3, v{V_LANE}")
    a(f"s_lshl_b32 s{S_T0}, s{S_ROLE}, 9")
    a(f"v_add_u32 v{V_T0}, s{S_T0}, v{V_T0}")
    a(f"v_mov_b32 v{V_T2}, -1\nv_mov_b32 v{V_T3}, -1")
    a(f"buffer_store_dwordx2 v[{V_T2}:{V_T3}], v{V_T0}, s[{SRD_C}:{SRD_C+3}], 0 offen {sc}")
    a("s_waitcnt vmcnt(0)")
    a(f"s_lshl_b32 s{S_T0}, s{S_B}, 2")
    a(f"v_mov_b32 v{V_T0}, s{S_T0}\nv_mov_b32 v{V_T1}, 1")
    a("s_mov_b64 exec, 1")
    a(f"global_atomic_add v{V_T0}, v{V_T1}, s[{P_DBG}:{P_DBG+1}]")
    a("s_mov_b64 exec, -1")

    a(f"s_lshl_b32 s{S_T0}, s{S_B}, 10")
    srd(a, SRD_A, P_X, f"s{S_T0}", None, 1024 + 64)
    VB = V_E
    a(f"v_lshlrev_b32 v{V_T0}, 4, v{V_LANE}")
    a(f"buffer_load_dwordx4 v[{VB}:{VB+3}], v{V_T0}, s[{SRD_A}:{SRD_A+3}], 0 offen")
    a(f"s_lshl_b32 s{S_T1}, s{S_H}, 5")
    a(f"v_lshlrev_b32 v{V_T1}, 1, v{V_C}")
    a(f"buffer_load_ushort v{V_H}, v{V_T1}, s[{SRD_A}:{SRD_A+3}], s{S_T1} offen")
    srd(a, SRD_A, P_GW, None, None, 1024)
    a(f"buffer_load_dwordx4 v[{VB+8}:{VB+11}], v{V_T0}, s[{SRD_A}:{SRD_A+3}], 0 offen")
    a(f"s_mul_i32 s{S_T1}, s{S_ROLE}, 896")
    a(f"v_lshlrev_b32 v{V_T1}, 1, v{V_LANE}")
    for base, ptr in ((V_W1, P_W1), (V_B1, P_B1), (V_W2, P_W2)):
        srd(a, SRD_A, ptr, None, None, 3584 + 64)
        for t in range(7):
            a(f"buffer_load_ushort v{base+t}, v{V_T1}, s[{SRD_A}:{SRD_A+3}], s{S_T1} offen offset:{128*t}")
    srd(a, SRD_A, P_B2, None, None, 64)
    a(f"v_mov_b32 v{V_T2}, 0")
    a(f"buffer_load_ushort v{V_Y2}, v{V_T2}, s[{SRD_A}:{SRD_A+3}], 0 offen")
    a("s_waitcnt vmcnt(0)")

    a(f"s_lshl_b32 s{S_T0}, s{S_H}, 17")
    srd(a, SRD_B, P_WO, f"s{S_T0}", None, 131072)
    a(f"v_lshlrev_b32 v{V_OFF}, 10, v{V_G}\nv_lshl_add_u32 v{V_OFF}, v{V_C}, 4, v{V_OFF}")
    a(f"s_lshl_b32 s{S_T0}, s{S_ROLE}, 8")
    a(f"v_add_u32 v{V_OFF}, s{S_T0}, v{V_OFF}")
    a(f"s_mov_b32 s{S_OFFA}, 0")
    for j in range(32):
        if j >= wo_depth:
            a(f"s_waitcnt vmcnt({wo_depth-1})")
        a(f"buffer_load_dwordx4 v[{WB+4*j}:{WB+4*j+3}], v{V_OFF}, s[{SRD_B}:{SRD_B+3}], s{S_OFFA} offen")
        if j < 31:
            a(f"s_add_u32 s{S_OFFA}, s{S_OFFA}, 4096")

    def unpack8(src, dst):
        for r in range(4):
            a(f"v_lshlrev_b32 v{dst+2*r}, 16, v{src+r}")
            a(f"v_and_b32 v{dst+2*r+1}, s{S_HI16}, v{src+r}")

    def sum8(src, dst):
        a(f"v_add_f32 v{dst}, v{src}, v{src+1}")
        for e in range(2, 8):
            a(f"v_add_f32 v{dst}, v{dst}, v{src+e}")

    U = V_E + 12
    unpack8(VB, U)
    unpack8(VB + 8, U + 8)
    for e in range(8):
        a(f"v_mul_f32 v{U+e}, v{U+e}, v{U+8+e}")
    for r in range(4):
        a(f"v_cvt_pk_bf16_f32 v{U+8+r}, v{U+2*r}, v{U+2*r+1}")
    unpack8(U + 8, U)
    sum8(U, V_GATE)
    reduce64(a, "v_add_f32", V_GATE, V_T0)
    rne_bf16(a, V_GATE)
    a(f"v_mul_f32 v{V_GATE}, s{S_LOG2E}, v{V_GATE}")
    a(f"v_sub_f32 v{V_GATE}, 0, v{V_GATE}")
    a(f"v_exp_f32 v{V_GATE}, v{V_GATE}")
    a(f"v_add_f32 v{V_GATE}, 1.0, v{V_GATE}")
    a(f"v_rcp_f32 v{V_GATE}, v{V_GATE}")
    rne_bf16(a, V_GATE)

    unpack8(VB, U)
    sum8(U, V_T2)
    reduce64(a, "v_add_f32", V_T2, V_T0)
    a(f"v_mul_f32 v{V_T2}, {f2u(1/512):#x}, v{V_T2}")
    for e in range(8):
        a(f"v_sub_f32 v{U+e}, v{U+e}, v{V_T2}")
        a(f"v_mul_f32 v{U+e}, v{U+e}, v{U+e}")
    sum8(U, V_T3)
    reduce64(a, "v_add_f32", V_T3, V_T0)
    a(f"v_mul_f32 v{V_T3}, {f2u(1/512):#x}, v{V_T3}")
    rne_bf16(a, V_T2)
    rne_bf16(a, V_T3)
    a(f"v_add_f32 v{V_T3}, {f2u(1e-5):#x}, v{V_T3}")
    rne_bf16(a, V_T3)
    a(f"v_sqrt_f32 v{V_T3}, v{V_T3}")
    rne_bf16(a, V_T3)
    a(f"v_lshlrev_b32 v{V_H}, 16, v{V_H}")
    a(f"v_sub_f32 v{V_H}, v{V_H}, v{V_T2}")
    rne_bf16(a, V_H)
    div(a, V_H, V_H, V_T3, V_T0, V_T1)
    rne_bf16(a, V_H)

    for t in range(7):
        for base in (V_W1, V_B1, V_W2):
            a(f"v_lshlrev_b32 v{base+t}, 16, v{base+t}")
    kb = 0.7978845608028654
    c1 = -2.0 * kb * 1.4426950408889634
    a(f"v_mov_b32 v{V_C1}, {f2u(c1):#x}\nv_mov_b32 v{V_C2}, {f2u(c1 * 0.044715):#x}")
    a(f"v_mov_b32 v{V_Y1}, 0")
    a(f"v_mov_b32 v{V_T3}, 0")
    a(f"s_mov_b32 s{S_CNT}, 7")
    a("L_mlp:")
    E = V_E
    for k in range(8):
        ua, ub, za, zb, p = E, E + 1, E + 2, E + 3, E + 4
        i0, i1 = 2 * k, 2 * k + 1

        def round2():
            a(f"v_cvt_pk_bf16_f32 v{p}, v{ua}, v{ub}")
            a(f"v_lshlrev_b32 v{ua}, 16, v{p}")
            a(f"v_and_b32 v{ub}, s{S_HI16}, v{p}")
        a(f"v_mul_f32_dpp v{ua}, v{V_W1}, v{V_H} row_newbcast:{i0} {DPPF}")
        a(f"v_mul_f32_dpp v{ub}, v{V_W1}, v{V_H} row_newbcast:{i1} {DPPF}")
        round2()
        a(f"v_add_f32_dpp v{ua}, v{V_B1}, v{ua} row_newbcast:{i0} {DPPF}")
        a(f"v_add_f32_dpp v{ub}, v{V_B1}, v{ub} row_newbcast:{i1} {DPPF}")
        round2()
        a(f"v_mul_f32 v{za}, v{ua}, v{ua}\nv_mul_f32 v{zb}, v{ub}, v{ub}")
        a(f"v_fma_f32 v{za}, v{za}, v{V_C2}, v{V_C1}\nv_fma_f32 v{zb}, v{zb}, v{V_C2}, v{V_C1}")
        a(f"v_mul_f32 v{za}, v{za}, v{ua}\nv_mul_f32 v{zb}, v{zb}, v{ub}")
        a(f"v_exp_f32 v{za}, v{za}\nv_exp_f32 v{zb}, v{zb}")
        a(f"v_add_f32 v{za}, 1.0, v{za}\nv_add_f32 v{zb}, 1.0, v{zb}")
        a(f"v_rcp_f32 v{za}, v{za}\nv_rcp_f32 v{zb}, v{zb}")
        a(f"v_mul_f32 v{ua}, v{ua}, v{za}\nv_mul_f32 v{ub}, v{ub}, v{zb}")
        round2()
        a(f"v_fmac_f32_dpp v{V_Y1}, v{V_W2}, v{ua} row_newbcast:{i0} {DPPF}")
        a(f"v_fmac_f32_dpp v{V_T3}, v{V_W2}, v{ub} row_newbcast:{i1} {DPPF}")
    for base in (V_W1, V_B1, V_W2):
        for t in range(6):
            a(f"v_mov_b32 v{base+t}, v{base+t+1}")
    a(f"s_sub_u32 s{S_CNT}, s{S_CNT}, 1\ns_cmp_lg_u32 s{S_CNT}, 0\ns_cbranch_scc1 L_mlp")
    a(f"v_add_f32 v{V_Y1}, v{V_Y1}, v{V_T3}")
    cross_rows(a, "v_add_f32", V_Y1, V_T0)
    a(f"v_lshlrev_b32 v{V_T0}, 2, v{V_C}")
    a(f"s_lshl_b32 s{S_T0}, s{S_ROLE}, 6")
    a(f"v_add_u32 v{V_T0}, s{S_T0}, v{V_T0}")
    a("s_mov_b64 exec, 0xffff")
    a(f"ds_write_b32 v{V_T0}, v{V_Y1} offset:{L_YP}")
    a("s_mov_b64 exec, -1")

    a(f"s_lshl_b32 s{S_T0}, s{S_B}, 2")
    a(f"v_mov_b32 v{V_T0}, s{S_T0}")
    a(f"s_mov_b32 s{S_CNT}, {SPIN_LIMIT}")
    a("L_hs:")
    a(f"global_load_dword v{V_T1}, v{V_T0}, s[{P_DBG}:{P_DBG+1}] {sc}")
    a(f"s_sub_u32 s{S_CNT}, s{S_CNT}, 1\ns_cbranch_scc1 L_hs_out")
    a("s_waitcnt vmcnt(0)")
    a(f"v_readfirstlane_b32 s{S_T1}, v{V_T1}")
    a(f"s_cmp_lt_u32 s{S_T1}, 128\ns_cbranch_scc1 L_hs")
    a("L_hs_out:")

    V_OA, V_PUB, V_IN = V_X0, V_X1, V_OFF
    a(f"v_lshlrev_b32 v{V_OA}, 4, v{V_C}\nv_lshl_add_u32 v{V_OA}, v{V_G}, 2, v{V_OA}")
    a(f"v_lshrrev_b32 v{V_PUB}, 1, v{V_C}\nv_lshlrev_b32 v{V_PUB}, 11, v{V_PUB}")
    a(f"v_and_b32 v{V_T0}, 1, v{V_C}\nv_lshlrev_b32 v{V_T0}, 5, v{V_T0}")
    a(f"v_lshl_add_u32 v{V_T0}, v{V_G}, 4, v{V_T0}")
    a(f"s_lshl_b32 s{S_T0}, s{S_ROLE}, 14\ns_lshl_b32 s{S_T1}, s{S_H}, 6\ns_add_u32 s{S_T0}, s{S_T0}, s{S_T1}")
    a(f"v_add3_u32 v{V_PUB}, v{V_PUB}, v{V_T0}, s{S_T0}")
    a(f"s_lshl_b32 s{S_T0}, s{S_B}, 16")
    srd(a, SRD_D, P_WS, f"s{S_T0}", None, 65536)
    a(f"v_lshlrev_b32 v{V_IN}, 2, v{V_LANE}")
    a(f"s_lshl_b32 s{S_T0}, s{S_B}, 10\ns_lshl_b32 s{S_T1}, s{S_H}, 5\ns_add_u32 s{S_T0}, s{S_T0}, s{S_T1}")
    srd(a, SRD_E, P_OUT, f"s{S_T0}", None, 64)
    for r in range(4):
        a(f"v_mov_b32 v{V_ACC+r}, 0")
    a(f"v_mov_b32 v{V_T3}, 0")
    if stamps:
        stamp(a, 2, 60, 62)
    a("s_waitcnt vmcnt(0) lgkmcnt(0)")
    a("s_barrier")
    if stamps:
        stamp(a, 3, 60, 62)

    MV, LV, OV = E, E + 4, E + 8
    a(f"ds_read_b128 v[{MV}:{MV+3}], v{V_T3} offset:{L_ML}")
    a(f"ds_read_b128 v[{LV}:{LV+3}], v{V_T3} offset:{L_ML+16}")
    for w in range(4):
        for be in range(2):
            a(f"ds_read_b32 v{OV+2*w+be}, v{V_OA} offset:{L_OP + 512*w + 256*be}")
    a("s_waitcnt lgkmcnt(8)")
    a(f"v_max3_f32 v{V_T0}, v{MV}, v{MV+1}, v{MV+2}\nv_max_f32 v{V_T0}, v{V_T0}, v{MV+3}")
    for w in range(4):
        a(f"v_sub_f32 v{MV+w}, v{MV+w}, v{V_T0}")
    for w in range(4):
        a(f"v_mul_f32 v{MV+w}, s{S_LOG2E}, v{MV+w}")
    for w in range(4):
        a(f"v_exp_f32 v{MV+w}, v{MV+w}")
    a(f"v_mul_f32 v{V_T1}, v{MV}, v{LV}")
    for w in range(1, 4):
        a(f"v_fmac_f32 v{V_T1}, v{MV+w}, v{LV+w}")
    a(f"v_rcp_f32 v{V_T2}, v{V_T1}")
    a(f"v_fma_f32 v{V_T0}, -v{V_T1}, v{V_T2}, 1.0")
    a(f"v_fmac_f32 v{V_T2}, v{V_T0}, v{V_T2}")
    a("s_waitcnt lgkmcnt(0)")
    for be in range(2):
        a(f"v_mul_f32 v{LV+be}, v{MV}, v{OV+be}")
    for w in range(1, 4):
        for be in range(2):
            a(f"v_fmac_f32 v{LV+be}, v{MV+w}, v{OV+2*w+be}")
    for be in range(2):
        a(f"v_mul_f32 v{LV+be}, v{LV+be}, v{V_T2}")
    for be in range(2):
        a(f"v_cvt_pk_bf16_f32 v{LV+be}, v{LV+be}, v{LV+be}")
    NS = 0
    project((LV, LV + 1), False)
    a(f"s_mov_b32 s{S_T0}, 0xfffffffe")
    for r in range(4):
        a(f"v_min_u32 v{V_A0+r}, s{S_T0}, v{V_ACC+r}")
    a("s_mov_b32 exec_lo, -1\ns_mov_b32 exec_hi, 0")
    a(f"buffer_store_dwordx4 v[{V_A0}:{V_A0+3}], v{V_PUB}, s[{SRD_D}:{SRD_D+3}], 0 offen {sc}")
    a("s_mov_b64 exec, -1")
    if stamps:
        stamp(a, 4, 60, 62)
    a(f"s_cmp_lg_u32 s{S_ROLE}, 0\ns_cbranch_scc1 L_done")

    a(f"v_lshlrev_b32 v{V_T0}, 2, v{V_C}")
    for w in range(4):
        a(f"ds_read_b32 v{MV+w}, v{V_T0} offset:{L_YP + 64*w}")
    a("s_waitcnt lgkmcnt(0)")
    a(f"v_add_f32 v{MV}, v{MV}, v{MV+1}\nv_add_f32 v{MV+2}, v{MV+2}, v{MV+3}\nv_add_f32 v{V_Y1}, v{MV}, v{MV+2}")
    rne_bf16(a, V_Y1)
    a(f"v_lshlrev_b32 v{V_Y2}, 16, v{V_Y2}")
    a(f"v_add_f32 v{V_Y1}, v{V_Y1}, v{V_Y2}")
    rne_bf16(a, V_Y1)
    a(f"v_sub_f32 v{V_T1}, 1.0, v{V_GATE}")
    rne_bf16(a, V_T1)
    a(f"v_mul_f32 v{V_Y1}, v{V_T1}, v{V_Y1}")
    rne_bf16(a, V_Y1)
    IN = E + 16
    a(f"s_mov_b32 s{S_CNT}, {SPIN_LIMIT}")
    a("L_poll:")
    for t in range(8):
        a(f"buffer_load_dword v{IN+t}, v{V_IN}, s[{SRD_C}:{SRD_C+3}], 0 offen offset:{256*t} {sc}")
    a("s_waitcnt vmcnt(0)")
    a(f"v_max3_u32 v{V_T0}, v{IN}, v{IN+1}, v{IN+2}")
    a(f"v_max3_u32 v{V_T1}, v{IN+3}, v{IN+4}, v{IN+5}")
    a(f"v_max3_u32 v{V_T0}, v{V_T0}, v{IN+6}, v{IN+7}")
    a(f"v_max_u32 v{V_T0}, v{V_T0}, v{V_T1}")
    a(f"v_cmp_eq_u32 vcc, -1, v{V_T0}")
    a(f"s_sub_u32 s{S_CNT}, s{S_CNT}, 1\ns_cbranch_scc1 L_poll_out")
    a("s_cbranch_vccnz L_poll")
    a("L_poll_out:")
    for h in (4, 2, 1):
        for t in range(h):
            a(f"v_add_f32 v{IN+t}, v{IN+t}, v{IN+t+h}")
    cross_rows(a, "v_add_f32", IN, V_T0)
    rne_bf16(a, IN)
    a(f"v_mul_f32 v{IN}, v{V_GATE}, v{IN}")
    rne_bf16(a, IN)
    a(f"v_add_f32 v{IN}, v{IN}, v{V_Y1}")
    a(f"v_cvt_pk_bf16_f32 v{IN}, v{IN}, v{IN}")
    a(f"v_lshlrev_b32 v{V_T0}, 1, v{V_LANE}")
    a("s_mov_b64 exec, 0xffff")
    a(f"buffer_store_short v{IN}, v{V_T0}, s[{SRD_E}:{SRD_E+3}], 0 offen")
    if stamps:
        stamp(a, 5, 60, 62)


def div(a, dst, num, den, t0, t1):
    a(f"v_rcp_f32 v{t0}, v{den}")
    if num is None:
        a(f"v_fma_f32 v{t1}, -v{den}, v{t0}, 1.0")
        a(f"v_fma_f32 v{dst}, v{t1}, v{t0}, v{t0}")
    else:
        a(f"v_mul_f32 v{t1}, v{num}, v{t0}")
        a(f"v_fma_f32 v{dst}, -v{den}, v{t1}, v{num}")
        a(f"v_fma_f32 v{dst}, v{dst}, v{t0}, v{t1}")


import os
HEAD = os.path.join(os.path.dirname(os.path.abspath(__file__)), "head.txt")

if __name__ == "__main__":
    out = sys.argv[1]
    kw = {}
    for s in sys.argv[2:]:
        k, v = s.split("=")
        kw[k] = int(v) if v.lstrip("-").isdigit() else v
    open(out, "w").write(gen(**kw))
```

```python
import os, struct, sys
from asmlib import Asm

NAME = "gated_mix__mha_block_cached__mixer_token_mlp__decode_kernel"
HEAD = os.path.join(os.path.dirname(os.path.abspath(__file__)), "head.txt")
SPIN_LIMIT = 0x40000
DPPF = "row_mask:0xf bank_mask:0xf"

L_QP, L_OP, L_ML, L_YP = 0, 2048, 4096, 4352
L_CNT, L_TR, L_SC = 4608, 4864, 8192
L_PQ = L_SC
LDS_BYTES = 8192 + 16384
WS_E, WS_F, WS_Q = 0x0, 0x100000, 0x200000
WS_ST = 0x800000

S_WG, S_WAVE = 2, 3
P_X, P_K, P_V, P_WQ, P_WO, P_BX, P_W1, P_B1 = 8, 10, 12, 14, 16, 18, 20, 22
P_W2, P_B2, P_GW, P_OUT, P_DBG, P_WS = 24, 26, 28, 30, 32, 34
S_B, S_H, S_ROLE = 36, 37, 38
S_HI16, S_MI1, S_MI0 = 39, 40, 42
S_LOG2E, S_SCALE = 44, 45
S_T0, S_T1, S_T2, S_T3 = 46, 47, 48, 49
S_CNT, S_ID = 50, 51
SRD_A, SRD_B, SRD_C, SRD_D, SRD_E = 52, 56, 60, 64, 68
S_OFFA, S_OFFB = 72, 73
S_TS = 74
S_ST = 76
S_QC = 82


def f2u(x):
    return struct.unpack("<I", struct.pack("<f", x))[0]


def bitrev4(j):
    return ((j & 1) << 3) | ((j & 2) << 1) | ((j & 4) >> 1) | ((j & 8) >> 3)


class Cfg:
    D = 5
    D0 = 5
    DP = 5
    PF = 32
    DT = 5
    NT = 1
    kvflags = "nt"
    prio = 2
    wo_depth = 2
    wq_depth = 32
    wqflags = "nt"
    woflags = "nt"
    smflags = "nt"
    sc = "sc1"
    rot = 1
    roto = 0
    touchv = 1
    remap = 1
    qmode = "local"
    qsleep = 0
    fsleep = 0
    touch = 1
    stamps = 0
    auxoff = 0
    quick = 1


def srd(a, reg, ptr, add_lo=None, add_hi=None, size=0):
    if add_lo is None:
        a(f"s_mov_b32 s{reg}, s{ptr}\ns_mov_b32 s{reg+1}, s{ptr+1}")
    else:
        a(f"s_add_u32 s{reg}, s{ptr}, {add_lo}")
        a(f"s_addc_u32 s{reg+1}, s{ptr+1}, {add_hi if add_hi is not None else 0}")
    a(f"s_mov_b32 s{reg+2}, {size}\ns_mov_b32 s{reg+3}, 0x20000")


def cross_rows(a, op, v, t):
    a(f"v_mov_b32 v{t}, v{v}")
    a(f"v_permlane16_swap_b32 v{v}, v{t}")
    a(f"{op} v{v}, v{v}, v{t}")
    a(f"v_mov_b32 v{t}, v{v}")
    a(f"v_permlane32_swap_b32 v{v}, v{t}")
    a(f"{op} v{v}, v{v}, v{t}")


def reduce64(a, op, v, t):
    for n in (8, 4, 2, 1):
        a(f"{op}_dpp v{v}, v{v}, v{v} row_ror:{n} {DPPF}")
    cross_rows(a, op, v, t)


def rne_bf16(a, v):
    a(f"v_cvt_pk_bf16_f32 v{v}, v{v}, v{v}")
    a(f"v_and_b32 v{v}, s{S_HI16}, v{v}")


def make_masks(a, vlane, m0, t0, t1):
    a(f"v_and_b32 v{t0}, 15, v{vlane}")
    a(f"v_and_b32 v{t1}, 1, v{t0}")
    a(f"v_lshlrev_b32 v{t1}, 4, v{t1}")
    a(f"v_mov_b32 v{m0}, 0xffff")
    a(f"v_lshlrev_b32 v{t1}, v{t1}, v{m0}")
    a(f"v_lshrrev_b32 v{t0}, 1, v{t0}")
    for r in range(4):
        a(f"v_cmp_eq_u32 vcc, {r}, v{t0}")
        a(f"v_cndmask_b32 v{m0+r}, 0, v{t1}, vcc")


def div(a, dst, num, den, t0, t1):
    a(f"v_rcp_f32 v{t0}, v{den}")
    a(f"v_mul_f32 v{t1}, v{num}, v{t0}")
    a(f"v_fma_f32 v{dst}, -v{den}, v{t1}, v{num}")
    a(f"v_fma_f32 v{dst}, v{dst}, v{t0}, v{t1}")


def rstamp(a, v, idx):
    a(f"s_memrealtime s[{S_ST}:{S_ST+1}]\ns_waitcnt lgkmcnt(0)")
    a(f"v_writelane_b32 v{v}, s{S_ST}, {idx}")


def dump_stamps(a, v, region, t):
    a(f"s_lshl_b32 s{S_ST+2}, s{S_ID}, 2\ns_add_u32 s{S_ST+2}, s{S_ST+2}, s{S_ROLE}\ns_lshl_b32 s{S_ST+2}, s{S_ST+2}, 8")
    a(f"s_add_u32 s{S_ST+2}, s{S_ST+2}, {region}")
    a(f"v_lshlrev_b32 v{t}, 2, v0\nv_add_u32 v{t}, s{S_ST+2}, v{t}")
    a(f"global_store_dword v{t}, v{v}, s[{P_WS}:{P_WS+1}]")


class VM:
    def __init__(self, a):
        self.a, self.issued, self.done = a, 0, 0

    def op(self, text):
        self.a(text)
        self.issued += 1
        return self.issued - 1

    def wait(self, k):
        if self.done <= k:
            self.a(f"s_waitcnt vmcnt({min(63, self.issued - k - 1)})")
            self.done = max(self.done, k + 1 if self.issued - k - 1 <= 63 else self.issued - 63)

    def gate(self, depth):
        k = self.issued - depth
        if k >= 0:
            self.wait(k)


def gen(**kw):
    c = Cfg()
    for k, v in kw.items():
        assert hasattr(c, k), k
        setattr(c, k, v)
    a = Asm()
    a(f".amdgcn_target \"amdgcn-amd-amdhsa--gfx950\"\n.text\n.globl {NAME}\n.p2align 8\n.type {NAME},@function\n{NAME}:")
    a(f"s_cmp_ge_u32 s{S_WG}, 256\ns_cbranch_scc1 L_done")
    a("s_load_dwordx16 s[8:23], s[0:1], 0")
    a("s_load_dwordx8 s[24:31], s[0:1], 64")
    a("s_load_dwordx4 s[32:35], s[0:1], 96")
    if c.stamps:
        a(f"s_memrealtime s[{S_ST+4}:{S_ST+5}]")
    a("v_lshrrev_b32 v1, 6, v0")
    a("v_and_b32 v0, 63, v0")
    a(f"v_readfirstlane_b32 s{S_WAVE}, v1")
    if c.remap:
        a(f"s_lshr_b32 s{S_B}, s{S_WG}, 3\ns_and_b32 s{S_B}, s{S_B}, 7")
        a(f"s_lshr_b32 s{S_H}, s{S_WG}, 6\ns_lshl_b32 s{S_H}, s{S_H}, 3\ns_and_b32 s{S_T0}, s{S_WG}, 7\ns_or_b32 s{S_H}, s{S_H}, s{S_T0}")
    else:
        a(f"s_lshr_b32 s{S_B}, s{S_WG}, 5\ns_and_b32 s{S_H}, s{S_WG}, 31")
    a(f"s_lshl_b32 s{S_ID}, s{S_B}, 5\ns_or_b32 s{S_ID}, s{S_ID}, s{S_H}")
    a(f"s_and_b32 s{S_ROLE}, s{S_WAVE}, 3")
    a(f"s_mov_b32 s{S_HI16}, 0xffff0000")
    a(f"s_mov_b32 s{S_LOG2E}, {f2u(1.4426950408889634):#x}")
    a(f"s_cmp_ge_u32 s{S_WAVE}, 4\ns_cbranch_scc1 L_aux")
    streamer(a, c)
    a("L_aux:")
    aux(a, c)
    a("L_done:\ns_endpgm")
    body = a.finish()
    head = open(HEAD).read()
    tail = f""".section .rodata,"a"
.p2align 6
.amdhsa_kernel {NAME}
  .amdhsa_next_free_vgpr 256
  .amdhsa_next_free_sgpr 96
  .amdhsa_accum_offset 256
  .amdhsa_group_segment_fixed_size 0
  .amdhsa_kernarg_size 112
  .amdhsa_user_sgpr_count 2
  .amdhsa_user_sgpr_kernarg_segment_ptr 1
  .amdhsa_system_sgpr_workgroup_id_x 1
  .amdhsa_float_denorm_mode_32 3
.end_amdhsa_kernel
"""
    return head + f"; @launch grid=(256,1,1) block=(512,1,1) lds={LDS_BYTES}\n" + body + tail


def streamer(a, c):
    V_LANE, V_OFF, V_SCA = 0, 1, 2
    V_Q, V_MASK, V_A0, V_A1, V_ACC = 4, 8, 12, 16, 20
    V_P, V_T, V_U, V_X, V_S = 24, 26, 28, 30, 32
    V_T0, V_T1, V_M, V_L, V_P2, V_SN, V_P2N, V_ST = 33, 34, 35, 36, 37, 38, 39, 41
    V_TMP = 44
    R = 16
    PF, D = c.PF, c.D
    assert 16 <= PF <= 48 and max(D, c.DT, c.DP) < R
    PFB = 256 - 4 * PF
    assert PFB >= 60

    def dreg(n):
        return PFB + 4 * (n if n < PF else (n - PF) % R)

    if c.prio:
        a(f"s_setprio {c.prio}")
    a(f"v_lshlrev_b32 v{V_OFF}, 4, v{V_LANE}")
    a(f"s_lshl_b32 s{S_T0}, s{S_ROLE}, 12")
    a(f"v_add_u32 v{V_OFF}, s{S_T0}, v{V_OFF}")
    a(f"s_lshl_b32 s{S_T0}, s{S_ID}, 20\ns_lshr_b32 s{S_T1}, s{S_ID}, 12")
    a(f"s_mov_b32 s{S_OFFA}, 0\ns_mov_b32 s{S_OFFB}, 0")
    a("s_waitcnt lgkmcnt(0)")
    srd(a, SRD_A, P_K, f"s{S_T0}", f"s{S_T1}", 0x100000)
    srd(a, SRD_B, P_V, f"s{S_T0}", f"s{S_T1}", 0x100000)
    vm = VM(a)

    def load_text(n):
        r = dreg(n)
        s, so = (SRD_A, S_OFFA) if n < 256 else (SRD_B, S_OFFB)
        t = f"buffer_load_dwordx4 v[{r}:{r+3}], v{V_OFF}, s[{s}:{s+3}], s{so} offen offset:{(n & 3) * 1024} {c.kvflags}"
        if n & 3 == 3:
            t += f"\ns_add_u32 s{so}, s{so}, 16384"
        return t

    def issue():
        vm.op(load_text(vm.issued))

    if c.stamps:
        a(f"v_mov_b32 v{V_ST}, 0")
        a(f"v_writelane_b32 v{V_ST}, s{S_ST+4}, 43")
        a(f"s_getreg_b32 s{S_ST+2}, hwreg(HW_REG_XCC_ID)\nv_writelane_b32 v{V_ST}, s{S_ST+2}, 44")
        rstamp(a, V_ST, 32)
    marks = sorted(set((c.D0, 8, 12, 16, 24, PF - 1)))
    for n in range(PF):
        if n == c.D0 and c.qmode == "coop":
            a("s_barrier")
        if n >= c.D0:
            vm.gate(c.DP)
            if c.stamps and n in marks:
                rstamp(a, V_ST, 33 + marks.index(n))
        issue()
    a(f"s_mov_b32 s{S_MI1}, 0xcccccccc\ns_mov_b32 s{S_MI1+1}, 0xcccccccc")
    a(f"s_mov_b32 s{S_MI0}, 0xaaaaaaaa\ns_mov_b32 s{S_MI0+1}, 0xaaaaaaaa")
    a(f"s_mov_b32 s{S_SCALE}, {f2u(128 ** -0.5):#x}")
    make_masks(a, V_LANE, V_MASK, V_T0, V_T1)
    a(f"v_lshlrev_b32 v{V_SCA}, 2, v{V_LANE}")
    a(f"s_lshl_b32 s{S_T0}, s{S_ROLE}, 12\ns_add_u32 s{S_T0}, s{S_T0}, {L_SC}")
    a(f"v_add_u32 v{V_SCA}, s{S_T0}, v{V_SCA}")
    a(f"v_mov_b32 v{V_M}, 0xff800000")
    a(f"v_mov_b32 v{V_L}, 0")
    for r in range(4):
        a(f"v_mov_b32 v{V_ACC+r}, 0")
    a(f"v_and_b32 v{V_T0}, 15, v{V_LANE}\nv_lshlrev_b32 v{V_T0}, 5, v{V_T0}")
    a("s_barrier")
    for rnd in range(2):
        for w in range(2):
            ww = 2 * rnd + w
            a(f"ds_read_b128 v[{V_TMP+8*w}:{V_TMP+8*w+3}], v{V_T0} offset:{L_QP + 512*ww}")
            a(f"ds_read_b128 v[{V_TMP+8*w+4}:{V_TMP+8*w+7}], v{V_T0} offset:{L_QP + 512*ww + 16}")
        a("s_waitcnt lgkmcnt(0)")
        for e in range(8):
            a(f"v_add_f32 v{V_TMP+e}, v{V_TMP+e}, v{V_TMP+8+e}")
        if rnd == 0:
            for e in range(8):
                a(f"v_mov_b32 v{V_P+e}, v{V_TMP+e}")
    for e in range(8):
        a(f"v_add_f32 v{V_TMP+e}, v{V_P+e}, v{V_TMP+e}")
    for r in range(4):
        a(f"v_cvt_pk_bf16_f32 v{V_Q+r}, v{V_TMP+2*r}, v{V_TMP+2*r+1}")
    if c.stamps:
        rstamp(a, V_ST, 40)
        a(f"s_mov_b32 s{S_ST+3}, 0")

    def gstamp():
        if c.stamps:
            a(f"s_memrealtime s[{S_ST}:{S_ST+1}]\ns_waitcnt lgkmcnt(0)")
            a(f"s_mov_b32 m0, s{S_ST+3}")
            a(f"v_writelane_b32 v{V_ST}, s{S_ST}, m0")
            a(f"s_add_u32 s{S_ST+3}, s{S_ST+3}, 1")

    def k_reduce(j):
        if j & 1:
            t = V_T + ((j >> 1) & 1)
            a(f"v_add_f32_dpp v{t}, v{V_P}, v{V_P} row_ror:8 row_mask:0xf bank_mask:0x3")
            a(f"v_add_f32_dpp v{t}, v{V_P+1}, v{V_P+1} row_ror:8 row_mask:0xf bank_mask:0xc")
        if j & 3 == 3:
            u = V_U + ((j >> 2) & 1)
            a(f"v_add_f32_dpp v{u}, v{V_T}, v{V_T} row_ror:12 row_mask:0xf bank_mask:0x5")
            a(f"v_add_f32_dpp v{u}, v{V_T+1}, v{V_T+1} row_ror:4 row_mask:0xf bank_mask:0xa")
        if j & 7 == 7:
            x = V_X + ((j >> 3) & 1)
            a(f"v_cndmask_b32 v{V_T0}, v{V_U}, v{V_U+1}, s[{S_MI1}:{S_MI1+1}]")
            a(f"v_cndmask_b32 v{V_T1}, v{V_U+1}, v{V_U}, s[{S_MI1}:{S_MI1+1}]")
            a(f"v_add_f32_dpp v{x}, v{V_T1}, v{V_T0} quad_perm:[2,3,0,1] {DPPF}")
        if j == 15:
            a(f"v_cndmask_b32 v{V_T0}, v{V_X}, v{V_X+1}, s[{S_MI0}:{S_MI0+1}]")
            a(f"v_cndmask_b32 v{V_T1}, v{V_X+1}, v{V_X}, s[{S_MI0}:{S_MI0+1}]")
            a(f"v_add_f32_dpp v{V_S}, v{V_T1}, v{V_T0} quad_perm:[1,0,3,2] {DPPF}")
            rne_bf16(a, V_S)
            a(f"v_mul_f32 v{V_S}, s{S_SCALE}, v{V_S}")
            rne_bf16(a, V_S)
            a(f"v_max_f32 v{V_M}, v{V_M}, v{V_S}")
            a(f"ds_write_b32 v{V_SCA}, v{V_S}")
            a(f"v_add_u32 v{V_SCA}, 0x100, v{V_SCA}")

    def k_step(n, j):
        r = dreg(n)
        p = V_P + (j & 1)
        a(f"v_dot2_f32_bf16 v{p}, v{r}, v{V_Q}, 0")
        for e in range(1, 4):
            a(f"v_dot2_f32_bf16 v{p}, v{r+e}, v{V_Q+e}, v{p}")
        k_reduce(j)

    def static_feed(n, depth):
        vm.wait(n)
        while vm.issued < min(512, n + depth + 1):
            issue()

    g0 = (PF + 15) // 16
    for n in range(16 * g0):
        target = max(PF + min(n, D), n + D) if n < PF else n + D + 1
        if n >= PF:
            vm.wait(n)
        while vm.issued < target:
            if n < PF:
                vm.gate(D)
            issue()
        vm.wait(n)
        k_step(n, n & 15)
        if n & 15 == 15:
            gstamp()
    assert vm.issued == 16 * g0 + D, vm.issued
    a(f"s_mov_b32 s{S_CNT}, {15 - g0}")
    a("L_kloop:")
    for j in range(16):
        n = 16 * g0 + j
        a(f"s_waitcnt vmcnt({D-1})")
        a(load_text(n + D))
        k_step(n, j)
    gstamp()
    a(f"s_sub_u32 s{S_CNT}, s{S_CNT}, 1\ns_cmp_lg_u32 s{S_CNT}, 0\ns_cbranch_scc1 L_kloop")
    vm.issued, vm.done = 240 + D, 240
    for n in range(240, 256):
        static_feed(n, D)
        k_step(n, n & 15)
    gstamp()
    if c.stamps:
        rstamp(a, V_ST, 41)
    reduce64(a, "v_max_f32", V_M, V_T0)
    a(f"v_add_u32 v{V_SCA}, {-16*256 & 0xffffffff:#x}, v{V_SCA}")
    a("s_waitcnt lgkmcnt(0)")
    a(f"ds_read_b32 v{V_SN}, v{V_SCA}")

    def probs(dst):
        a("s_waitcnt lgkmcnt(0)")
        a(f"v_sub_f32 v{V_T0}, v{V_SN}, v{V_M}")
        a(f"v_mul_f32 v{V_T0}, s{S_LOG2E}, v{V_T0}")
        a(f"v_exp_f32 v{V_T0}, v{V_T0}")
        a(f"v_add_f32 v{V_L}, v{V_L}, v{V_T0}")
        a(f"v_cvt_pk_bf16_f32 v{dst}, v{V_T0}, v{V_T0}")

    def build_a(dst, src, j):
        for r in range(4):
            a(f"v_and_b32_dpp v{dst+r}, v{src}, v{V_MASK+r} row_newbcast:{bitrev4(j)} {DPPF}")

    probs(V_P2)
    build_a(V_A0, V_P2, 0)

    def v_step(n, j, last):
        r = dreg(n)
        A, An = (V_A0, V_A1) if j % 2 == 0 else (V_A1, V_A0)
        a(f"v_mfma_f32_16x16x32_bf16 v[{V_ACC}:{V_ACC+3}], v[{A}:{A+3}], v[{r}:{r+3}], v[{V_ACC}:{V_ACC+3}]")
        if j < 15:
            build_a(An, V_P2, j + 1)
        elif not last:
            build_a(An, V_P2N, 0)
            a(f"v_mov_b32 v{V_P2}, v{V_P2N}")
        if not last:
            if j == 1:
                a(f"v_add_u32 v{V_SCA}, 0x100, v{V_SCA}")
                a(f"ds_read_b32 v{V_SN}, v{V_SCA}")
            if j == 6:
                probs(V_P2N)
        elif j == 1:
            reduce64(a, "v_add_f32", V_L, V_T0)

    NT = c.NT
    assert 1 <= NT <= 15 and vm.issued == 256 + D
    a(f"s_mov_b32 s{S_CNT}, {16 - NT}")
    a("L_vloop:")
    for j in range(16):
        n = 256 + j
        a(f"s_waitcnt vmcnt({D-1})")
        a(load_text(n + D))
        v_step(n, j, False)
    gstamp()
    a(f"s_sub_u32 s{S_CNT}, s{S_CNT}, 1\ns_cmp_lg_u32 s{S_CNT}, 0\ns_cbranch_scc1 L_vloop")
    n0 = 512 - 16 * NT
    vm.issued, vm.done = n0 + D, n0
    for n in range(n0, 512):
        static_feed(n, c.DT)
        v_step(n, n & 15, n >= 496)
        if n & 15 == 15:
            gstamp()
    if c.stamps:
        rstamp(a, V_ST, 42)
    a(f"v_and_b32 v{V_T0}, 15, v{V_LANE}\nv_lshlrev_b32 v{V_T0}, 5, v{V_T0}")
    a(f"v_lshrrev_b32 v{V_T1}, 4, v{V_LANE}\nv_lshlrev_b32 v{V_T1}, 4, v{V_T1}")
    a(f"s_lshl_b32 s{S_T0}, s{S_ROLE}, 9")
    a(f"v_add3_u32 v{V_T0}, v{V_T0}, v{V_T1}, s{S_T0}")
    a(f"s_lshl_b32 s{S_T0}, s{S_ROLE}, 2")
    a(f"v_mov_b32 v{V_T1}, s{S_T0}")
    a("s_mov_b64 exec, 1")
    a(f"ds_write_b32 v{V_T1}, v{V_M} offset:{L_ML}")
    a(f"ds_write_b32 v{V_T1}, v{V_L} offset:{L_ML+16}")
    a("s_mov_b32 exec_lo, -1\ns_mov_b32 exec_hi, 0")
    a(f"ds_write_b128 v{V_T0}, v[{V_ACC}:{V_ACC+3}] offset:{L_OP}")
    a("s_waitcnt lgkmcnt(0)\ns_barrier")
    if c.stamps:
        a("s_mov_b64 exec, -1")
        dump_stamps(a, V_ST, WS_ST, V_T0)
    a("s_endpgm")


def aux(a, c):
    V_LANE, V_G, V_C = 0, 1, 2
    V_MASK, V_A0, V_A1, V_ACC = 4, 8, 12, 16
    V_X0, V_X1, V_T0, V_T1, V_T2, V_T3 = 20, 21, 22, 23, 24, 25
    V_OFF, V_H, V_GATE, V_Y1, V_Y2, V_C1, V_C2 = 26, 27, 28, 29, 30, 31, 32
    V_ST, V_JUNK = 33, 3
    V_TQ, V_TQ2, V_TF, V_TS = 34, 102, 58, 100
    V_W1, V_B1, V_W2 = 36, 43, 50
    E = V_E = 60
    G0 = E + 16
    V_QA = 160
    WB = 128
    sc = c.sc
    coop = c.qmode == "coop"
    vm = VM(a)

    def build_a(dst, src, i):
        for r in range(4):
            a(f"v_and_b32_dpp v{dst+r}, v{src}, v{V_MASK+r} row_newbcast:{i} {DPPF}")

    def granule(dst, v0, v1, tag):
        a(f"v_mov_b32 v{dst}, v{v0}\nv_mov_b32 v{dst+1}, v{tag}\nv_mov_b32 v{dst+2}, v{v1}\nv_mov_b32 v{dst+3}, v{tag+1}")

    def tags_bad(regs):
        a(f"v_cmp_ne_u32 vcc, s{S_TS}, v{regs[0]+1}")
        for k, g in enumerate(regs):
            if k:
                a(f"v_cmp_ne_u32 s[{S_T2}:{S_T2+1}], s{S_TS}, v{g+1}")
                a(f"s_or_b64 vcc, vcc, s[{S_T2}:{S_T2+1}]")
            a(f"v_cmp_ne_u32 s[{S_T2}:{S_T2+1}], s{S_TS+1}, v{g+3}")
            a(f"s_or_b64 vcc, vcc, s[{S_T2}:{S_T2+1}]")

    def rot_index(dst, be, on):
        if on:
            a(f"s_lshl_b32 s{S_T2}, s{S_B}, 2")
            a(f"v_add_u32 v{dst}, s{S_T2}, v{V_C}")
        else:
            a(f"v_mov_b32 v{dst}, v{V_C}")
        if be:
            a(f"v_add_u32 v{dst}, 16, v{dst}")
        a(f"v_and_b32 v{dst}, 31, v{dst}")

    a(f"v_lshrrev_b32 v{V_G}, 4, v{V_LANE}\nv_and_b32 v{V_C}, 15, v{V_LANE}")
    a(f"v_lshlrev_b32 v{V_OFF}, 13, v{V_G}\nv_lshl_add_u32 v{V_OFF}, v{V_C}, 4, v{V_OFF}")
    if coop:
        a(f"v_lshrrev_b32 v{V_T0}, 2, v{V_C}\nv_lshlrev_b32 v{V_T0}, 10, v{V_T0}")
        a(f"v_and_b32 v{V_T1}, 3, v{V_C}\nv_lshlrev_b32 v{V_T1}, 3, v{V_T1}")
        a(f"v_lshl_add_u32 v{V_T1}, v{V_G}, 1, v{V_T1}")
        a(f"s_lshl_b32 s{S_T0}, s{S_B}, 7\ns_lshl_b32 s{S_T1}, s{S_ROLE}, 5\ns_add_u32 s{S_T0}, s{S_T0}, s{S_T1}")
        a(f"v_add3_u32 v{V_T0}, v{V_T0}, v{V_T1}, s{S_T0}")
        a(f"v_add_u32 v{V_T3}, 0x1000, v{V_T0}")
        a(f"s_lshl_b32 s{S_OFFA}, s{S_B}, 19\ns_lshl_b32 s{S_T1}, s{S_ROLE}, 17\ns_add_u32 s{S_OFFA}, s{S_OFFA}, s{S_T1}")
    else:
        a(f"s_lshl_b32 s{S_T0}, s{S_B}, 10\ns_lshl_b32 s{S_T1}, s{S_ROLE}, 8\ns_add_u32 s{S_T0}, s{S_T0}, s{S_T1}")
        for be, dst in ((0, V_T0), (1, V_T3)):
            rot_index(dst, be, c.rot)
            a(f"v_lshlrev_b32 v{dst}, 3, v{dst}\nv_lshl_add_u32 v{dst}, v{V_G}, 1, v{dst}")
            a(f"v_add_u32 v{dst}, s{S_T0}, v{dst}")
        a(f"s_lshl_b32 s{S_OFFA}, s{S_ROLE}, 20")
        a(f"s_lshl_b32 s{S_OFFB}, s{S_B}, 17" if c.rot else f"s_mov_b32 s{S_OFFB}, 0")
    a(f"v_lshrrev_b32 v{V_T2}, 3, v{V_LANE}")
    a(f"s_lshl_b32 s{S_T1}, s{S_B}, 5\ns_lshl_b32 s{S_T2}, s{S_ROLE}, 3\ns_add_u32 s{S_T1}, s{S_T1}, s{S_T2}")
    a(f"v_add_u32 v{V_T2}, s{S_T1}, v{V_T2}\nv_lshlrev_b32 v{V_T2}, 7, v{V_T2}")
    a(f"s_lshl_b32 s{S_T1}, s{S_ID}, 7")
    a(f"v_mov_b32 v{V_Y1}, s{S_T1}")
    if coop:
        a(f"s_lshl_b32 s{S_T1}, s{S_ROLE}, 6\ns_add_u32 s{S_T1}, s{S_T1}, s{S_H}")
        a(f"s_lshl_b32 s{S_QC}, s{S_T1}, 13")
        a(f"s_lshl_b32 s{S_T1}, s{S_T1}, 7")
        a(f"v_mov_b32 v{V_T1}, s{S_T1}")
    a(f"s_lshl_b32 s{S_T1}, s{S_H}, 8")
    a(f"s_sub_u32 s{S_T2}, 0x400000, s{S_T1}")
    a("s_waitcnt lgkmcnt(0)")
    if c.stamps:
        a(f"v_mov_b32 v{V_ST}, 0")
        a(f"v_writelane_b32 v{V_ST}, s{S_ST+4}, 16")
        rstamp(a, V_ST, 0)
    srd(a, SRD_B, P_WQ, f"s{S_T1}", None, f"s{S_T2}")
    srd(a, SRD_A, P_X, None, None, 8192 + 64)
    NW = 4 if coop else 32

    def wq_load(j):
        if coop:
            k = vm.op(f"buffer_load_dwordx4 v[{WB+4*j}:{WB+4*j+3}], v{V_OFF}, s[{SRD_B}:{SRD_B+3}], s{S_OFFA} offen {c.wqflags}")
            if j < NW - 1:
                a(f"s_add_u32 s{S_OFFA}, s{S_OFFA}, 32768")
        else:
            a(f"s_add_u32 s{S_T3}, s{S_OFFA}, s{S_OFFB}")
            k = vm.op(f"buffer_load_dwordx4 v[{WB+4*j}:{WB+4*j+3}], v{V_OFF}, s[{SRD_B}:{SRD_B+3}], s{S_T3} offen {c.wqflags}")
            if j < NW - 1:
                a(f"s_add_u32 s{S_OFFB}, s{S_OFFB}, 32768\ns_and_b32 s{S_OFFB}, s{S_OFFB}, 0xfffff")
        return k

    XS = (V_X0, V_X1)
    vm.op(f"buffer_load_ushort v{V_X0}, v{V_T0}, s[{SRD_A}:{SRD_A+3}], 0 offen {c.smflags}")
    kx = vm.op(f"buffer_load_ushort v{V_X1}, v{V_T3}, s[{SRD_A}:{SRD_A+3}], 0 offen {c.smflags}")
    wq_k = {}
    first = min(NW, c.wq_depth)
    head = min(first, 4)
    for j in range(head):
        wq_k[j] = wq_load(j)
    srd(a, SRD_C, P_WS, None, None, 0x8000)
    vm.op(f"buffer_load_dwordx2 v[{V_TF}:{V_TF+1}], v{V_T2}, s[{SRD_C}:{SRD_C+3}], 0 offen {c.smflags}")
    ke = vm.op(f"buffer_load_dwordx2 v[{V_TS}:{V_TS+1}], v{V_Y1}, s[{SRD_C}:{SRD_C+3}], 0 offen {c.smflags}")
    if coop:
        vm.op(f"buffer_load_dwordx2 v[{V_TQ}:{V_TQ+1}], v{V_T1}, s[{SRD_C}:{SRD_C+3}], 0 offen {c.smflags}")
        a(f"v_add_u32 v{V_T1}, 0x1000, v{V_T1}")
        ke = vm.op(f"buffer_load_dwordx2 v[{V_TQ2}:{V_TQ2+1}], v{V_T1}, s[{SRD_C}:{SRD_C+3}], 0 offen {c.smflags}")
    if c.touch:
        a(f"v_mov_b32 v{V_JUNK}, 0")
        a(f"v_mov_b32 v{V_T1}, 0")
        for p in (P_GW, P_W1, P_B1, P_W2, P_B2, P_WO, P_OUT):
            vm.op(f"global_load_ushort v{V_JUNK}, v{V_T1}, s[{p}:{p+1}] {c.smflags}")
        a(f"v_mov_b32 v{V_T1}, {WS_F}")
        vm.op(f"global_load_dword v{V_JUNK}, v{V_T1}, s[{P_WS}:{P_WS+1}] {c.smflags}")
        if c.touchv:
            a(f"s_lshl_b32 s{S_T0}, s{S_ID}, 20\ns_lshr_b32 s{S_T1}, s{S_ID}, 12")
            srd(a, SRD_E, P_V, f"s{S_T0}", f"s{S_T1}", 0x100000)
            a(f"v_mov_b32 v{V_T1}, 0")
            vm.op(f"buffer_load_dword v{V_JUNK}, v{V_T1}, s[{SRD_E}:{SRD_E+3}], 0 offen nt")
        if coop:
            a(f"v_mov_b32 v{V_T1}, {WS_Q}")
            vm.op(f"global_load_dword v{V_JUNK}, v{V_T1}, s[{P_WS}:{P_WS+1}] {c.smflags}")
    for j in range(head, first):
        wq_k[j] = wq_load(j)
    if c.stamps:
        rstamp(a, V_ST, 1)
    make_masks(a, V_LANE, V_MASK, V_T1, V_T2)

    if coop:
        a(f"v_mov_b32 v{V_T2}, 0\nv_mov_b32 v{V_T3}, {L_CNT}")
        a(f"ds_write_b32 v{V_T3}, v{V_T2}")
        for r in range(32):
            a(f"v_mov_b32 v{V_QA+r}, 0")
        a("s_waitcnt lgkmcnt(0)\ns_barrier")
        vm.wait(max(kx, wq_k[3]))
        if c.stamps:
            rstamp(a, V_ST, 2)
        for x in XS:
            a(f"v_lshl_or_b32 v{x}, v{x}, 16, v{x}")
        seq = [(j, bb) for j in range(4) for bb in range(8)]
        build_a(V_A0, XS[0], 0)
        for k, (j, bb) in enumerate(seq):
            A, An = (V_A0, V_A1) if k % 2 == 0 else (V_A1, V_A0)
            if k + 1 < len(seq):
                jn, bn = seq[k + 1]
                build_a(An, XS[bn >> 2], 4 * (bn & 3) + jn)
            acc = V_QA + 4 * bb
            a(f"v_mfma_f32_16x16x32_bf16 v[{acc}:{acc+3}], v[{A}:{A+3}], v[{WB+4*j}:{WB+4*j+3}], v[{acc}:{acc+3}]")
        if c.stamps:
            rstamp(a, V_ST, 3)
        a(f"v_lshlrev_b32 v{V_T0}, 5, v{V_C}\nv_lshl_add_u32 v{V_T0}, v{V_G}, 4, v{V_T0}")
        a(f"s_lshl_b32 s{S_T0}, s{S_ROLE}, 12")
        a(f"v_add_u32 v{V_T0}, s{S_T0}, v{V_T0}")
        a("s_mov_b32 exec_lo, -1\ns_mov_b32 exec_hi, 0")
        for bb in range(8):
            a(f"ds_write_b128 v{V_T0}, v[{V_QA+4*bb}:{V_QA+4*bb+3}] offset:{L_PQ + 512*bb}")
        a("s_mov_b64 exec, 1")
        a(f"v_mov_b32 v{V_T2}, 1")
        a(f"ds_add_u32 v{V_T3}, v{V_T2}")
        a("s_mov_b64 exec, -1")
        a(f"s_lshl_b32 s{S_T0}, s{S_B}, 10\ns_add_u32 s{S_QC}, s{S_QC}, s{S_T0}")
        a(f"v_lshlrev_b32 v{V_X1}, 4, v{V_LANE}\nv_add_u32 v{V_X1}, s{S_QC}, v{V_X1}")
        a(f"v_lshlrev_b32 v{V_T0}, 3, v{V_LANE}")
        a(f"s_lshl_b32 s{S_T0}, s{S_ROLE}, 10")
        a(f"v_add_u32 v{V_T0}, s{S_T0}, v{V_T0}")
        vm.wait(ke)
        for t in (V_TQ, V_TQ2, V_TF, V_TS):
            a(f"v_add_u32 v{t}, 1, v{t}\nv_add_u32 v{t+1}, 1, v{t+1}")
        a(f"s_mov_b32 s{S_T0}, {WS_Q}")
        srd(a, SRD_D, P_WS, f"s{S_T0}", None, 0x200000)
        a(f"s_mov_b32 s{S_CNT}, {SPIN_LIMIT}")
        a("L_qsync:")
        a(f"ds_read_b32 v{V_T2}, v{V_T3}")
        a(f"s_sub_u32 s{S_CNT}, s{S_CNT}, 1\ns_cbranch_scc1 L_qsync_out")
        a("s_waitcnt lgkmcnt(0)")
        a(f"v_readfirstlane_b32 s{S_T1}, v{V_T2}")
        a(f"s_cmp_lt_u32 s{S_T1}, 4\ns_cbranch_scc1 L_qsync")
        a("L_qsync_out:")
        for be in range(2):
            for w in range(4):
                a(f"ds_read_b64 v[{E+8*be+2*w}:{E+8*be+2*w+1}], v{V_T0} offset:{L_PQ + 4096*w + 512*be}")
        a(f"v_readfirstlane_b32 s{S_TS}, v{V_TS}\nv_readfirstlane_b32 s{S_TS+1}, v{V_TS+1}")
        a("s_waitcnt lgkmcnt(0)")
        for be in range(2):
            B = E + 8 * be
            for r in range(2):
                a(f"v_add_f32 v{B+r}, v{B+r}, v{B+2+r}\nv_add_f32 v{B+4+r}, v{B+4+r}, v{B+6+r}")
            for r in range(2):
                a(f"v_add_f32 v{B+r}, v{B+r}, v{B+4+r}")
            granule(G0 + 4 * be, B, B + 1, V_TQ2 if be else V_TQ)
        a(f"buffer_store_dwordx4 v[{G0}:{G0+3}], v{V_X1}, s[{SRD_D}:{SRD_D+3}], 0 offen {sc}")
        a(f"s_mov_b32 s{S_T0}, 0x40000")
        a(f"buffer_store_dwordx4 v[{G0+4}:{G0+7}], v{V_X1}, s[{SRD_D}:{SRD_D+3}], s{S_T0} offen {sc}")
        if c.stamps:
            rstamp(a, V_ST, 4)
        a(f"s_lshl_b32 s{S_T0}, s{S_ID}, 13\ns_lshl_b32 s{S_T1}, s{S_ROLE}, 11\ns_add_u32 s{S_T0}, s{S_T0}, s{S_T1}")
        a(f"v_lshlrev_b32 v{V_T0}, 4, v{V_LANE}\nv_add_u32 v{V_T0}, s{S_T0}, v{V_T0}")
        a(f"s_mov_b32 s{S_CNT}, {SPIN_LIMIT}")
        a("L_qpoll:")
        a(f"buffer_load_dwordx4 v[{E}:{E+3}], v{V_T0}, s[{SRD_D}:{SRD_D+3}], 0 offen {sc}")
        a(f"buffer_load_dwordx4 v[{E+4}:{E+7}], v{V_T0}, s[{SRD_D}:{SRD_D+3}], 0 offen offset:1024 {sc}")
        a(f"s_sub_u32 s{S_CNT}, s{S_CNT}, 1\ns_cbranch_scc1 L_qpoll_out")
        a("s_waitcnt vmcnt(0)")
        tags_bad((E, E + 4))
        if c.qsleep:
            a("s_cbranch_vccz L_qpoll_out")
            a(f"s_sleep {c.qsleep}")
            a("s_branch L_qpoll")
        else:
            a("s_cbranch_vccnz L_qpoll")
        a("L_qpoll_out:")
        if c.stamps:
            rstamp(a, V_ST, 7)
        a(f"v_add_f32 v{E}, v{E}, v{E+4}\nv_add_f32 v{E+1}, v{E+2}, v{E+6}")
        a(f"v_lshlrev_b32 v{V_T0}, 3, v{V_LANE}")
        a(f"s_lshl_b32 s{S_T0}, s{S_ROLE}, 9")
        a(f"v_add_u32 v{V_T0}, s{S_T0}, v{V_T0}")
        a(f"ds_write_b64 v{V_T0}, v[{E}:{E+1}] offset:{L_QP}")
        a("s_waitcnt lgkmcnt(0)\ns_barrier")
        vm.done = vm.issued
    else:
        for r in range(4):
            a(f"v_mov_b32 v{V_ACC+r}, 0")
        vm.wait(kx)
        if c.stamps:
            rstamp(a, V_ST, 2)
        for x in XS:
            a(f"v_lshl_or_b32 v{x}, v{x}, 16, v{x}")
        build_a(V_A0, XS[0], 0)
        nxt = first
        for j in range(32):
            A, An = (V_A0, V_A1) if j % 2 == 0 else (V_A1, V_A0)
            if j < 31:
                build_a(An, XS[(j + 1) >> 4], (j + 1) & 15)
            vm.wait(wq_k[j])
            if nxt < 32:
                wq_k[nxt] = wq_load(nxt)
                nxt += 1
            if c.stamps and j in (0, 8, 16, 24, 31):
                rstamp(a, V_ST, 3 + (0, 8, 16, 24, 31).index(j))
            a(f"v_mfma_f32_16x16x32_bf16 v[{V_ACC}:{V_ACC+3}], v[{A}:{A+3}], v[{WB+4*j}:{WB+4*j+3}], v[{V_ACC}:{V_ACC+3}]")
        a(f"v_lshlrev_b32 v{V_T0}, 5, v{V_C}\nv_lshl_add_u32 v{V_T0}, v{V_G}, 4, v{V_T0}")
        a(f"s_lshl_b32 s{S_T0}, s{S_ROLE}, 9")
        a(f"v_add_u32 v{V_T0}, s{S_T0}, v{V_T0}")
        a("s_mov_b32 exec_lo, -1\ns_mov_b32 exec_hi, 0")
        a(f"ds_write_b128 v{V_T0}, v[{V_ACC}:{V_ACC+3}] offset:{L_QP}")
        a("s_mov_b64 exec, -1")
        a("s_waitcnt lgkmcnt(0)\ns_barrier")
        vm.wait(vm.issued - 1)
        for t in (V_TF, V_TS):
            a(f"v_add_u32 v{t}, 1, v{t}\nv_add_u32 v{t+1}, 1, v{t+1}")
        a(f"v_readfirstlane_b32 s{S_TS}, v{V_TS}\nv_readfirstlane_b32 s{S_TS+1}, v{V_TS+1}")
    if c.stamps:
        rstamp(a, V_ST, 8)

    a(f"s_lshl_b32 s{S_T0}, s{S_B}, 10")
    srd(a, SRD_A, P_X, f"s{S_T0}", None, 1024 + 64)
    VB = V_E
    a(f"v_lshlrev_b32 v{V_T0}, 4, v{V_LANE}")
    a(f"buffer_load_dwordx4 v[{VB}:{VB+3}], v{V_T0}, s[{SRD_A}:{SRD_A+3}], 0 offen {c.smflags}")
    a(f"s_lshl_b32 s{S_T1}, s{S_H}, 5")
    a(f"v_lshlrev_b32 v{V_T1}, 1, v{V_C}")
    a(f"buffer_load_ushort v{V_H}, v{V_T1}, s[{SRD_A}:{SRD_A+3}], s{S_T1} offen {c.smflags}")
    srd(a, SRD_A, P_GW, None, None, 1024)
    a(f"buffer_load_dwordx4 v[{VB+8}:{VB+11}], v{V_T0}, s[{SRD_A}:{SRD_A+3}], 0 offen {c.smflags}")
    a(f"s_mul_i32 s{S_T1}, s{S_ROLE}, 896")
    a(f"v_lshlrev_b32 v{V_T1}, 1, v{V_LANE}")
    for base, ptr in ((V_W1, P_W1), (V_B1, P_B1), (V_W2, P_W2)):
        srd(a, SRD_A, ptr, None, None, 3584 + 64)
        for t in range(7):
            a(f"buffer_load_ushort v{base+t}, v{V_T1}, s[{SRD_A}:{SRD_A+3}], s{S_T1} offen offset:{128*t} {c.smflags}")
    srd(a, SRD_A, P_B2, None, None, 64)
    a(f"v_mov_b32 v{V_T2}, 0")
    a(f"buffer_load_ushort v{V_Y2}, v{V_T2}, s[{SRD_A}:{SRD_A+3}], 0 offen {c.smflags}")
    a("s_waitcnt vmcnt(0)")
    if c.stamps:
        rstamp(a, V_ST, 9)

    a(f"s_lshl_b32 s{S_T0}, s{S_H}, 17")
    srd(a, SRD_B, P_WO, f"s{S_T0}", None, 131072)
    a(f"v_lshlrev_b32 v{V_OFF}, 10, v{V_G}\nv_lshl_add_u32 v{V_OFF}, v{V_C}, 4, v{V_OFF}")
    a(f"s_lshl_b32 s{S_T0}, s{S_ROLE}, 8")
    a(f"v_add_u32 v{V_OFF}, s{S_T0}, v{V_OFF}")
    a(f"s_lshl_b32 s{S_OFFA}, s{S_B}, 14" if c.roto else f"s_mov_b32 s{S_OFFA}, 0")
    for j in range(32 if not (c.auxoff & 1) else 0):
        if j >= c.wo_depth:
            a(f"s_waitcnt vmcnt({c.wo_depth-1})")
        a(f"buffer_load_dwordx4 v[{WB+4*j}:{WB+4*j+3}], v{V_OFF}, s[{SRD_B}:{SRD_B+3}], s{S_OFFA} offen {c.woflags}")
        if j < 31:
            a(f"s_add_u32 s{S_OFFA}, s{S_OFFA}, 4096\ns_and_b32 s{S_OFFA}, s{S_OFFA}, 0x1ffff")
    if c.stamps:
        rstamp(a, V_ST, 10)

    def unpack8(src, dst):
        for r in range(4):
            a(f"v_lshlrev_b32 v{dst+2*r}, 16, v{src+r}")
            a(f"v_and_b32 v{dst+2*r+1}, s{S_HI16}, v{src+r}")

    def sum8(src, dst):
        a(f"v_add_f32 v{dst}, v{src}, v{src+1}")
        for e in range(2, 8):
            a(f"v_add_f32 v{dst}, v{dst}, v{src+e}")

    U = V_E + 12
    unpack8(VB, U)
    unpack8(VB + 8, U + 8)
    for e in range(8):
        a(f"v_mul_f32 v{U+e}, v{U+e}, v{U+8+e}")
    for r in range(4):
        a(f"v_cvt_pk_bf16_f32 v{U+8+r}, v{U+2*r}, v{U+2*r+1}")
    unpack8(U + 8, U)
    sum8(U, V_GATE)
    reduce64(a, "v_add_f32", V_GATE, V_T0)
    rne_bf16(a, V_GATE)
    a(f"v_mul_f32 v{V_GATE}, s{S_LOG2E}, v{V_GATE}")
    a(f"v_sub_f32 v{V_GATE}, 0, v{V_GATE}")
    a(f"v_exp_f32 v{V_GATE}, v{V_GATE}")
    a(f"v_add_f32 v{V_GATE}, 1.0, v{V_GATE}")
    a(f"v_rcp_f32 v{V_GATE}, v{V_GATE}")
    rne_bf16(a, V_GATE)

    unpack8(VB, U)
    sum8(U, V_T2)
    reduce64(a, "v_add_f32", V_T2, V_T0)
    a(f"v_mul_f32 v{V_T2}, {f2u(1/512):#x}, v{V_T2}")
    for e in range(8):
        a(f"v_sub_f32 v{U+e}, v{U+e}, v{V_T2}")
        a(f"v_mul_f32 v{U+e}, v{U+e}, v{U+e}")
    sum8(U, V_T3)
    reduce64(a, "v_add_f32", V_T3, V_T0)
    a(f"v_mul_f32 v{V_T3}, {f2u(1/512):#x}, v{V_T3}")
    rne_bf16(a, V_T2)
    rne_bf16(a, V_T3)
    a(f"v_add_f32 v{V_T3}, {f2u(1e-5):#x}, v{V_T3}")
    rne_bf16(a, V_T3)
    a(f"v_sqrt_f32 v{V_T3}, v{V_T3}")
    rne_bf16(a, V_T3)
    a(f"v_lshlrev_b32 v{V_H}, 16, v{V_H}")
    a(f"v_sub_f32 v{V_H}, v{V_H}, v{V_T2}")
    rne_bf16(a, V_H)
    div(a, V_H, V_H, V_T3, V_T0, V_T1)
    rne_bf16(a, V_H)
    if c.stamps:
        rstamp(a, V_ST, 11)

    for t in range(7):
        for base in (V_W1, V_B1, V_W2):
            a(f"v_lshlrev_b32 v{base+t}, 16, v{base+t}")
    kb = 0.7978845608028654
    c1 = -2.0 * kb * 1.4426950408889634
    a(f"v_mov_b32 v{V_C1}, {f2u(c1):#x}\nv_mov_b32 v{V_C2}, {f2u(c1 * 0.044715):#x}")
    a(f"v_mov_b32 v{V_Y1}, 0")
    a(f"v_mov_b32 v{V_T3}, 0")
    a(f"s_mov_b32 s{S_CNT}, {7 if not (c.auxoff & 2) else 1}")
    a("L_mlp:")
    for k in range(8):
        ua, ub, za, zb, p = E, E + 1, E + 2, E + 3, E + 4
        i0, i1 = 2 * k, 2 * k + 1

        def round2():
            a(f"v_cvt_pk_bf16_f32 v{p}, v{ua}, v{ub}")
            a(f"v_lshlrev_b32 v{ua}, 16, v{p}")
            a(f"v_and_b32 v{ub}, s{S_HI16}, v{p}")
        a(f"v_mul_f32_dpp v{ua}, v{V_W1}, v{V_H} row_newbcast:{i0} {DPPF}")
        a(f"v_mul_f32_dpp v{ub}, v{V_W1}, v{V_H} row_newbcast:{i1} {DPPF}")
        round2()
        a(f"v_add_f32_dpp v{ua}, v{V_B1}, v{ua} row_newbcast:{i0} {DPPF}")
        a(f"v_add_f32_dpp v{ub}, v{V_B1}, v{ub} row_newbcast:{i1} {DPPF}")
        round2()
        a(f"v_mul_f32 v{za}, v{ua}, v{ua}\nv_mul_f32 v{zb}, v{ub}, v{ub}")
        a(f"v_fma_f32 v{za}, v{za}, v{V_C2}, v{V_C1}\nv_fma_f32 v{zb}, v{zb}, v{V_C2}, v{V_C1}")
        a(f"v_mul_f32 v{za}, v{za}, v{ua}\nv_mul_f32 v{zb}, v{zb}, v{ub}")
        a(f"v_exp_f32 v{za}, v{za}\nv_exp_f32 v{zb}, v{zb}")
        a(f"v_add_f32 v{za}, 1.0, v{za}\nv_add_f32 v{zb}, 1.0, v{zb}")
        a(f"v_rcp_f32 v{za}, v{za}\nv_rcp_f32 v{zb}, v{zb}")
        a(f"v_mul_f32 v{ua}, v{ua}, v{za}\nv_mul_f32 v{ub}, v{ub}, v{zb}")
        round2()
        a(f"v_fmac_f32_dpp v{V_Y1}, v{V_W2}, v{ua} row_newbcast:{i0} {DPPF}")
        a(f"v_fmac_f32_dpp v{V_T3}, v{V_W2}, v{ub} row_newbcast:{i1} {DPPF}")
    for base in (V_W1, V_B1, V_W2):
        for t in range(6):
            a(f"v_mov_b32 v{base+t}, v{base+t+1}")
    a(f"s_sub_u32 s{S_CNT}, s{S_CNT}, 1\ns_cmp_lg_u32 s{S_CNT}, 0\ns_cbranch_scc1 L_mlp")
    a(f"v_add_f32 v{V_Y1}, v{V_Y1}, v{V_T3}")
    cross_rows(a, "v_add_f32", V_Y1, V_T0)
    a(f"v_lshlrev_b32 v{V_T0}, 2, v{V_C}")
    a(f"s_lshl_b32 s{S_T0}, s{S_ROLE}, 6")
    a(f"v_add_u32 v{V_T0}, s{S_T0}, v{V_T0}")
    a("s_mov_b64 exec, 0xffff")
    a(f"ds_write_b32 v{V_T0}, v{V_Y1} offset:{L_YP}")
    a("s_mov_b64 exec, -1")
    if c.stamps:
        rstamp(a, V_ST, 12)

    V_OA, V_OB, V_PUB, V_IN, V_TW, V_TR = V_X0, V_H, V_X1, V_OFF, V_C1, V_C2
    for be, dst in ((0, V_OA), (1, V_OB)):
        rot_index(dst, be, c.roto)
        a(f"v_lshlrev_b32 v{dst}, 4, v{dst}\nv_lshl_add_u32 v{dst}, v{V_G}, 2, v{dst}")
    a(f"v_lshrrev_b32 v{V_PUB}, 3, v{V_LANE}\nv_lshlrev_b32 v{V_PUB}, 12, v{V_PUB}")
    a(f"v_and_b32 v{V_T0}, 7, v{V_LANE}\nv_lshlrev_b32 v{V_T0}, 4, v{V_T0}")
    a(f"s_lshl_b32 s{S_T0}, s{S_ROLE}, 15\ns_lshl_b32 s{S_T1}, s{S_H}, 7\ns_add_u32 s{S_T0}, s{S_T0}, s{S_T1}")
    a(f"v_add3_u32 v{V_PUB}, v{V_PUB}, v{V_T0}, s{S_T0}")
    a(f"s_lshl_b32 s{S_T0}, s{S_ROLE}, 9\ns_add_u32 s{S_T0}, s{S_T0}, {L_TR}")
    a(f"v_lshlrev_b32 v{V_TW}, 5, v{V_C}\nv_lshl_add_u32 v{V_TW}, v{V_G}, 4, v{V_TW}\nv_add_u32 v{V_TW}, s{S_T0}, v{V_TW}")
    a(f"v_lshlrev_b32 v{V_TR}, 3, v{V_LANE}\nv_add_u32 v{V_TR}, s{S_T0}, v{V_TR}")
    a(f"s_lshl_b32 s{S_T0}, s{S_B}, 17\ns_add_u32 s{S_T0}, s{S_T0}, {WS_F}")
    srd(a, SRD_D, P_WS, f"s{S_T0}", None, 0x20000)
    a(f"s_lshl_b32 s{S_T0}, s{S_H}, 12")
    a(f"v_lshlrev_b32 v{V_IN}, 4, v{V_LANE}\nv_add_u32 v{V_IN}, s{S_T0}, v{V_IN}")
    a(f"s_lshl_b32 s{S_T0}, s{S_B}, 10\ns_lshl_b32 s{S_T1}, s{S_H}, 5\ns_add_u32 s{S_T0}, s{S_T0}, s{S_T1}")
    srd(a, SRD_E, P_OUT, f"s{S_T0}", None, 64)
    for r in range(4):
        a(f"v_mov_b32 v{V_ACC+r}, 0")
    a(f"v_mov_b32 v{V_T3}, 0")
    a(f"v_mov_b32 v{G0+1}, v{V_TF}\nv_mov_b32 v{G0+3}, v{V_TF+1}")
    a("s_waitcnt vmcnt(0) lgkmcnt(0)")
    a("s_barrier")
    if c.stamps:
        rstamp(a, V_ST, 13)

    MV, LV, OV = E, E + 4, E + 8
    a(f"ds_read_b128 v[{MV}:{MV+3}], v{V_T3} offset:{L_ML}")
    a(f"ds_read_b128 v[{LV}:{LV+3}], v{V_T3} offset:{L_ML+16}")
    for w in range(4):
        for be in range(2):
            a(f"ds_read_b32 v{OV+2*w+be}, v{V_OB if be else V_OA} offset:{L_OP + 512*w}")
    a("s_waitcnt lgkmcnt(8)")
    a(f"v_max3_f32 v{V_T0}, v{MV}, v{MV+1}, v{MV+2}\nv_max_f32 v{V_T0}, v{V_T0}, v{MV+3}")
    for w in range(4):
        a(f"v_sub_f32 v{MV+w}, v{MV+w}, v{V_T0}")
    for w in range(4):
        a(f"v_mul_f32 v{MV+w}, s{S_LOG2E}, v{MV+w}")
    for w in range(4):
        a(f"v_exp_f32 v{MV+w}, v{MV+w}")
    a(f"v_mul_f32 v{V_T1}, v{MV}, v{LV}")
    for w in range(1, 4):
        a(f"v_fmac_f32 v{V_T1}, v{MV+w}, v{LV+w}")
    a(f"v_rcp_f32 v{V_T2}, v{V_T1}")
    a(f"v_fma_f32 v{V_T0}, -v{V_T1}, v{V_T2}, 1.0")
    a(f"v_fmac_f32 v{V_T2}, v{V_T0}, v{V_T2}")
    a("s_waitcnt lgkmcnt(0)")
    for be in range(2):
        a(f"v_mul_f32 v{LV+be}, v{MV}, v{OV+be}")
    for w in range(1, 4):
        for be in range(2):
            a(f"v_fmac_f32 v{LV+be}, v{MV+w}, v{OV+2*w+be}")
    for be in range(2):
        a(f"v_mul_f32 v{LV+be}, v{LV+be}, v{V_T2}")
    for be in range(2):
        a(f"v_cvt_pk_bf16_f32 v{LV+be}, v{LV+be}, v{LV+be}")
    srcs = (LV, LV + 1)
    build_a(V_A0, srcs[0], 0)
    for j in range(32):
        A, An = (V_A0, V_A1) if j % 2 == 0 else (V_A1, V_A0)
        if j < 31:
            build_a(An, srcs[(j + 1) >> 4], (j + 1) & 15)
        a(f"v_mfma_f32_16x16x32_bf16 v[{V_ACC}:{V_ACC+3}], v[{A}:{A+3}], v[{WB+4*j}:{WB+4*j+3}], v[{V_ACC}:{V_ACC+3}]")
    a("s_mov_b32 exec_lo, -1\ns_mov_b32 exec_hi, 0")
    a(f"ds_write_b128 v{V_TW}, v[{V_ACC}:{V_ACC+3}]")
    a("s_mov_b64 exec, -1")
    a(f"ds_read_b64 v[{E}:{E+1}], v{V_TR}")
    a("s_waitcnt lgkmcnt(0)")
    a(f"v_mov_b32 v{G0}, v{E}\nv_mov_b32 v{G0+2}, v{E+1}")
    a(f"buffer_store_dwordx4 v[{G0}:{G0+3}], v{V_PUB}, s[{SRD_D}:{SRD_D+3}], 0 offen {sc}")
    if c.stamps:
        rstamp(a, V_ST, 14)
        a(f"s_cmp_eq_u32 s{S_ROLE}, 0\ns_cbranch_scc1 L_consumer")
        dump_stamps(a, V_ST, WS_ST + 0x100000, V_T0)
        a("s_endpgm")
        a("L_consumer:")
    else:
        a(f"s_cmp_lg_u32 s{S_ROLE}, 0\ns_cbranch_scc1 L_done")

    YA = E + 24
    a(f"v_and_b32 v{V_T0}, 7, v{V_LANE}\nv_lshlrev_b32 v{V_T0}, 3, v{V_T0}")
    for w in range(4):
        a(f"ds_read_b64 v[{MV+2*w}:{MV+2*w+1}], v{V_T0} offset:{L_YP + 64*w}")
    a(f"v_lshlrev_b32 v{V_Y2}, 16, v{V_Y2}")
    a(f"v_sub_f32 v{V_T1}, 1.0, v{V_GATE}")
    rne_bf16(a, V_T1)
    a("s_waitcnt lgkmcnt(0)")
    for r in range(2):
        a(f"v_add_f32 v{MV+r}, v{MV+r}, v{MV+2+r}\nv_add_f32 v{MV+4+r}, v{MV+4+r}, v{MV+6+r}")
        a(f"v_add_f32 v{YA+r}, v{MV+r}, v{MV+4+r}")
        rne_bf16(a, YA + r)
        a(f"v_add_f32 v{YA+r}, v{YA+r}, v{V_Y2}")
        rne_bf16(a, YA + r)
        a(f"v_mul_f32 v{YA+r}, v{V_T1}, v{YA+r}")
        rne_bf16(a, YA + r)
    IN = E
    a(f"s_mov_b32 s{S_CNT}, {SPIN_LIMIT}")
    a("L_poll:")
    for t in range(4):
        a(f"buffer_load_dwordx4 v[{IN+4*t}:{IN+4*t+3}], v{V_IN}, s[{SRD_D}:{SRD_D+3}], 0 offen offset:{1024*t} {sc}")
    a(f"s_sub_u32 s{S_CNT}, s{S_CNT}, 1\ns_cbranch_scc1 L_poll_out")
    a("s_waitcnt vmcnt(0)")
    tags_bad((IN, IN + 4, IN + 8, IN + 12))
    if c.fsleep:
        a("s_cbranch_vccz L_poll_out")
        a(f"s_sleep {c.fsleep}")
        a("s_branch L_poll")
    else:
        a("s_cbranch_vccnz L_poll")
    a("L_poll_out:")
    for r in (0, 2):
        a(f"v_add_f32 v{IN+r}, v{IN+r}, v{IN+4+r}\nv_add_f32 v{IN+8+r}, v{IN+8+r}, v{IN+12+r}")
    for r in (0, 2):
        a(f"v_add_f32 v{IN+r}, v{IN+r}, v{IN+8+r}")
    for r in (0, 2):
        a(f"v_add_f32_dpp v{IN+r}, v{IN+r}, v{IN+r} row_ror:8 {DPPF}")
    for r in (0, 2):
        cross_rows(a, "v_add_f32", IN + r, V_T0)
    for k, r in enumerate((0, 2)):
        rne_bf16(a, IN + r)
        a(f"v_mul_f32 v{IN+r}, v{V_GATE}, v{IN+r}")
        rne_bf16(a, IN + r)
        a(f"v_add_f32 v{IN+r}, v{IN+r}, v{YA+k}")
    a(f"v_cvt_pk_bf16_f32 v{IN}, v{IN}, v{IN+2}")
    a(f"v_lshlrev_b32 v{V_T0}, 2, v{V_LANE}")
    a("s_mov_b64 exec, 0xff")
    a(f"buffer_store_dword v{IN}, v{V_T0}, s[{SRD_E}:{SRD_E+3}], 0 offen")
    a("s_mov_b64 exec, 1")
    a(f"s_lshl_b32 s{S_T0}, s{S_ID}, 7")
    a(f"v_mov_b32 v{V_T0}, s{S_T0}")
    a(f"buffer_store_dwordx2 v[{V_TS}:{V_TS+1}], v{V_T0}, s[{SRD_C}:{SRD_C+3}], 0 offen {sc}")
    if c.stamps:
        a("s_mov_b64 exec, -1")
        rstamp(a, V_ST, 15)
        dump_stamps(a, V_ST, WS_ST + 0x100000, V_T0)


if __name__ == "__main__":
    out = sys.argv[1]
    kw = {}
    for s in sys.argv[2:]:
        k, v = s.split("=")
        kw[k] = int(v) if v.lstrip("-").isdigit() else v.replace("_", " ") if k.endswith("flags") or k == "sc" else v
    open(out, "w").write(gen(**kw))
```

```python
import os, struct, sys
from asmlib import Asm

NAME = "gated_mix__mha_block_cached__mixer_token_mlp__decode_kernel"
HEAD = os.path.join(os.path.dirname(os.path.abspath(__file__)), "head.txt")
SPIN_LIMIT = 0x40000
DPPF = "row_mask:0xf bank_mask:0xf"

L_QP, L_OP, L_ML, L_YP = 0, 2048, 4096, 4352
L_CNT, L_TR, L_SC = 4608, 4864, 8192
L_PQ = L_SC
LDS_BYTES = 8192 + 16384
WS_E, WS_F, WS_Q = 0x0, 0x100000, 0x200000
WS_ST = 0x800000

S_WG, S_WAVE = 2, 3
P_X, P_K, P_V, P_WQ, P_WO, P_BX, P_W1, P_B1 = 8, 10, 12, 14, 16, 18, 20, 22
P_W2, P_B2, P_GW, P_OUT, P_DBG, P_WS = 24, 26, 28, 30, 32, 34
S_B, S_H, S_ROLE = 36, 37, 38
S_HI16, S_MI1, S_MI0 = 39, 40, 42
S_LOG2E, S_SCALE = 44, 45
S_T0, S_T1, S_T2, S_T3 = 46, 47, 48, 49
S_CNT, S_ID = 50, 51
SRD_A, SRD_B, SRD_C, SRD_D, SRD_E = 52, 56, 60, 64, 68
S_OFFA, S_OFFB = 72, 73
S_TS = 74
S_ST = 76
S_QC = 82


def f2u(x):
    return struct.unpack("<I", struct.pack("<f", x))[0]


def bitrev4(j):
    return ((j & 1) << 3) | ((j & 2) << 1) | ((j & 4) >> 1) | ((j & 8) >> 3)


class Cfg:
    D = 5
    D0 = 5
    DP = 5
    PF = 32
    DT = 5
    NT = 1
    kvflags = "nt"
    prio = 2
    wo_depth = 2
    wq_depth = 32
    wqflags = "nt"
    woflags = "nt"
    smflags = "nt"
    sc = "sc1"
    rot = 1
    roto = 0
    touchv = 1
    remap = 1
    qmode = "local"
    qsleep = 0
    fsleep = 0
    touch = 1
    stamps = 0
    auxoff = 0
    quick = 1
    dbgout = 0


def srd(a, reg, ptr, add_lo=None, add_hi=None, size=0):
    if add_lo is None:
        a(f"s_mov_b32 s{reg}, s{ptr}\ns_mov_b32 s{reg+1}, s{ptr+1}")
    else:
        a(f"s_add_u32 s{reg}, s{ptr}, {add_lo}")
        a(f"s_addc_u32 s{reg+1}, s{ptr+1}, {add_hi if add_hi is not None else 0}")
    a(f"s_mov_b32 s{reg+2}, {size}\ns_mov_b32 s{reg+3}, 0x20000")


def cross_rows(a, op, v, t):
    a(f"v_mov_b32 v{t}, v{v}")
    a(f"v_permlane16_swap_b32 v{v}, v{t}")
    a(f"{op} v{v}, v{v}, v{t}")
    a(f"v_mov_b32 v{t}, v{v}")
    a(f"v_permlane32_swap_b32 v{v}, v{t}")
    a(f"{op} v{v}, v{v}, v{t}")


def reduce64(a, op, v, t):
    for n in (8, 4, 2, 1):
        a(f"{op}_dpp v{v}, v{v}, v{v} row_ror:{n} {DPPF}")
    cross_rows(a, op, v, t)


def rne_bf16(a, v):
    a(f"v_cvt_pk_bf16_f32 v{v}, v{v}, v{v}")
    a(f"v_and_b32 v{v}, s{S_HI16}, v{v}")


def make_masks(a, vlane, m0, t0, t1):
    a(f"v_and_b32 v{t0}, 15, v{vlane}")
    a(f"v_and_b32 v{t1}, 1, v{t0}")
    a(f"v_lshlrev_b32 v{t1}, 4, v{t1}")
    a(f"v_mov_b32 v{m0}, 0xffff")
    a(f"v_lshlrev_b32 v{t1}, v{t1}, v{m0}")
    a(f"v_lshrrev_b32 v{t0}, 1, v{t0}")
    for r in range(4):
        a(f"v_cmp_eq_u32 vcc, {r}, v{t0}")
        a(f"v_cndmask_b32 v{m0+r}, 0, v{t1}, vcc")


def div(a, dst, num, den, t0, t1):
    a(f"v_rcp_f32 v{t0}, v{den}")
    a(f"v_mul_f32 v{t1}, v{num}, v{t0}")
    a(f"v_fma_f32 v{dst}, -v{den}, v{t1}, v{num}")
    a(f"v_fma_f32 v{dst}, v{dst}, v{t0}, v{t1}")


def rstamp(a, v, idx):
    a(f"s_memrealtime s[{S_ST}:{S_ST+1}]\ns_waitcnt lgkmcnt(0)")
    a(f"v_writelane_b32 v{v}, s{S_ST}, {idx}")


def dump_stamps(a, v, region, t):
    a(f"s_lshl_b32 s{S_ST+2}, s{S_ID}, 2\ns_add_u32 s{S_ST+2}, s{S_ST+2}, s{S_ROLE}\ns_lshl_b32 s{S_ST+2}, s{S_ST+2}, 8")
    a(f"s_add_u32 s{S_ST+2}, s{S_ST+2}, {region}")
    a(f"v_lshlrev_b32 v{t}, 2, v0\nv_add_u32 v{t}, s{S_ST+2}, v{t}")
    a(f"global_store_dword v{t}, v{v}, s[{P_WS}:{P_WS+1}]")


class VM:
    def __init__(self, a):
        self.a, self.issued, self.done = a, 0, 0

    def op(self, text):
        self.a(text)
        self.issued += 1
        return self.issued - 1

    def wait(self, k):
        if self.done <= k:
            self.a(f"s_waitcnt vmcnt({min(63, self.issued - k - 1)})")
            self.done = max(self.done, k + 1 if self.issued - k - 1 <= 63 else self.issued - 63)

    def gate(self, depth):
        k = self.issued - depth
        if k >= 0:
            self.wait(k)


def gen(**kw):
    c = Cfg()
    for k, v in kw.items():
        assert hasattr(c, k), k
        setattr(c, k, v)
    a = Asm()
    a(f".amdgcn_target \"amdgcn-amd-amdhsa--gfx950\"\n.text\n.globl {NAME}\n.p2align 8\n.type {NAME},@function\n{NAME}:")
    a(f"s_cmp_ge_u32 s{S_WG}, 256\ns_cbranch_scc1 L_done")
    a("s_load_dwordx16 s[8:23], s[0:1], 0")
    a("s_load_dwordx8 s[24:31], s[0:1], 64")
    a("s_load_dwordx4 s[32:35], s[0:1], 96")
    if c.stamps:
        a(f"s_memrealtime s[{S_ST+4}:{S_ST+5}]")
    a("v_lshrrev_b32 v1, 6, v0")
    a("v_and_b32 v0, 63, v0")
    a(f"v_readfirstlane_b32 s{S_WAVE}, v1")
    if c.remap:
        a(f"s_lshr_b32 s{S_B}, s{S_WG}, 3\ns_and_b32 s{S_B}, s{S_B}, 7")
        a(f"s_lshr_b32 s{S_H}, s{S_WG}, 6\ns_lshl_b32 s{S_H}, s{S_H}, 3\ns_and_b32 s{S_T0}, s{S_WG}, 7\ns_or_b32 s{S_H}, s{S_H}, s{S_T0}")
    else:
        a(f"s_lshr_b32 s{S_B}, s{S_WG}, 5\ns_and_b32 s{S_H}, s{S_WG}, 31")
    a(f"s_lshl_b32 s{S_ID}, s{S_B}, 5\ns_or_b32 s{S_ID}, s{S_ID}, s{S_H}")
    a(f"s_and_b32 s{S_ROLE}, s{S_WAVE}, 3")
    a(f"s_mov_b32 s{S_HI16}, 0xffff0000")
    a(f"s_mov_b32 s{S_LOG2E}, {f2u(1.4426950408889634):#x}")
    a(f"s_cmp_ge_u32 s{S_WAVE}, 4\ns_cbranch_scc1 L_aux")
    streamer(a, c)
    a("L_aux:")
    aux(a, c)
    a("L_done:\ns_endpgm")
    body = a.finish()
    head = open(HEAD).read()
    tail = f""".section .rodata,"a"
.p2align 6
.amdhsa_kernel {NAME}
  .amdhsa_next_free_vgpr 256
  .amdhsa_next_free_sgpr 96
  .amdhsa_accum_offset 256
  .amdhsa_group_segment_fixed_size 0
  .amdhsa_kernarg_size 112
  .amdhsa_user_sgpr_count 2
  .amdhsa_user_sgpr_kernarg_segment_ptr 1
  .amdhsa_system_sgpr_workgroup_id_x 1
  .amdhsa_float_denorm_mode_32 3
.end_amdhsa_kernel
"""
    return head + f"; @launch grid=(256,1,1) block=(512,1,1) lds={LDS_BYTES}\n" + body + tail


def streamer(a, c):
    V_LANE, V_OFF, V_SCA = 0, 1, 2
    V_Q, V_MASK, V_A0, V_A1, V_ACC = 4, 8, 12, 16, 20
    V_P, V_T, V_U, V_X, V_S = 24, 26, 28, 30, 32
    V_T0, V_T1, V_M, V_L, V_P2, V_SN, V_P2N, V_ST = 33, 34, 35, 36, 37, 38, 39, 41
    V_TMP = 44
    R = 16
    PF, D = c.PF, c.D
    assert 16 <= PF <= 48 and max(D, c.DT, c.DP) < R
    PFB = 256 - 4 * PF
    assert PFB >= 60

    def dreg(n):
        return PFB + 4 * (n if n < PF else (n - PF) % R)

    if c.prio:
        a(f"s_setprio {c.prio}")
    a(f"v_lshlrev_b32 v{V_OFF}, 4, v{V_LANE}")
    a(f"s_lshl_b32 s{S_T0}, s{S_ROLE}, 12")
    a(f"v_add_u32 v{V_OFF}, s{S_T0}, v{V_OFF}")
    a(f"s_lshl_b32 s{S_T0}, s{S_ID}, 20\ns_lshr_b32 s{S_T1}, s{S_ID}, 12")
    a(f"s_mov_b32 s{S_OFFA}, 0\ns_mov_b32 s{S_OFFB}, 0")
    a("s_waitcnt lgkmcnt(0)")
    srd(a, SRD_A, P_K, f"s{S_T0}", f"s{S_T1}", 0x100000)
    srd(a, SRD_B, P_V, f"s{S_T0}", f"s{S_T1}", 0x100000)
    vm = VM(a)

    def load_text(n):
        r = dreg(n)
        s, so = (SRD_A, S_OFFA) if n < 256 else (SRD_B, S_OFFB)
        t = f"buffer_load_dwordx4 v[{r}:{r+3}], v{V_OFF}, s[{s}:{s+3}], s{so} offen offset:{(n & 3) * 1024} {c.kvflags}"
        if n & 3 == 3:
            t += f"\ns_add_u32 s{so}, s{so}, 16384"
        return t

    def issue():
        vm.op(load_text(vm.issued))

    if c.stamps:
        a(f"v_mov_b32 v{V_ST}, 0")
        a(f"v_writelane_b32 v{V_ST}, s{S_ST+4}, 43")
        a(f"s_getreg_b32 s{S_ST+2}, hwreg(HW_REG_XCC_ID)\nv_writelane_b32 v{V_ST}, s{S_ST+2}, 44")
        rstamp(a, V_ST, 32)
    marks = sorted(set((c.D0, 8, 12, 16, 24, PF - 1)))
    for n in range(PF):
        if n == c.D0 and c.qmode == "coop":
            a("s_barrier")
        if n >= c.D0:
            vm.gate(c.DP)
            if c.stamps and n in marks:
                rstamp(a, V_ST, 33 + marks.index(n))
        issue()
    a(f"s_mov_b32 s{S_MI1}, 0xcccccccc\ns_mov_b32 s{S_MI1+1}, 0xcccccccc")
    a(f"s_mov_b32 s{S_MI0}, 0xaaaaaaaa\ns_mov_b32 s{S_MI0+1}, 0xaaaaaaaa")
    a(f"s_mov_b32 s{S_SCALE}, {f2u(128 ** -0.5):#x}")
    make_masks(a, V_LANE, V_MASK, V_T0, V_T1)
    a(f"v_lshlrev_b32 v{V_SCA}, 2, v{V_LANE}")
    a(f"s_lshl_b32 s{S_T0}, s{S_ROLE}, 12\ns_add_u32 s{S_T0}, s{S_T0}, {L_SC}")
    a(f"v_add_u32 v{V_SCA}, s{S_T0}, v{V_SCA}")
    a(f"v_mov_b32 v{V_M}, 0xff800000")
    a(f"v_mov_b32 v{V_L}, 0")
    for r in range(4):
        a(f"v_mov_b32 v{V_ACC+r}, 0")
    a(f"v_and_b32 v{V_T0}, 15, v{V_LANE}\nv_lshlrev_b32 v{V_T0}, 5, v{V_T0}")
    a("s_barrier")
    for rnd in range(2):
        for w in range(2):
            ww = 2 * rnd + w
            a(f"ds_read_b128 v[{V_TMP+8*w}:{V_TMP+8*w+3}], v{V_T0} offset:{L_QP + 512*ww}")
            a(f"ds_read_b128 v[{V_TMP+8*w+4}:{V_TMP+8*w+7}], v{V_T0} offset:{L_QP + 512*ww + 16}")
        a("s_waitcnt lgkmcnt(0)")
        for e in range(8):
            a(f"v_add_f32 v{V_TMP+e}, v{V_TMP+e}, v{V_TMP+8+e}")
        if rnd == 0:
            for e in range(8):
                a(f"v_mov_b32 v{V_P+e}, v{V_TMP+e}")
    for e in range(8):
        a(f"v_add_f32 v{V_TMP+e}, v{V_P+e}, v{V_TMP+e}")
    for r in range(4):
        a(f"v_cvt_pk_bf16_f32 v{V_Q+r}, v{V_TMP+2*r}, v{V_TMP+2*r+1}")
    if c.stamps:
        rstamp(a, V_ST, 40)
        a(f"s_mov_b32 s{S_ST+3}, 0")

    def gstamp():
        if c.stamps:
            a(f"s_memrealtime s[{S_ST}:{S_ST+1}]\ns_waitcnt lgkmcnt(0)")
            a(f"s_mov_b32 m0, s{S_ST+3}")
            a(f"v_writelane_b32 v{V_ST}, s{S_ST}, m0")
            a(f"s_add_u32 s{S_ST+3}, s{S_ST+3}, 1")

    def k_reduce(j):
        if j & 1:
            t = V_T + ((j >> 1) & 1)
            a(f"v_add_f32_dpp v{t}, v{V_P}, v{V_P} row_ror:8 row_mask:0xf bank_mask:0x3")
            a(f"v_add_f32_dpp v{t}, v{V_P+1}, v{V_P+1} row_ror:8 row_mask:0xf bank_mask:0xc")
        if j & 3 == 3:
            u = V_U + ((j >> 2) & 1)
            a(f"v_add_f32_dpp v{u}, v{V_T}, v{V_T} row_ror:12 row_mask:0xf bank_mask:0x5")
            a(f"v_add_f32_dpp v{u}, v{V_T+1}, v{V_T+1} row_ror:4 row_mask:0xf bank_mask:0xa")
        if j & 7 == 7:
            x = V_X + ((j >> 3) & 1)
            a(f"v_cndmask_b32 v{V_T0}, v{V_U}, v{V_U+1}, s[{S_MI1}:{S_MI1+1}]")
            a(f"v_cndmask_b32 v{V_T1}, v{V_U+1}, v{V_U}, s[{S_MI1}:{S_MI1+1}]")
            a(f"v_add_f32_dpp v{x}, v{V_T1}, v{V_T0} quad_perm:[2,3,0,1] {DPPF}")
        if j == 15:
            a(f"v_cndmask_b32 v{V_T0}, v{V_X}, v{V_X+1}, s[{S_MI0}:{S_MI0+1}]")
            a(f"v_cndmask_b32 v{V_T1}, v{V_X+1}, v{V_X}, s[{S_MI0}:{S_MI0+1}]")
            a(f"v_add_f32_dpp v{V_S}, v{V_T1}, v{V_T0} quad_perm:[1,0,3,2] {DPPF}")
            rne_bf16(a, V_S)
            a(f"v_mul_f32 v{V_S}, s{S_SCALE}, v{V_S}")
            rne_bf16(a, V_S)
            a(f"v_max_f32 v{V_M}, v{V_M}, v{V_S}")
            a(f"ds_write_b32 v{V_SCA}, v{V_S}")
            a(f"v_add_u32 v{V_SCA}, 0x100, v{V_SCA}")

    def k_step(n, j):
        r = dreg(n)
        p = V_P + (j & 1)
        a(f"v_dot2_f32_bf16 v{p}, v{r}, v{V_Q}, 0")
        for e in range(1, 4):
            a(f"v_dot2_f32_bf16 v{p}, v{r+e}, v{V_Q+e}, v{p}")
        k_reduce(j)

    def static_feed(n, depth):
        vm.wait(n)
        while vm.issued < min(512, n + depth + 1):
            issue()

    g0 = (PF + 15) // 16
    for n in range(16 * g0):
        target = max(PF + min(n, D), n + D) if n < PF else n + D + 1
        if n >= PF:
            vm.wait(n)
        while vm.issued < target:
            if n < PF:
                vm.gate(D)
            issue()
        vm.wait(n)
        k_step(n, n & 15)
        if n & 15 == 15:
            gstamp()
    assert vm.issued == 16 * g0 + D, vm.issued
    a(f"s_mov_b32 s{S_CNT}, {15 - g0}")
    a("L_kloop:")
    for j in range(16):
        n = 16 * g0 + j
        a(f"s_waitcnt vmcnt({D-1})")
        a(load_text(n + D))
        k_step(n, j)
    gstamp()
    a(f"s_sub_u32 s{S_CNT}, s{S_CNT}, 1\ns_cmp_lg_u32 s{S_CNT}, 0\ns_cbranch_scc1 L_kloop")
    vm.issued, vm.done = 240 + D, 240
    for n in range(240, 256):
        static_feed(n, D)
        k_step(n, n & 15)
    gstamp()
    if c.stamps:
        rstamp(a, V_ST, 41)
    reduce64(a, "v_max_f32", V_M, V_T0)
    a(f"v_add_u32 v{V_SCA}, {-16*256 & 0xffffffff:#x}, v{V_SCA}")
    a("s_waitcnt lgkmcnt(0)")
    a(f"ds_read_b32 v{V_SN}, v{V_SCA}")

    def probs(dst):
        a("s_waitcnt lgkmcnt(0)")
        a(f"v_sub_f32 v{V_T0}, v{V_SN}, v{V_M}")
        a(f"v_mul_f32 v{V_T0}, s{S_LOG2E}, v{V_T0}")
        a(f"v_exp_f32 v{V_T0}, v{V_T0}")
        a(f"v_add_f32 v{V_L}, v{V_L}, v{V_T0}")
        a(f"v_cvt_pk_bf16_f32 v{dst}, v{V_T0}, v{V_T0}")

    def build_a(dst, src, j):
        for r in range(4):
            a(f"v_and_b32_dpp v{dst+r}, v{src}, v{V_MASK+r} row_newbcast:{bitrev4(j)} {DPPF}")

    probs(V_P2)
    build_a(V_A0, V_P2, 0)

    def v_step(n, j, last):
        r = dreg(n)
        A, An = (V_A0, V_A1) if j % 2 == 0 else (V_A1, V_A0)
        a(f"v_mfma_f32_16x16x32_bf16 v[{V_ACC}:{V_ACC+3}], v[{A}:{A+3}], v[{r}:{r+3}], v[{V_ACC}:{V_ACC+3}]")
        if j < 15:
            build_a(An, V_P2, j + 1)
        elif not last:
            build_a(An, V_P2N, 0)
            a(f"v_mov_b32 v{V_P2}, v{V_P2N}")
        if not last:
            if j == 1:
                a(f"v_add_u32 v{V_SCA}, 0x100, v{V_SCA}")
                a(f"ds_read_b32 v{V_SN}, v{V_SCA}")
            if j == 6:
                probs(V_P2N)
        elif j == 1:
            reduce64(a, "v_add_f32", V_L, V_T0)

    NT = c.NT
    assert 1 <= NT <= 15 and vm.issued == 256 + D
    a(f"s_mov_b32 s{S_CNT}, {16 - NT}")
    a("L_vloop:")
    for j in range(16):
        n = 256 + j
        a(f"s_waitcnt vmcnt({D-1})")
        a(load_text(n + D))
        v_step(n, j, False)
    gstamp()
    a(f"s_sub_u32 s{S_CNT}, s{S_CNT}, 1\ns_cmp_lg_u32 s{S_CNT}, 0\ns_cbranch_scc1 L_vloop")
    n0 = 512 - 16 * NT
    vm.issued, vm.done = n0 + D, n0
    for n in range(n0, 512):
        static_feed(n, c.DT)
        v_step(n, n & 15, n >= 496)
        if n & 15 == 15:
            gstamp()
    if c.stamps:
        rstamp(a, V_ST, 42)
    a(f"v_and_b32 v{V_T0}, 15, v{V_LANE}\nv_lshlrev_b32 v{V_T0}, 5, v{V_T0}")
    a(f"v_lshrrev_b32 v{V_T1}, 4, v{V_LANE}\nv_lshlrev_b32 v{V_T1}, 4, v{V_T1}")
    a(f"s_lshl_b32 s{S_T0}, s{S_ROLE}, 9")
    a(f"v_add3_u32 v{V_T0}, v{V_T0}, v{V_T1}, s{S_T0}")
    a(f"s_lshl_b32 s{S_T0}, s{S_ROLE}, 2")
    a(f"v_mov_b32 v{V_T1}, s{S_T0}")
    a("s_mov_b64 exec, 1")
    a(f"ds_write_b32 v{V_T1}, v{V_M} offset:{L_ML}")
    a(f"ds_write_b32 v{V_T1}, v{V_L} offset:{L_ML+16}")
    a("s_mov_b32 exec_lo, -1\ns_mov_b32 exec_hi, 0")
    a(f"ds_write_b128 v{V_T0}, v[{V_ACC}:{V_ACC+3}] offset:{L_OP}")
    a("s_waitcnt lgkmcnt(0)\ns_barrier")
    if c.stamps:
        a("s_mov_b64 exec, -1")
        dump_stamps(a, V_ST, WS_ST, V_T0)
    a("s_endpgm")


def aux(a, c):
    V_LANE, V_G, V_C = 0, 1, 2
    V_MASK, V_A0, V_A1, V_ACC = 4, 8, 12, 16
    V_X0, V_X1, V_T0, V_T1, V_T2, V_T3 = 20, 21, 22, 23, 24, 25
    V_OFF, V_H, V_GATE, V_Y1, V_Y2, V_C1, V_C2 = 26, 27, 28, 29, 30, 31, 32
    V_ST, V_JUNK = 33, 3
    V_TQ, V_TQ2, V_TF, V_TS = 34, 102, 58, 100
    V_W1, V_B1, V_W2 = 36, 43, 50
    E = V_E = 60
    G0 = E + 16
    V_QA = 160
    WB = 128
    sc = c.sc
    coop = c.qmode == "coop"
    vm = VM(a)

    def build_a(dst, src, i):
        for r in range(4):
            a(f"v_and_b32_dpp v{dst+r}, v{src}, v{V_MASK+r} row_newbcast:{i} {DPPF}")

    def granule(dst, v0, v1, tag):
        a(f"v_mov_b32 v{dst}, v{v0}\nv_mov_b32 v{dst+1}, v{tag}\nv_mov_b32 v{dst+2}, v{v1}\nv_mov_b32 v{dst+3}, v{tag+1}")

    def tags_bad(regs):
        a(f"v_cmp_ne_u32 vcc, s{S_TS}, v{regs[0]+1}")
        for k, g in enumerate(regs):
            if k:
                a(f"v_cmp_ne_u32 s[{S_T2}:{S_T2+1}], s{S_TS}, v{g+1}")
                a(f"s_or_b64 vcc, vcc, s[{S_T2}:{S_T2+1}]")
            a(f"v_cmp_ne_u32 s[{S_T2}:{S_T2+1}], s{S_TS+1}, v{g+3}")
            a(f"s_or_b64 vcc, vcc, s[{S_T2}:{S_T2+1}]")

    def rot_index(dst, be, on):
        if on:
            a(f"s_lshl_b32 s{S_T2}, s{S_B}, 2")
            a(f"v_add_u32 v{dst}, s{S_T2}, v{V_C}")
        else:
            a(f"v_mov_b32 v{dst}, v{V_C}")
        if be:
            a(f"v_add_u32 v{dst}, 16, v{dst}")
        a(f"v_and_b32 v{dst}, 31, v{dst}")

    a(f"v_lshrrev_b32 v{V_G}, 4, v{V_LANE}\nv_and_b32 v{V_C}, 15, v{V_LANE}")
    a(f"v_lshlrev_b32 v{V_OFF}, 13, v{V_G}\nv_lshl_add_u32 v{V_OFF}, v{V_C}, 4, v{V_OFF}")
    if coop:
        a(f"v_lshrrev_b32 v{V_T0}, 2, v{V_C}\nv_lshlrev_b32 v{V_T0}, 10, v{V_T0}")
        a(f"v_and_b32 v{V_T1}, 3, v{V_C}\nv_lshlrev_b32 v{V_T1}, 3, v{V_T1}")
        a(f"v_lshl_add_u32 v{V_T1}, v{V_G}, 1, v{V_T1}")
        a(f"s_lshl_b32 s{S_T0}, s{S_B}, 7\ns_lshl_b32 s{S_T1}, s{S_ROLE}, 5\ns_add_u32 s{S_T0}, s{S_T0}, s{S_T1}")
        a(f"v_add3_u32 v{V_T0}, v{V_T0}, v{V_T1}, s{S_T0}")
        a(f"v_add_u32 v{V_T3}, 0x1000, v{V_T0}")
        a(f"s_lshl_b32 s{S_OFFA}, s{S_B}, 19\ns_lshl_b32 s{S_T1}, s{S_ROLE}, 17\ns_add_u32 s{S_OFFA}, s{S_OFFA}, s{S_T1}")
    else:
        a(f"s_lshl_b32 s{S_T0}, s{S_B}, 10\ns_lshl_b32 s{S_T1}, s{S_ROLE}, 8\ns_add_u32 s{S_T0}, s{S_T0}, s{S_T1}")
        for be, dst in ((0, V_T0), (1, V_T3)):
            rot_index(dst, be, c.rot)
            a(f"v_lshlrev_b32 v{dst}, 3, v{dst}\nv_lshl_add_u32 v{dst}, v{V_G}, 1, v{dst}")
            a(f"v_add_u32 v{dst}, s{S_T0}, v{dst}")
        a(f"s_lshl_b32 s{S_OFFA}, s{S_ROLE}, 20")
        a(f"s_lshl_b32 s{S_OFFB}, s{S_B}, 17" if c.rot else f"s_mov_b32 s{S_OFFB}, 0")
    a(f"v_lshrrev_b32 v{V_T2}, 3, v{V_LANE}")
    a(f"s_lshl_b32 s{S_T1}, s{S_B}, 5\ns_lshl_b32 s{S_T2}, s{S_ROLE}, 3\ns_add_u32 s{S_T1}, s{S_T1}, s{S_T2}")
    a(f"v_add_u32 v{V_T2}, s{S_T1}, v{V_T2}\nv_lshlrev_b32 v{V_T2}, 7, v{V_T2}")
    a(f"s_lshl_b32 s{S_T1}, s{S_ID}, 7")
    a(f"v_mov_b32 v{V_Y1}, s{S_T1}")
    if coop:
        a(f"s_lshl_b32 s{S_T1}, s{S_ROLE}, 6\ns_add_u32 s{S_T1}, s{S_T1}, s{S_H}")
        a(f"s_lshl_b32 s{S_QC}, s{S_T1}, 13")
        a(f"s_lshl_b32 s{S_T1}, s{S_T1}, 7")
        a(f"v_mov_b32 v{V_T1}, s{S_T1}")
    a(f"s_lshl_b32 s{S_T1}, s{S_H}, 8")
    a(f"s_sub_u32 s{S_T2}, 0x400000, s{S_T1}")
    a("s_waitcnt lgkmcnt(0)")
    if c.stamps:
        a(f"v_mov_b32 v{V_ST}, 0")
        a(f"v_writelane_b32 v{V_ST}, s{S_ST+4}, 16")
        rstamp(a, V_ST, 0)
    srd(a, SRD_B, P_WQ, f"s{S_T1}", None, f"s{S_T2}")
    srd(a, SRD_A, P_X, None, None, 8192 + 64)
    NW = 4 if coop else 32

    def wq_load(j):
        if coop:
            k = vm.op(f"buffer_load_dwordx4 v[{WB+4*j}:{WB+4*j+3}], v{V_OFF}, s[{SRD_B}:{SRD_B+3}], s{S_OFFA} offen {c.wqflags}")
            if j < NW - 1:
                a(f"s_add_u32 s{S_OFFA}, s{S_OFFA}, 32768")
        else:
            a(f"s_add_u32 s{S_T3}, s{S_OFFA}, s{S_OFFB}")
            k = vm.op(f"buffer_load_dwordx4 v[{WB+4*j}:{WB+4*j+3}], v{V_OFF}, s[{SRD_B}:{SRD_B+3}], s{S_T3} offen {c.wqflags}")
            if j < NW - 1:
                a(f"s_add_u32 s{S_OFFB}, s{S_OFFB}, 32768\ns_and_b32 s{S_OFFB}, s{S_OFFB}, 0xfffff")
        return k

    XS = (V_X0, V_X1)
    vm.op(f"buffer_load_ushort v{V_X0}, v{V_T0}, s[{SRD_A}:{SRD_A+3}], 0 offen {c.smflags}")
    kx = vm.op(f"buffer_load_ushort v{V_X1}, v{V_T3}, s[{SRD_A}:{SRD_A+3}], 0 offen {c.smflags}")
    wq_k = {}
    first = min(NW, c.wq_depth)
    head = min(first, 4)
    for j in range(head):
        wq_k[j] = wq_load(j)
    srd(a, SRD_C, P_WS, None, None, 0x8000)
    vm.op(f"buffer_load_dwordx2 v[{V_TF}:{V_TF+1}], v{V_T2}, s[{SRD_C}:{SRD_C+3}], 0 offen {c.smflags}")
    ke = vm.op(f"buffer_load_dwordx2 v[{V_TS}:{V_TS+1}], v{V_Y1}, s[{SRD_C}:{SRD_C+3}], 0 offen {c.smflags}")
    if coop:
        vm.op(f"buffer_load_dwordx2 v[{V_TQ}:{V_TQ+1}], v{V_T1}, s[{SRD_C}:{SRD_C+3}], 0 offen {c.smflags}")
        a(f"v_add_u32 v{V_T1}, 0x1000, v{V_T1}")
        ke = vm.op(f"buffer_load_dwordx2 v[{V_TQ2}:{V_TQ2+1}], v{V_T1}, s[{SRD_C}:{SRD_C+3}], 0 offen {c.smflags}")
    if c.touch:
        a(f"v_mov_b32 v{V_JUNK}, 0")
        a(f"v_mov_b32 v{V_T1}, 0")
        for p in (P_GW, P_W1, P_B1, P_W2, P_B2, P_WO, P_OUT):
            vm.op(f"global_load_ushort v{V_JUNK}, v{V_T1}, s[{p}:{p+1}] {c.smflags}")
        a(f"v_mov_b32 v{V_T1}, {WS_F}")
        vm.op(f"global_load_dword v{V_JUNK}, v{V_T1}, s[{P_WS}:{P_WS+1}] {c.smflags}")
        if c.touchv:
            a(f"s_lshl_b32 s{S_T0}, s{S_ID}, 20\ns_lshr_b32 s{S_T1}, s{S_ID}, 12")
            srd(a, SRD_E, P_V, f"s{S_T0}", f"s{S_T1}", 0x100000)
            a(f"v_mov_b32 v{V_T1}, 0")
            vm.op(f"buffer_load_dword v{V_JUNK}, v{V_T1}, s[{SRD_E}:{SRD_E+3}], 0 offen nt")
        if coop:
            a(f"v_mov_b32 v{V_T1}, {WS_Q}")
            vm.op(f"global_load_dword v{V_JUNK}, v{V_T1}, s[{P_WS}:{P_WS+1}] {c.smflags}")
    for j in range(head, first):
        wq_k[j] = wq_load(j)
    if c.stamps:
        rstamp(a, V_ST, 1)
    make_masks(a, V_LANE, V_MASK, V_T1, V_T2)

    if coop:
        a(f"v_mov_b32 v{V_T2}, 0\nv_mov_b32 v{V_T3}, {L_CNT}")
        a(f"ds_write_b32 v{V_T3}, v{V_T2}")
        for r in range(32):
            a(f"v_mov_b32 v{V_QA+r}, 0")
        a("s_waitcnt lgkmcnt(0)\ns_barrier")
        vm.wait(max(kx, wq_k[3]))
        if c.stamps:
            rstamp(a, V_ST, 2)
        for x in XS:
            a(f"v_lshl_or_b32 v{x}, v{x}, 16, v{x}")
        seq = [(j, bb) for j in range(4) for bb in range(8)]
        build_a(V_A0, XS[0], 0)
        for k, (j, bb) in enumerate(seq):
            A, An = (V_A0, V_A1) if k % 2 == 0 else (V_A1, V_A0)
            if k + 1 < len(seq):
                jn, bn = seq[k + 1]
                build_a(An, XS[bn >> 2], 4 * (bn & 3) + jn)
            acc = V_QA + 4 * bb
            a(f"v_mfma_f32_16x16x32_bf16 v[{acc}:{acc+3}], v[{A}:{A+3}], v[{WB+4*j}:{WB+4*j+3}], v[{acc}:{acc+3}]")
        if c.stamps:
            rstamp(a, V_ST, 3)
        a(f"v_lshlrev_b32 v{V_T0}, 5, v{V_C}\nv_lshl_add_u32 v{V_T0}, v{V_G}, 4, v{V_T0}")
        a(f"s_lshl_b32 s{S_T0}, s{S_ROLE}, 12")
        a(f"v_add_u32 v{V_T0}, s{S_T0}, v{V_T0}")
        a("s_mov_b32 exec_lo, -1\ns_mov_b32 exec_hi, 0")
        for bb in range(8):
            a(f"ds_write_b128 v{V_T0}, v[{V_QA+4*bb}:{V_QA+4*bb+3}] offset:{L_PQ + 512*bb}")
        a("s_mov_b64 exec, 1")
        a(f"v_mov_b32 v{V_T2}, 1")
        a(f"ds_add_u32 v{V_T3}, v{V_T2}")
        a("s_mov_b64 exec, -1")
        a(f"s_lshl_b32 s{S_T0}, s{S_B}, 10\ns_add_u32 s{S_QC}, s{S_QC}, s{S_T0}")
        a(f"v_lshlrev_b32 v{V_X1}, 4, v{V_LANE}\nv_add_u32 v{V_X1}, s{S_QC}, v{V_X1}")
        a(f"v_lshlrev_b32 v{V_T0}, 3, v{V_LANE}")
        a(f"s_lshl_b32 s{S_T0}, s{S_ROLE}, 10")
        a(f"v_add_u32 v{V_T0}, s{S_T0}, v{V_T0}")
        vm.wait(ke)
        for t in (V_TQ, V_TQ2, V_TF, V_TS):
            a(f"v_add_u32 v{t}, 1, v{t}\nv_add_u32 v{t+1}, 1, v{t+1}")
        a(f"s_mov_b32 s{S_T0}, {WS_Q}")
        srd(a, SRD_D, P_WS, f"s{S_T0}", None, 0x200000)
        a(f"s_mov_b32 s{S_CNT}, {SPIN_LIMIT}")
        a("L_qsync:")
        a(f"ds_read_b32 v{V_T2}, v{V_T3}")
        a(f"s_sub_u32 s{S_CNT}, s{S_CNT}, 1\ns_cbranch_scc1 L_qsync_out")
        a("s_waitcnt lgkmcnt(0)")
        a(f"v_readfirstlane_b32 s{S_T1}, v{V_T2}")
        a(f"s_cmp_lt_u32 s{S_T1}, 4\ns_cbranch_scc1 L_qsync")
        a("L_qsync_out:")
        for be in range(2):
            for w in range(4):
                a(f"ds_read_b64 v[{E+8*be+2*w}:{E+8*be+2*w+1}], v{V_T0} offset:{L_PQ + 4096*w + 512*be}")
        a(f"v_readfirstlane_b32 s{S_TS}, v{V_TS}\nv_readfirstlane_b32 s{S_TS+1}, v{V_TS+1}")
        a("s_waitcnt lgkmcnt(0)")
        for be in range(2):
            B = E + 8 * be
            for r in range(2):
                a(f"v_add_f32 v{B+r}, v{B+r}, v{B+2+r}\nv_add_f32 v{B+4+r}, v{B+4+r}, v{B+6+r}")
            for r in range(2):
                a(f"v_add_f32 v{B+r}, v{B+r}, v{B+4+r}")
            granule(G0 + 4 * be, B, B + 1, V_TQ2 if be else V_TQ)
        a(f"buffer_store_dwordx4 v[{G0}:{G0+3}], v{V_X1}, s[{SRD_D}:{SRD_D+3}], 0 offen {sc}")
        a(f"s_mov_b32 s{S_T0}, 0x40000")
        a(f"buffer_store_dwordx4 v[{G0+4}:{G0+7}], v{V_X1}, s[{SRD_D}:{SRD_D+3}], s{S_T0} offen {sc}")
        if c.stamps:
            rstamp(a, V_ST, 4)
        a(f"s_lshl_b32 s{S_T0}, s{S_ID}, 13\ns_lshl_b32 s{S_T1}, s{S_ROLE}, 11\ns_add_u32 s{S_T0}, s{S_T0}, s{S_T1}")
        a(f"v_lshlrev_b32 v{V_T0}, 4, v{V_LANE}\nv_add_u32 v{V_T0}, s{S_T0}, v{V_T0}")
        a(f"s_mov_b32 s{S_CNT}, {SPIN_LIMIT}")
        a("L_qpoll:")
        a(f"buffer_load_dwordx4 v[{E}:{E+3}], v{V_T0}, s[{SRD_D}:{SRD_D+3}], 0 offen {sc}")
        a(f"buffer_load_dwordx4 v[{E+4}:{E+7}], v{V_T0}, s[{SRD_D}:{SRD_D+3}], 0 offen offset:1024 {sc}")
        a(f"s_sub_u32 s{S_CNT}, s{S_CNT}, 1\ns_cbranch_scc1 L_qpoll_out")
        a("s_waitcnt vmcnt(0)")
        tags_bad((E, E + 4))
        if c.qsleep:
            a("s_cbranch_vccz L_qpoll_out")
            a(f"s_sleep {c.qsleep}")
            a("s_branch L_qpoll")
        else:
            a("s_cbranch_vccnz L_qpoll")
        a("L_qpoll_out:")
        if c.stamps:
            rstamp(a, V_ST, 7)
        a(f"v_add_f32 v{E}, v{E}, v{E+4}\nv_add_f32 v{E+1}, v{E+2}, v{E+6}")
        a(f"v_lshlrev_b32 v{V_T0}, 3, v{V_LANE}")
        a(f"s_lshl_b32 s{S_T0}, s{S_ROLE}, 9")
        a(f"v_add_u32 v{V_T0}, s{S_T0}, v{V_T0}")
        a(f"ds_write_b64 v{V_T0}, v[{E}:{E+1}] offset:{L_QP}")
        a("s_waitcnt lgkmcnt(0)\ns_barrier")
        vm.done = vm.issued
    else:
        for r in range(4):
            a(f"v_mov_b32 v{V_ACC+r}, 0")
        vm.wait(kx)
        if c.stamps:
            rstamp(a, V_ST, 2)
        for x in XS:
            a(f"v_lshl_or_b32 v{x}, v{x}, 16, v{x}")
        build_a(V_A0, XS[0], 0)
        nxt = first
        for j in range(32):
            A, An = (V_A0, V_A1) if j % 2 == 0 else (V_A1, V_A0)
            if j < 31:
                build_a(An, XS[(j + 1) >> 4], (j + 1) & 15)
            vm.wait(wq_k[j])
            if nxt < 32:
                wq_k[nxt] = wq_load(nxt)
                nxt += 1
            if c.stamps and j in (0, 8, 16, 24, 31):
                rstamp(a, V_ST, 3 + (0, 8, 16, 24, 31).index(j))
            a(f"v_mfma_f32_16x16x32_bf16 v[{V_ACC}:{V_ACC+3}], v[{A}:{A+3}], v[{WB+4*j}:{WB+4*j+3}], v[{V_ACC}:{V_ACC+3}]")
        a(f"v_lshlrev_b32 v{V_T0}, 5, v{V_C}\nv_lshl_add_u32 v{V_T0}, v{V_G}, 4, v{V_T0}")
        a(f"s_lshl_b32 s{S_T0}, s{S_ROLE}, 9")
        a(f"v_add_u32 v{V_T0}, s{S_T0}, v{V_T0}")
        a("s_mov_b32 exec_lo, -1\ns_mov_b32 exec_hi, 0")
        a(f"ds_write_b128 v{V_T0}, v[{V_ACC}:{V_ACC+3}] offset:{L_QP}")
        a("s_mov_b64 exec, -1")
        a("s_waitcnt lgkmcnt(0)\ns_barrier")
        vm.wait(vm.issued - 1)
        for t in (V_TF, V_TS):
            a(f"v_add_u32 v{t}, 1, v{t}\nv_add_u32 v{t+1}, 1, v{t+1}")
        a(f"v_readfirstlane_b32 s{S_TS}, v{V_TS}\nv_readfirstlane_b32 s{S_TS+1}, v{V_TS+1}")
    if c.stamps:
        rstamp(a, V_ST, 8)

    a(f"s_lshl_b32 s{S_T0}, s{S_B}, 10")
    srd(a, SRD_A, P_X, f"s{S_T0}", None, 1024 + 64)
    VB = V_E
    a(f"v_lshlrev_b32 v{V_T0}, 4, v{V_LANE}")
    a(f"buffer_load_dwordx4 v[{VB}:{VB+3}], v{V_T0}, s[{SRD_A}:{SRD_A+3}], 0 offen {c.smflags}")
    a(f"s_lshl_b32 s{S_T1}, s{S_H}, 5")
    a(f"v_lshlrev_b32 v{V_T1}, 1, v{V_C}")
    a(f"buffer_load_ushort v{V_H}, v{V_T1}, s[{SRD_A}:{SRD_A+3}], s{S_T1} offen {c.smflags}")
    srd(a, SRD_A, P_GW, None, None, 1024)
    a(f"buffer_load_dwordx4 v[{VB+8}:{VB+11}], v{V_T0}, s[{SRD_A}:{SRD_A+3}], 0 offen {c.smflags}")
    a(f"s_mul_i32 s{S_T1}, s{S_ROLE}, 896")
    a(f"v_lshlrev_b32 v{V_T1}, 1, v{V_LANE}")
    for base, ptr in ((V_W1, P_W1), (V_B1, P_B1), (V_W2, P_W2)):
        srd(a, SRD_A, ptr, None, None, 3584 + 64)
        for t in range(7):
            a(f"buffer_load_ushort v{base+t}, v{V_T1}, s[{SRD_A}:{SRD_A+3}], s{S_T1} offen offset:{128*t} {c.smflags}")
    srd(a, SRD_A, P_B2, None, None, 64)
    a(f"v_mov_b32 v{V_T2}, 0")
    a(f"buffer_load_ushort v{V_Y2}, v{V_T2}, s[{SRD_A}:{SRD_A+3}], 0 offen {c.smflags}")
    a("s_waitcnt vmcnt(0)")
    if c.stamps:
        rstamp(a, V_ST, 9)

    a(f"s_lshl_b32 s{S_T0}, s{S_H}, 17")
    srd(a, SRD_B, P_WO, f"s{S_T0}", None, 131072)
    a(f"v_lshlrev_b32 v{V_OFF}, 10, v{V_G}\nv_lshl_add_u32 v{V_OFF}, v{V_C}, 4, v{V_OFF}")
    a(f"s_lshl_b32 s{S_T0}, s{S_ROLE}, 8")
    a(f"v_add_u32 v{V_OFF}, s{S_T0}, v{V_OFF}")
    a(f"s_lshl_b32 s{S_OFFA}, s{S_B}, 14" if c.roto else f"s_mov_b32 s{S_OFFA}, 0")
    for j in range(32 if not (c.auxoff & 1) else 0):
        if j >= c.wo_depth:
            a(f"s_waitcnt vmcnt({c.wo_depth-1})")
        a(f"buffer_load_dwordx4 v[{WB+4*j}:{WB+4*j+3}], v{V_OFF}, s[{SRD_B}:{SRD_B+3}], s{S_OFFA} offen {c.woflags}")
        if j < 31:
            a(f"s_add_u32 s{S_OFFA}, s{S_OFFA}, 4096\ns_and_b32 s{S_OFFA}, s{S_OFFA}, 0x1ffff")
    if c.stamps:
        rstamp(a, V_ST, 10)

    def unpack8(src, dst):
        for r in range(4):
            a(f"v_lshlrev_b32 v{dst+2*r}, 16, v{src+r}")
            a(f"v_and_b32 v{dst+2*r+1}, s{S_HI16}, v{src+r}")

    def sum8(src, dst):
        a(f"v_add_f32 v{dst}, v{src}, v{src+1}")
        for e in range(2, 8):
            a(f"v_add_f32 v{dst}, v{dst}, v{src+e}")

    U = V_E + 12
    unpack8(VB, U)
    unpack8(VB + 8, U + 8)
    for e in range(8):
        a(f"v_mul_f32 v{U+e}, v{U+e}, v{U+8+e}")
    for r in range(4):
        a(f"v_cvt_pk_bf16_f32 v{U+8+r}, v{U+2*r}, v{U+2*r+1}")
    unpack8(U + 8, U)
    sum8(U, V_GATE)
    reduce64(a, "v_add_f32", V_GATE, V_T0)
    rne_bf16(a, V_GATE)
    a(f"v_mul_f32 v{V_GATE}, s{S_LOG2E}, v{V_GATE}")
    a(f"v_sub_f32 v{V_GATE}, 0, v{V_GATE}")
    a(f"v_exp_f32 v{V_GATE}, v{V_GATE}")
    a(f"v_add_f32 v{V_GATE}, 1.0, v{V_GATE}")
    a(f"v_rcp_f32 v{V_GATE}, v{V_GATE}")
    rne_bf16(a, V_GATE)

    unpack8(VB, U)
    sum8(U, V_T2)
    reduce64(a, "v_add_f32", V_T2, V_T0)
    a(f"v_mul_f32 v{V_T2}, {f2u(1/512):#x}, v{V_T2}")
    for e in range(8):
        a(f"v_sub_f32 v{U+e}, v{U+e}, v{V_T2}")
        a(f"v_mul_f32 v{U+e}, v{U+e}, v{U+e}")
    sum8(U, V_T3)
    reduce64(a, "v_add_f32", V_T3, V_T0)
    a(f"v_mul_f32 v{V_T3}, {f2u(1/512):#x}, v{V_T3}")
    rne_bf16(a, V_T2)
    rne_bf16(a, V_T3)
    a(f"v_add_f32 v{V_T3}, {f2u(1e-5):#x}, v{V_T3}")
    rne_bf16(a, V_T3)
    a(f"v_sqrt_f32 v{V_T3}, v{V_T3}")
    rne_bf16(a, V_T3)
    a(f"v_lshlrev_b32 v{V_H}, 16, v{V_H}")
    a(f"v_sub_f32 v{V_H}, v{V_H}, v{V_T2}")
    rne_bf16(a, V_H)
    div(a, V_H, V_H, V_T3, V_T0, V_T1)
    rne_bf16(a, V_H)
    if c.stamps:
        rstamp(a, V_ST, 11)

    for t in range(7):
        for base in (V_W1, V_B1, V_W2):
            a(f"v_lshlrev_b32 v{base+t}, 16, v{base+t}")
    kb = 0.7978845608028654
    c1 = -2.0 * kb * 1.4426950408889634
    a(f"v_mov_b32 v{V_C1}, {f2u(c1):#x}\nv_mov_b32 v{V_C2}, {f2u(c1 * 0.044715):#x}")
    a(f"v_mov_b32 v{V_Y1}, 0")
    a(f"v_mov_b32 v{V_T3}, 0")
    a(f"s_mov_b32 s{S_CNT}, {7 if not (c.auxoff & 2) else 1}")
    a("L_mlp:")
    for k in range(8):
        ua, ub, za, zb, p = E, E + 1, E + 2, E + 3, E + 4
        i0, i1 = 2 * k, 2 * k + 1

        def round2():
            a(f"v_cvt_pk_bf16_f32 v{p}, v{ua}, v{ub}")
            a(f"v_lshlrev_b32 v{ua}, 16, v{p}")
            a(f"v_and_b32 v{ub}, s{S_HI16}, v{p}")
        a(f"v_mul_f32_dpp v{ua}, v{V_W1}, v{V_H} row_newbcast:{i0} {DPPF}")
        a(f"v_mul_f32_dpp v{ub}, v{V_W1}, v{V_H} row_newbcast:{i1} {DPPF}")
        round2()
        a(f"v_add_f32_dpp v{ua}, v{V_B1}, v{ua} row_newbcast:{i0} {DPPF}")
        a(f"v_add_f32_dpp v{ub}, v{V_B1}, v{ub} row_newbcast:{i1} {DPPF}")
        round2()
        a(f"v_mul_f32 v{za}, v{ua}, v{ua}\nv_mul_f32 v{zb}, v{ub}, v{ub}")
        a(f"v_fma_f32 v{za}, v{za}, v{V_C2}, v{V_C1}\nv_fma_f32 v{zb}, v{zb}, v{V_C2}, v{V_C1}")
        a(f"v_mul_f32 v{za}, v{za}, v{ua}\nv_mul_f32 v{zb}, v{zb}, v{ub}")
        a(f"v_exp_f32 v{za}, v{za}\nv_exp_f32 v{zb}, v{zb}")
        a(f"v_add_f32 v{za}, 1.0, v{za}\nv_add_f32 v{zb}, 1.0, v{zb}")
        a(f"v_rcp_f32 v{za}, v{za}\nv_rcp_f32 v{zb}, v{zb}")
        a(f"v_mul_f32 v{ua}, v{ua}, v{za}\nv_mul_f32 v{ub}, v{ub}, v{zb}")
        round2()
        a(f"v_fmac_f32_dpp v{V_Y1}, v{V_W2}, v{ua} row_newbcast:{i0} {DPPF}")
        a(f"v_fmac_f32_dpp v{V_T3}, v{V_W2}, v{ub} row_newbcast:{i1} {DPPF}")
    for base in (V_W1, V_B1, V_W2):
        for t in range(6):
            a(f"v_mov_b32 v{base+t}, v{base+t+1}")
    a(f"s_sub_u32 s{S_CNT}, s{S_CNT}, 1\ns_cmp_lg_u32 s{S_CNT}, 0\ns_cbranch_scc1 L_mlp")
    a(f"v_add_f32 v{V_Y1}, v{V_Y1}, v{V_T3}")
    cross_rows(a, "v_add_f32", V_Y1, V_T0)
    a(f"v_lshlrev_b32 v{V_T0}, 2, v{V_C}")
    a(f"s_lshl_b32 s{S_T0}, s{S_ROLE}, 6")
    a(f"v_add_u32 v{V_T0}, s{S_T0}, v{V_T0}")
    a("s_mov_b64 exec, 0xffff")
    a(f"ds_write_b32 v{V_T0}, v{V_Y1} offset:{L_YP}")
    a("s_mov_b64 exec, -1")
    if c.stamps:
        rstamp(a, V_ST, 12)

    V_OA, V_OB, V_PUB, V_IN, V_TW, V_TR = V_X0, V_H, V_X1, V_OFF, V_C1, V_C2
    for be, dst in ((0, V_OA), (1, V_OB)):
        rot_index(dst, be, c.roto)
        a(f"v_lshlrev_b32 v{dst}, 4, v{dst}\nv_lshl_add_u32 v{dst}, v{V_G}, 2, v{dst}")
    a(f"v_lshrrev_b32 v{V_PUB}, 3, v{V_LANE}\nv_lshlrev_b32 v{V_PUB}, 12, v{V_PUB}")
    a(f"v_and_b32 v{V_T0}, 7, v{V_LANE}\nv_lshlrev_b32 v{V_T0}, 4, v{V_T0}")
    a(f"s_lshl_b32 s{S_T0}, s{S_ROLE}, 15\ns_lshl_b32 s{S_T1}, s{S_H}, 7\ns_add_u32 s{S_T0}, s{S_T0}, s{S_T1}")
    a(f"v_add3_u32 v{V_PUB}, v{V_PUB}, v{V_T0}, s{S_T0}")
    a(f"s_lshl_b32 s{S_T0}, s{S_ROLE}, 9\ns_add_u32 s{S_T0}, s{S_T0}, {L_TR}")
    a(f"v_lshlrev_b32 v{V_TW}, 5, v{V_C}\nv_lshl_add_u32 v{V_TW}, v{V_G}, 4, v{V_TW}\nv_add_u32 v{V_TW}, s{S_T0}, v{V_TW}")
    a(f"v_lshlrev_b32 v{V_TR}, 3, v{V_LANE}\nv_add_u32 v{V_TR}, s{S_T0}, v{V_TR}")
    a(f"s_lshl_b32 s{S_T0}, s{S_B}, 17\ns_add_u32 s{S_T0}, s{S_T0}, {WS_F}")
    srd(a, SRD_D, P_WS, f"s{S_T0}", None, 0x20000)
    a(f"s_lshl_b32 s{S_T0}, s{S_H}, 12")
    a(f"v_lshlrev_b32 v{V_IN}, 4, v{V_LANE}\nv_add_u32 v{V_IN}, s{S_T0}, v{V_IN}")
    a(f"s_lshl_b32 s{S_T0}, s{S_B}, 10\ns_lshl_b32 s{S_T1}, s{S_H}, 5\ns_add_u32 s{S_T0}, s{S_T0}, s{S_T1}")
    srd(a, SRD_E, P_OUT, f"s{S_T0}", None, 64)
    for r in range(4):
        a(f"v_mov_b32 v{V_ACC+r}, 0")
    a(f"v_mov_b32 v{V_T3}, 0")
    a(f"v_mov_b32 v{G0+1}, v{V_TF}\nv_mov_b32 v{G0+3}, v{V_TF+1}")
    a("s_waitcnt vmcnt(0) lgkmcnt(0)")
    a("s_barrier")
    if c.stamps:
        rstamp(a, V_ST, 13)

    MV, LV, OV = E, E + 4, E + 8
    a(f"ds_read_b128 v[{MV}:{MV+3}], v{V_T3} offset:{L_ML}")
    a(f"ds_read_b128 v[{LV}:{LV+3}], v{V_T3} offset:{L_ML+16}")
    for w in range(4):
        for be in range(2):
            a(f"ds_read_b32 v{OV+2*w+be}, v{V_OB if be else V_OA} offset:{L_OP + 512*w}")
    a("s_waitcnt lgkmcnt(8)")
    a(f"v_max3_f32 v{V_T0}, v{MV}, v{MV+1}, v{MV+2}\nv_max_f32 v{V_T0}, v{V_T0}, v{MV+3}")
    for w in range(4):
        a(f"v_sub_f32 v{MV+w}, v{MV+w}, v{V_T0}")
    for w in range(4):
        a(f"v_mul_f32 v{MV+w}, s{S_LOG2E}, v{MV+w}")
    for w in range(4):
        a(f"v_exp_f32 v{MV+w}, v{MV+w}")
    a(f"v_mul_f32 v{V_T1}, v{MV}, v{LV}")
    for w in range(1, 4):
        a(f"v_fmac_f32 v{V_T1}, v{MV+w}, v{LV+w}")
    a(f"v_rcp_f32 v{V_T2}, v{V_T1}")
    a(f"v_fma_f32 v{V_T0}, -v{V_T1}, v{V_T2}, 1.0")
    a(f"v_fmac_f32 v{V_T2}, v{V_T0}, v{V_T2}")
    a("s_waitcnt lgkmcnt(0)")
    for be in range(2):
        a(f"v_mul_f32 v{LV+be}, v{MV}, v{OV+be}")
    for w in range(1, 4):
        for be in range(2):
            a(f"v_fmac_f32 v{LV+be}, v{MV+w}, v{OV+2*w+be}")
    for be in range(2):
        a(f"v_mul_f32 v{LV+be}, v{LV+be}, v{V_T2}")
    for be in range(2):
        a(f"v_cvt_pk_bf16_f32 v{LV+be}, v{LV+be}, v{LV+be}")
    srcs = (LV, LV + 1)
    build_a(V_A0, srcs[0], 0)
    for j in range(32):
        A, An = (V_A0, V_A1) if j % 2 == 0 else (V_A1, V_A0)
        if j < 31:
            build_a(An, srcs[(j + 1) >> 4], (j + 1) & 15)
        a(f"v_mfma_f32_16x16x32_bf16 v[{V_ACC}:{V_ACC+3}], v[{A}:{A+3}], v[{WB+4*j}:{WB+4*j+3}], v[{V_ACC}:{V_ACC+3}]")
    a("s_mov_b32 exec_lo, -1\ns_mov_b32 exec_hi, 0")
    a(f"ds_write_b128 v{V_TW}, v[{V_ACC}:{V_ACC+3}]")
    a("s_mov_b64 exec, -1")
    a(f"ds_read_b64 v[{E}:{E+1}], v{V_TR}")
    a("s_waitcnt lgkmcnt(0)")
    a(f"v_mov_b32 v{G0}, v{E}\nv_mov_b32 v{G0+2}, v{E+1}")
    a(f"buffer_store_dwordx4 v[{G0}:{G0+3}], v{V_PUB}, s[{SRD_D}:{SRD_D+3}], 0 offen {sc}")
    if c.stamps:
        rstamp(a, V_ST, 14)
        a(f"s_cmp_eq_u32 s{S_ROLE}, 0\ns_cbranch_scc1 L_consumer")
        dump_stamps(a, V_ST, WS_ST + 0x100000, V_T0)
        a("s_endpgm")
        a("L_consumer:")
    else:
        a(f"s_cmp_lg_u32 s{S_ROLE}, 0\ns_cbranch_scc1 L_done")

    YA = E + 24
    a(f"v_and_b32 v{V_T0}, 7, v{V_LANE}\nv_lshlrev_b32 v{V_T0}, 3, v{V_T0}")
    for w in range(4):
        a(f"ds_read_b64 v[{MV+2*w}:{MV+2*w+1}], v{V_T0} offset:{L_YP + 64*w}")
    a(f"v_lshlrev_b32 v{V_Y2}, 16, v{V_Y2}")
    a(f"v_sub_f32 v{V_T1}, 1.0, v{V_GATE}")
    rne_bf16(a, V_T1)
    a("s_waitcnt lgkmcnt(0)")
    for r in range(2):
        a(f"v_add_f32 v{MV+r}, v{MV+r}, v{MV+2+r}\nv_add_f32 v{MV+4+r}, v{MV+4+r}, v{MV+6+r}")
        a(f"v_add_f32 v{YA+r}, v{MV+r}, v{MV+4+r}")
        rne_bf16(a, YA + r)
        a(f"v_add_f32 v{YA+r}, v{YA+r}, v{V_Y2}")
        rne_bf16(a, YA + r)
        a(f"v_mul_f32 v{YA+r}, v{V_T1}, v{YA+r}")
        rne_bf16(a, YA + r)
    IN = E
    a(f"s_mov_b32 s{S_CNT}, {SPIN_LIMIT}")
    a("L_poll:")
    for t in range(4):
        a(f"buffer_load_dwordx4 v[{IN+4*t}:{IN+4*t+3}], v{V_IN}, s[{SRD_D}:{SRD_D+3}], 0 offen offset:{1024*t} {sc}")
    a(f"s_sub_u32 s{S_CNT}, s{S_CNT}, 1\ns_cbranch_scc1 L_poll_out")
    a("s_waitcnt vmcnt(0)")
    tags_bad((IN, IN + 4, IN + 8, IN + 12))
    if c.fsleep:
        a("s_cbranch_vccz L_poll_out")
        a(f"s_sleep {c.fsleep}")
        a("s_branch L_poll")
    else:
        a("s_cbranch_vccnz L_poll")
    a("L_poll_out:")
    for r in (0, 2):
        a(f"v_add_f32 v{IN+r}, v{IN+r}, v{IN+4+r}\nv_add_f32 v{IN+8+r}, v{IN+8+r}, v{IN+12+r}")
    for r in (0, 2):
        a(f"v_add_f32 v{IN+r}, v{IN+r}, v{IN+8+r}")
    for r in (0, 2):
        a(f"v_add_f32_dpp v{IN+r}, v{IN+r}, v{IN+r} row_ror:8 {DPPF}")
    for r in (0, 2):
        cross_rows(a, "v_add_f32", IN + r, V_T0)
    for k, r in enumerate((0, 2)):
        rne_bf16(a, IN + r)
        a(f"v_mul_f32 v{IN+r}, v{V_GATE}, v{IN+r}")
        rne_bf16(a, IN + r)
        a(f"v_add_f32 v{IN+r}, v{IN+r}, v{YA+k}")
    a(f"v_cvt_pk_bf16_f32 v{IN}, v{IN}, v{IN+2}")
    a(f"v_lshlrev_b32 v{V_T0}, 2, v{V_LANE}")
    a("s_mov_b64 exec, 0xff")
    a(f"buffer_store_dword v{IN}, v{V_T0}, s[{SRD_E}:{SRD_E+3}], 0 offen")
    a("s_mov_b64 exec, 1")
    a(f"s_lshl_b32 s{S_T0}, s{S_ID}, 7")
    a(f"v_mov_b32 v{V_T0}, s{S_T0}")
    a(f"buffer_store_dwordx2 v[{V_TS}:{V_TS+1}], v{V_T0}, s[{SRD_C}:{SRD_C+3}], 0 offen {sc}")
    if c.stamps:
        a("s_mov_b64 exec, -1")
        rstamp(a, V_ST, 15)
        dump_stamps(a, V_ST, WS_ST + 0x100000, V_T0)
        if c.dbgout:
            a(f"s_cmp_lg_u32 s{S_ID}, {c.dbgout-1}\ns_cbranch_scc1 L_done")
            a(f"v_readlane_b32 s{S_T0}, v{V_ST}, 16")
            a(f"v_subrev_u32 v{V_T1}, s{S_T0}, v{V_ST}")
            a(f"v_lshlrev_b32 v{V_T0}, 2, v{V_LANE}")
            a("s_mov_b64 exec, 0xffff")
            a(f"global_store_dword v{V_T0}, v{V_T1}, s[{P_DBG}:{P_DBG+1}]")


if __name__ == "__main__":
    out = sys.argv[1]
    kw = {}
    for s in sys.argv[2:]:
        k, v = s.split("=")
        kw[k] = int(v) if v.lstrip("-").isdigit() else v.replace("_", " ") if k.endswith("flags") or k == "sc" else v
    open(out, "w").write(gen(**kw))
```

```python
import os, struct, sys
from asmlib import Asm

NAME = "gated_mix__mha_block_cached__mixer_token_mlp__decode_kernel"
HEAD = os.path.join(os.path.dirname(os.path.abspath(__file__)), "head.txt")
SPIN_LIMIT = 0x40000
DPPF = "row_mask:0xf bank_mask:0xf"

L_QP, L_OP, L_ML, L_YP = 0, 2048, 4096, 4352
L_CNT, L_TR, L_SC = 4608, 4864, 8192
L_PQ = L_SC
LDS_BYTES = 8192 + 16384
WS_E, WS_F, WS_Q = 0x0, 0x100000, 0x200000
WS_ST = 0x800000

S_WG, S_WAVE = 2, 3
P_X, P_K, P_V, P_WQ, P_WO, P_BX, P_W1, P_B1 = 8, 10, 12, 14, 16, 18, 20, 22
P_W2, P_B2, P_GW, P_OUT, P_DBG, P_WS = 24, 26, 28, 30, 32, 34
S_B, S_H, S_ROLE = 36, 37, 38
S_HI16, S_MI1, S_MI0 = 39, 40, 42
S_LOG2E, S_SCALE = 44, 45
S_T0, S_T1, S_T2, S_T3 = 46, 47, 48, 49
S_CNT, S_ID = 50, 51
SRD_A, SRD_B, SRD_C, SRD_D, SRD_E = 52, 56, 60, 64, 68
S_OFFA, S_OFFB = 72, 73
S_TS = 74
S_ST = 76
S_QC = 82


def f2u(x):
    return struct.unpack("<I", struct.pack("<f", x))[0]


def bitrev4(j):
    return ((j & 1) << 3) | ((j & 2) << 1) | ((j & 4) >> 1) | ((j & 8) >> 3)


class Cfg:
    D = 5
    D0 = 5
    DP = 5
    PF = 32
    DT = 5
    NT = 1
    kvflags = "nt"
    prio = 2
    wo_depth = 2
    wq_depth = 32
    wqflags = "nt"
    woflags = "nt"
    smflags = "nt"
    sc = "sc1"
    rot = 1
    roto = 0
    touchv = 1
    remap = 1
    qmode = "local"
    qsleep = 0
    fsleep = 0
    touch = 1
    stamps = 0
    auxoff = 0
    quick = 1
    tripwire = 0
    tripid = 0
    dbgout = 0


def srd(a, reg, ptr, add_lo=None, add_hi=None, size=0):
    if add_lo is None:
        a(f"s_mov_b32 s{reg}, s{ptr}\ns_mov_b32 s{reg+1}, s{ptr+1}")
    else:
        a(f"s_add_u32 s{reg}, s{ptr}, {add_lo}")
        a(f"s_addc_u32 s{reg+1}, s{ptr+1}, {add_hi if add_hi is not None else 0}")
    a(f"s_mov_b32 s{reg+2}, {size}\ns_mov_b32 s{reg+3}, 0x20000")


def cross_rows(a, op, v, t):
    a(f"v_mov_b32 v{t}, v{v}")
    a(f"v_permlane16_swap_b32 v{v}, v{t}")
    a(f"{op} v{v}, v{v}, v{t}")
    a(f"v_mov_b32 v{t}, v{v}")
    a(f"v_permlane32_swap_b32 v{v}, v{t}")
    a(f"{op} v{v}, v{v}, v{t}")


def reduce64(a, op, v, t):
    for n in (8, 4, 2, 1):
        a(f"{op}_dpp v{v}, v{v}, v{v} row_ror:{n} {DPPF}")
    cross_rows(a, op, v, t)


def rne_bf16(a, v):
    a(f"v_cvt_pk_bf16_f32 v{v}, v{v}, v{v}")
    a(f"v_and_b32 v{v}, s{S_HI16}, v{v}")


def make_masks(a, vlane, m0, t0, t1):
    a(f"v_and_b32 v{t0}, 15, v{vlane}")
    a(f"v_and_b32 v{t1}, 1, v{t0}")
    a(f"v_lshlrev_b32 v{t1}, 4, v{t1}")
    a(f"v_mov_b32 v{m0}, 0xffff")
    a(f"v_lshlrev_b32 v{t1}, v{t1}, v{m0}")
    a(f"v_lshrrev_b32 v{t0}, 1, v{t0}")
    for r in range(4):
        a(f"v_cmp_eq_u32 vcc, {r}, v{t0}")
        a(f"v_cndmask_b32 v{m0+r}, 0, v{t1}, vcc")


def div(a, dst, num, den, t0, t1):
    a(f"v_rcp_f32 v{t0}, v{den}")
    a(f"v_mul_f32 v{t1}, v{num}, v{t0}")
    a(f"v_fma_f32 v{dst}, -v{den}, v{t1}, v{num}")
    a(f"v_fma_f32 v{dst}, v{dst}, v{t0}, v{t1}")


def rstamp(a, v, idx):
    a(f"s_memrealtime s[{S_ST}:{S_ST+1}]\ns_waitcnt lgkmcnt(0)")
    a(f"v_writelane_b32 v{v}, s{S_ST}, {idx}")


def dump_stamps(a, v, region, t):
    a(f"s_lshl_b32 s{S_ST+2}, s{S_ID}, 2\ns_add_u32 s{S_ST+2}, s{S_ST+2}, s{S_ROLE}\ns_lshl_b32 s{S_ST+2}, s{S_ST+2}, 8")
    a(f"s_add_u32 s{S_ST+2}, s{S_ST+2}, {region}")
    a(f"v_lshlrev_b32 v{t}, 2, v0\nv_add_u32 v{t}, s{S_ST+2}, v{t}")
    a(f"global_store_dword v{t}, v{v}, s[{P_WS}:{P_WS+1}]")


class VM:
    def __init__(self, a):
        self.a, self.issued, self.done = a, 0, 0

    def op(self, text):
        self.a(text)
        self.issued += 1
        return self.issued - 1

    def wait(self, k):
        if self.done <= k:
            self.a(f"s_waitcnt vmcnt({min(63, self.issued - k - 1)})")
            self.done = max(self.done, k + 1 if self.issued - k - 1 <= 63 else self.issued - 63)

    def gate(self, depth):
        k = self.issued - depth
        if k >= 0:
            self.wait(k)


def gen(**kw):
    c = Cfg()
    for k, v in kw.items():
        assert hasattr(c, k), k
        setattr(c, k, v)
    a = Asm()
    a(f".amdgcn_target \"amdgcn-amd-amdhsa--gfx950\"\n.text\n.globl {NAME}\n.p2align 8\n.type {NAME},@function\n{NAME}:")
    a(f"s_cmp_ge_u32 s{S_WG}, 256\ns_cbranch_scc1 L_done")
    a("s_load_dwordx16 s[8:23], s[0:1], 0")
    a("s_load_dwordx8 s[24:31], s[0:1], 64")
    a("s_load_dwordx4 s[32:35], s[0:1], 96")
    if c.stamps:
        a(f"s_memrealtime s[{S_ST+4}:{S_ST+5}]")
    a("v_lshrrev_b32 v1, 6, v0")
    a("v_and_b32 v0, 63, v0")
    a(f"v_readfirstlane_b32 s{S_WAVE}, v1")
    if c.remap:
        a(f"s_lshr_b32 s{S_B}, s{S_WG}, 3\ns_and_b32 s{S_B}, s{S_B}, 7")
        a(f"s_lshr_b32 s{S_H}, s{S_WG}, 6\ns_lshl_b32 s{S_H}, s{S_H}, 3\ns_and_b32 s{S_T0}, s{S_WG}, 7\ns_or_b32 s{S_H}, s{S_H}, s{S_T0}")
    else:
        a(f"s_lshr_b32 s{S_B}, s{S_WG}, 5\ns_and_b32 s{S_H}, s{S_WG}, 31")
    a(f"s_lshl_b32 s{S_ID}, s{S_B}, 5\ns_or_b32 s{S_ID}, s{S_ID}, s{S_H}")
    a(f"s_and_b32 s{S_ROLE}, s{S_WAVE}, 3")
    a(f"s_mov_b32 s{S_HI16}, 0xffff0000")
    a(f"s_mov_b32 s{S_LOG2E}, {f2u(1.4426950408889634):#x}")
    a(f"s_cmp_ge_u32 s{S_WAVE}, 4\ns_cbranch_scc1 L_aux")
    streamer(a, c)
    a("L_aux:")
    aux(a, c)
    a("L_done:\ns_endpgm")
    body = a.finish()
    head = open(HEAD).read()
    tail = f""".section .rodata,"a"
.p2align 6
.amdhsa_kernel {NAME}
  .amdhsa_next_free_vgpr 256
  .amdhsa_next_free_sgpr 96
  .amdhsa_accum_offset 256
  .amdhsa_group_segment_fixed_size 0
  .amdhsa_kernarg_size 112
  .amdhsa_user_sgpr_count 2
  .amdhsa_user_sgpr_kernarg_segment_ptr 1
  .amdhsa_system_sgpr_workgroup_id_x 1
  .amdhsa_float_denorm_mode_32 3
.end_amdhsa_kernel
"""
    return head + f"; @launch grid=(256,1,1) block=(512,1,1) lds={LDS_BYTES}\n" + body + tail


def streamer(a, c):
    V_LANE, V_OFF, V_SCA = 0, 1, 2
    V_Q, V_MASK, V_A0, V_A1, V_ACC = 4, 8, 12, 16, 20
    V_P, V_T, V_U, V_X, V_S = 24, 26, 28, 30, 32
    V_T0, V_T1, V_M, V_L, V_P2, V_SN, V_P2N, V_ST = 33, 34, 35, 36, 37, 38, 39, 41
    V_TMP = 44
    R = 16
    PF, D = c.PF, c.D
    assert 16 <= PF <= 48 and max(D, c.DT, c.DP) < R
    PFB = 256 - 4 * PF
    assert PFB >= 60

    def dreg(n):
        return PFB + 4 * (n if n < PF else (n - PF) % R)

    if c.prio:
        a(f"s_setprio {c.prio}")
    a(f"v_lshlrev_b32 v{V_OFF}, 4, v{V_LANE}")
    a(f"s_lshl_b32 s{S_T0}, s{S_ROLE}, 12")
    a(f"v_add_u32 v{V_OFF}, s{S_T0}, v{V_OFF}")
    a(f"s_lshl_b32 s{S_T0}, s{S_ID}, 20\ns_lshr_b32 s{S_T1}, s{S_ID}, 12")
    a(f"s_mov_b32 s{S_OFFA}, 0\ns_mov_b32 s{S_OFFB}, 0")
    a("s_waitcnt lgkmcnt(0)")
    srd(a, SRD_A, P_K, f"s{S_T0}", f"s{S_T1}", 0x100000)
    srd(a, SRD_B, P_V, f"s{S_T0}", f"s{S_T1}", 0x100000)
    vm = VM(a)

    def load_text(n):
        r = dreg(n)
        s, so = (SRD_A, S_OFFA) if n < 256 else (SRD_B, S_OFFB)
        t = f"buffer_load_dwordx4 v[{r}:{r+3}], v{V_OFF}, s[{s}:{s+3}], s{so} offen offset:{(n & 3) * 1024} {c.kvflags}"
        if n & 3 == 3:
            t += f"\ns_add_u32 s{so}, s{so}, 16384"
        return t

    def issue():
        vm.op(load_text(vm.issued))

    if c.stamps:
        a(f"v_mov_b32 v{V_ST}, 0")
        a(f"v_writelane_b32 v{V_ST}, s{S_ST+4}, 43")
        a(f"s_getreg_b32 s{S_ST+2}, hwreg(HW_REG_XCC_ID)\nv_writelane_b32 v{V_ST}, s{S_ST+2}, 44")
        rstamp(a, V_ST, 32)
    marks = sorted(set((c.D0, 8, 12, 16, 24, PF - 1)))
    for n in range(PF):
        if n == c.D0 and c.qmode == "coop":
            a("s_barrier")
        if n >= c.D0:
            vm.gate(c.DP)
            if c.stamps and n in marks:
                rstamp(a, V_ST, 33 + marks.index(n))
        issue()
    a(f"s_mov_b32 s{S_MI1}, 0xcccccccc\ns_mov_b32 s{S_MI1+1}, 0xcccccccc")
    a(f"s_mov_b32 s{S_MI0}, 0xaaaaaaaa\ns_mov_b32 s{S_MI0+1}, 0xaaaaaaaa")
    a(f"s_mov_b32 s{S_SCALE}, {f2u(128 ** -0.5):#x}")
    make_masks(a, V_LANE, V_MASK, V_T0, V_T1)
    a(f"v_lshlrev_b32 v{V_SCA}, 2, v{V_LANE}")
    a(f"s_lshl_b32 s{S_T0}, s{S_ROLE}, 12\ns_add_u32 s{S_T0}, s{S_T0}, {L_SC}")
    a(f"v_add_u32 v{V_SCA}, s{S_T0}, v{V_SCA}")
    a(f"v_mov_b32 v{V_M}, 0xff800000")
    a(f"v_mov_b32 v{V_L}, 0")
    for r in range(4):
        a(f"v_mov_b32 v{V_ACC+r}, 0")
    a(f"v_and_b32 v{V_T0}, 15, v{V_LANE}\nv_lshlrev_b32 v{V_T0}, 5, v{V_T0}")
    a("s_barrier")
    for rnd in range(2):
        for w in range(2):
            ww = 2 * rnd + w
            a(f"ds_read_b128 v[{V_TMP+8*w}:{V_TMP+8*w+3}], v{V_T0} offset:{L_QP + 512*ww}")
            a(f"ds_read_b128 v[{V_TMP+8*w+4}:{V_TMP+8*w+7}], v{V_T0} offset:{L_QP + 512*ww + 16}")
        a("s_waitcnt lgkmcnt(0)")
        for e in range(8):
            a(f"v_add_f32 v{V_TMP+e}, v{V_TMP+e}, v{V_TMP+8+e}")
        if rnd == 0:
            for e in range(8):
                a(f"v_mov_b32 v{V_P+e}, v{V_TMP+e}")
    for e in range(8):
        a(f"v_add_f32 v{V_TMP+e}, v{V_P+e}, v{V_TMP+e}")
    for r in range(4):
        a(f"v_cvt_pk_bf16_f32 v{V_Q+r}, v{V_TMP+2*r}, v{V_TMP+2*r+1}")
    if c.stamps:
        rstamp(a, V_ST, 40)
        a(f"s_mov_b32 s{S_ST+3}, 0")

    def gstamp():
        if c.stamps:
            a(f"s_memrealtime s[{S_ST}:{S_ST+1}]\ns_waitcnt lgkmcnt(0)")
            a(f"s_mov_b32 m0, s{S_ST+3}")
            a(f"v_writelane_b32 v{V_ST}, s{S_ST}, m0")
            a(f"s_add_u32 s{S_ST+3}, s{S_ST+3}, 1")

    def k_reduce(j):
        if j & 1:
            t = V_T + ((j >> 1) & 1)
            a(f"v_add_f32_dpp v{t}, v{V_P}, v{V_P} row_ror:8 row_mask:0xf bank_mask:0x3")
            a(f"v_add_f32_dpp v{t}, v{V_P+1}, v{V_P+1} row_ror:8 row_mask:0xf bank_mask:0xc")
        if j & 3 == 3:
            u = V_U + ((j >> 2) & 1)
            a(f"v_add_f32_dpp v{u}, v{V_T}, v{V_T} row_ror:12 row_mask:0xf bank_mask:0x5")
            a(f"v_add_f32_dpp v{u}, v{V_T+1}, v{V_T+1} row_ror:4 row_mask:0xf bank_mask:0xa")
        if j & 7 == 7:
            x = V_X + ((j >> 3) & 1)
            a(f"v_cndmask_b32 v{V_T0}, v{V_U}, v{V_U+1}, s[{S_MI1}:{S_MI1+1}]")
            a(f"v_cndmask_b32 v{V_T1}, v{V_U+1}, v{V_U}, s[{S_MI1}:{S_MI1+1}]")
            a(f"v_add_f32_dpp v{x}, v{V_T1}, v{V_T0} quad_perm:[2,3,0,1] {DPPF}")
        if j == 15:
            a(f"v_cndmask_b32 v{V_T0}, v{V_X}, v{V_X+1}, s[{S_MI0}:{S_MI0+1}]")
            a(f"v_cndmask_b32 v{V_T1}, v{V_X+1}, v{V_X}, s[{S_MI0}:{S_MI0+1}]")
            a(f"v_add_f32_dpp v{V_S}, v{V_T1}, v{V_T0} quad_perm:[1,0,3,2] {DPPF}")
            rne_bf16(a, V_S)
            a(f"v_mul_f32 v{V_S}, s{S_SCALE}, v{V_S}")
            rne_bf16(a, V_S)
            a(f"v_max_f32 v{V_M}, v{V_M}, v{V_S}")
            a(f"ds_write_b32 v{V_SCA}, v{V_S}")
            a(f"v_add_u32 v{V_SCA}, 0x100, v{V_SCA}")

    def k_step(n, j):
        r = dreg(n)
        p = V_P + (j & 1)
        a(f"v_dot2_f32_bf16 v{p}, v{r}, v{V_Q}, 0")
        for e in range(1, 4):
            a(f"v_dot2_f32_bf16 v{p}, v{r+e}, v{V_Q+e}, v{p}")
        k_reduce(j)

    def static_feed(n, depth):
        vm.wait(n)
        while vm.issued < min(512, n + depth + 1):
            issue()

    g0 = (PF + 15) // 16
    for n in range(16 * g0):
        target = max(PF + min(n, D), n + D) if n < PF else n + D + 1
        if n >= PF:
            vm.wait(n)
        while vm.issued < target:
            if n < PF:
                vm.gate(D)
            issue()
        vm.wait(n)
        k_step(n, n & 15)
        if n & 15 == 15:
            gstamp()
    assert vm.issued == 16 * g0 + D, vm.issued
    a(f"s_mov_b32 s{S_CNT}, {15 - g0}")
    a("L_kloop:")
    for j in range(16):
        n = 16 * g0 + j
        a(f"s_waitcnt vmcnt({D-1})")
        a(load_text(n + D))
        k_step(n, j)
    gstamp()
    a(f"s_sub_u32 s{S_CNT}, s{S_CNT}, 1\ns_cmp_lg_u32 s{S_CNT}, 0\ns_cbranch_scc1 L_kloop")
    vm.issued, vm.done = 240 + D, 240
    for n in range(240, 256):
        static_feed(n, D)
        k_step(n, n & 15)
    gstamp()
    if c.stamps:
        rstamp(a, V_ST, 41)
    reduce64(a, "v_max_f32", V_M, V_T0)
    a(f"v_add_u32 v{V_SCA}, {-16*256 & 0xffffffff:#x}, v{V_SCA}")
    a("s_waitcnt lgkmcnt(0)")
    a(f"ds_read_b32 v{V_SN}, v{V_SCA}")

    def probs(dst):
        a("s_waitcnt lgkmcnt(0)")
        a(f"v_sub_f32 v{V_T0}, v{V_SN}, v{V_M}")
        a(f"v_mul_f32 v{V_T0}, s{S_LOG2E}, v{V_T0}")
        a(f"v_exp_f32 v{V_T0}, v{V_T0}")
        a(f"v_add_f32 v{V_L}, v{V_L}, v{V_T0}")
        a(f"v_cvt_pk_bf16_f32 v{dst}, v{V_T0}, v{V_T0}")

    def build_a(dst, src, j):
        for r in range(4):
            a(f"v_and_b32_dpp v{dst+r}, v{src}, v{V_MASK+r} row_newbcast:{bitrev4(j)} {DPPF}")

    probs(V_P2)
    build_a(V_A0, V_P2, 0)

    def v_step(n, j, last):
        r = dreg(n)
        A, An = (V_A0, V_A1) if j % 2 == 0 else (V_A1, V_A0)
        a(f"v_mfma_f32_16x16x32_bf16 v[{V_ACC}:{V_ACC+3}], v[{A}:{A+3}], v[{r}:{r+3}], v[{V_ACC}:{V_ACC+3}]")
        if j < 15:
            build_a(An, V_P2, j + 1)
        elif not last:
            build_a(An, V_P2N, 0)
            a(f"v_mov_b32 v{V_P2}, v{V_P2N}")
        if not last:
            if j == 1:
                a(f"v_add_u32 v{V_SCA}, 0x100, v{V_SCA}")
                a(f"ds_read_b32 v{V_SN}, v{V_SCA}")
            if j == 6:
                probs(V_P2N)
        elif j == 1:
            reduce64(a, "v_add_f32", V_L, V_T0)

    NT = c.NT
    assert 1 <= NT <= 15 and vm.issued == 256 + D
    a(f"s_mov_b32 s{S_CNT}, {16 - NT}")
    a("L_vloop:")
    for j in range(16):
        n = 256 + j
        a(f"s_waitcnt vmcnt({D-1})")
        a(load_text(n + D))
        v_step(n, j, False)
    gstamp()
    a(f"s_sub_u32 s{S_CNT}, s{S_CNT}, 1\ns_cmp_lg_u32 s{S_CNT}, 0\ns_cbranch_scc1 L_vloop")
    n0 = 512 - 16 * NT
    vm.issued, vm.done = n0 + D, n0
    for n in range(n0, 512):
        static_feed(n, c.DT)
        v_step(n, n & 15, n >= 496)
        if n & 15 == 15:
            gstamp()
    if c.stamps:
        rstamp(a, V_ST, 42)
    a(f"v_and_b32 v{V_T0}, 15, v{V_LANE}\nv_lshlrev_b32 v{V_T0}, 5, v{V_T0}")
    a(f"v_lshrrev_b32 v{V_T1}, 4, v{V_LANE}\nv_lshlrev_b32 v{V_T1}, 4, v{V_T1}")
    a(f"s_lshl_b32 s{S_T0}, s{S_ROLE}, 9")
    a(f"v_add3_u32 v{V_T0}, v{V_T0}, v{V_T1}, s{S_T0}")
    a(f"s_lshl_b32 s{S_T0}, s{S_ROLE}, 2")
    a(f"v_mov_b32 v{V_T1}, s{S_T0}")
    a("s_mov_b64 exec, 1")
    a(f"ds_write_b32 v{V_T1}, v{V_M} offset:{L_ML}")
    a(f"ds_write_b32 v{V_T1}, v{V_L} offset:{L_ML+16}")
    a("s_mov_b32 exec_lo, -1\ns_mov_b32 exec_hi, 0")
    a(f"ds_write_b128 v{V_T0}, v[{V_ACC}:{V_ACC+3}] offset:{L_OP}")
    a("s_waitcnt lgkmcnt(0)\ns_barrier")
    if c.stamps:
        a("s_mov_b64 exec, -1")
        dump_stamps(a, V_ST, WS_ST, V_T0)
    a("s_endpgm")


def aux(a, c):
    V_LANE, V_G, V_C = 0, 1, 2
    V_MASK, V_A0, V_A1, V_ACC = 4, 8, 12, 16
    V_X0, V_X1, V_T0, V_T1, V_T2, V_T3 = 20, 21, 22, 23, 24, 25
    V_OFF, V_H, V_GATE, V_Y1, V_Y2, V_C1, V_C2 = 26, 27, 28, 29, 30, 31, 32
    V_ST, V_JUNK = 33, 3
    V_TQ, V_TQ2, V_TF, V_TS = 34, 102, 58, 100
    V_W1, V_B1, V_W2 = 36, 43, 50
    E = V_E = 60
    G0 = E + 16
    V_QA = 160
    WB = 128
    sc = c.sc
    coop = c.qmode == "coop"
    vm = VM(a)

    def build_a(dst, src, i):
        for r in range(4):
            a(f"v_and_b32_dpp v{dst+r}, v{src}, v{V_MASK+r} row_newbcast:{i} {DPPF}")

    def granule(dst, v0, v1, tag):
        a(f"v_mov_b32 v{dst}, v{v0}\nv_mov_b32 v{dst+1}, v{tag}\nv_mov_b32 v{dst+2}, v{v1}\nv_mov_b32 v{dst+3}, v{tag+1}")

    def tags_bad(regs):
        a(f"v_cmp_ne_u32 vcc, s{S_TS}, v{regs[0]+1}")
        for k, g in enumerate(regs):
            if k:
                a(f"v_cmp_ne_u32 s[{S_T2}:{S_T2+1}], s{S_TS}, v{g+1}")
                a(f"s_or_b64 vcc, vcc, s[{S_T2}:{S_T2+1}]")
            a(f"v_cmp_ne_u32 s[{S_T2}:{S_T2+1}], s{S_TS+1}, v{g+3}")
            a(f"s_or_b64 vcc, vcc, s[{S_T2}:{S_T2+1}]")

    def rot_index(dst, be, on):
        if on:
            a(f"s_lshl_b32 s{S_T2}, s{S_B}, 2")
            a(f"v_add_u32 v{dst}, s{S_T2}, v{V_C}")
        else:
            a(f"v_mov_b32 v{dst}, v{V_C}")
        if be:
            a(f"v_add_u32 v{dst}, 16, v{dst}")
        a(f"v_and_b32 v{dst}, 31, v{dst}")

    a(f"v_lshrrev_b32 v{V_G}, 4, v{V_LANE}\nv_and_b32 v{V_C}, 15, v{V_LANE}")
    a(f"v_lshlrev_b32 v{V_OFF}, 13, v{V_G}\nv_lshl_add_u32 v{V_OFF}, v{V_C}, 4, v{V_OFF}")
    if coop:
        a(f"v_lshrrev_b32 v{V_T0}, 2, v{V_C}\nv_lshlrev_b32 v{V_T0}, 10, v{V_T0}")
        a(f"v_and_b32 v{V_T1}, 3, v{V_C}\nv_lshlrev_b32 v{V_T1}, 3, v{V_T1}")
        a(f"v_lshl_add_u32 v{V_T1}, v{V_G}, 1, v{V_T1}")
        a(f"s_lshl_b32 s{S_T0}, s{S_B}, 7\ns_lshl_b32 s{S_T1}, s{S_ROLE}, 5\ns_add_u32 s{S_T0}, s{S_T0}, s{S_T1}")
        a(f"v_add3_u32 v{V_T0}, v{V_T0}, v{V_T1}, s{S_T0}")
        a(f"v_add_u32 v{V_T3}, 0x1000, v{V_T0}")
        a(f"s_lshl_b32 s{S_OFFA}, s{S_B}, 19\ns_lshl_b32 s{S_T1}, s{S_ROLE}, 17\ns_add_u32 s{S_OFFA}, s{S_OFFA}, s{S_T1}")
    else:
        a(f"s_lshl_b32 s{S_T0}, s{S_B}, 10\ns_lshl_b32 s{S_T1}, s{S_ROLE}, 8\ns_add_u32 s{S_T0}, s{S_T0}, s{S_T1}")
        for be, dst in ((0, V_T0), (1, V_T3)):
            rot_index(dst, be, c.rot)
            a(f"v_lshlrev_b32 v{dst}, 3, v{dst}\nv_lshl_add_u32 v{dst}, v{V_G}, 1, v{dst}")
            a(f"v_add_u32 v{dst}, s{S_T0}, v{dst}")
        a(f"s_lshl_b32 s{S_OFFA}, s{S_ROLE}, 20")
        a(f"s_lshl_b32 s{S_OFFB}, s{S_B}, 17" if c.rot else f"s_mov_b32 s{S_OFFB}, 0")
    a(f"v_lshrrev_b32 v{V_T2}, 3, v{V_LANE}")
    a(f"s_lshl_b32 s{S_T1}, s{S_B}, 5\ns_lshl_b32 s{S_T2}, s{S_ROLE}, 3\ns_add_u32 s{S_T1}, s{S_T1}, s{S_T2}")
    a(f"v_add_u32 v{V_T2}, s{S_T1}, v{V_T2}\nv_lshlrev_b32 v{V_T2}, 7, v{V_T2}")
    a(f"s_lshl_b32 s{S_T1}, s{S_ID}, 7")
    a(f"v_mov_b32 v{V_Y1}, s{S_T1}")
    if coop:
        a(f"s_lshl_b32 s{S_T1}, s{S_ROLE}, 6\ns_add_u32 s{S_T1}, s{S_T1}, s{S_H}")
        a(f"s_lshl_b32 s{S_QC}, s{S_T1}, 13")
        a(f"s_lshl_b32 s{S_T1}, s{S_T1}, 7")
        a(f"v_mov_b32 v{V_T1}, s{S_T1}")
    a(f"s_lshl_b32 s{S_T1}, s{S_H}, 8")
    a(f"s_sub_u32 s{S_T2}, 0x400000, s{S_T1}")
    a("s_waitcnt lgkmcnt(0)")
    if c.stamps:
        a(f"v_mov_b32 v{V_ST}, 0")
        a(f"v_writelane_b32 v{V_ST}, s{S_ST+4}, 16")
        rstamp(a, V_ST, 0)
    srd(a, SRD_B, P_WQ, f"s{S_T1}", None, f"s{S_T2}")
    srd(a, SRD_A, P_X, None, None, 8192 + 64)
    NW = 4 if coop else 32

    def wq_load(j):
        if coop:
            k = vm.op(f"buffer_load_dwordx4 v[{WB+4*j}:{WB+4*j+3}], v{V_OFF}, s[{SRD_B}:{SRD_B+3}], s{S_OFFA} offen {c.wqflags}")
            if j < NW - 1:
                a(f"s_add_u32 s{S_OFFA}, s{S_OFFA}, 32768")
        else:
            a(f"s_add_u32 s{S_T3}, s{S_OFFA}, s{S_OFFB}")
            k = vm.op(f"buffer_load_dwordx4 v[{WB+4*j}:{WB+4*j+3}], v{V_OFF}, s[{SRD_B}:{SRD_B+3}], s{S_T3} offen {c.wqflags}")
            if j < NW - 1:
                a(f"s_add_u32 s{S_OFFB}, s{S_OFFB}, 32768\ns_and_b32 s{S_OFFB}, s{S_OFFB}, 0xfffff")
        return k

    XS = (V_X0, V_X1)
    vm.op(f"buffer_load_ushort v{V_X0}, v{V_T0}, s[{SRD_A}:{SRD_A+3}], 0 offen {c.smflags}")
    kx = vm.op(f"buffer_load_ushort v{V_X1}, v{V_T3}, s[{SRD_A}:{SRD_A+3}], 0 offen {c.smflags}")
    wq_k = {}
    first = min(NW, c.wq_depth)
    head = min(first, 4)
    for j in range(head):
        wq_k[j] = wq_load(j)
    srd(a, SRD_C, P_WS, None, None, 0x8000)
    vm.op(f"buffer_load_dwordx2 v[{V_TF}:{V_TF+1}], v{V_T2}, s[{SRD_C}:{SRD_C+3}], 0 offen {c.smflags}")
    ke = vm.op(f"buffer_load_dwordx2 v[{V_TS}:{V_TS+1}], v{V_Y1}, s[{SRD_C}:{SRD_C+3}], 0 offen {c.smflags}")
    if coop:
        vm.op(f"buffer_load_dwordx2 v[{V_TQ}:{V_TQ+1}], v{V_T1}, s[{SRD_C}:{SRD_C+3}], 0 offen {c.smflags}")
        a(f"v_add_u32 v{V_T1}, 0x1000, v{V_T1}")
        ke = vm.op(f"buffer_load_dwordx2 v[{V_TQ2}:{V_TQ2+1}], v{V_T1}, s[{SRD_C}:{SRD_C+3}], 0 offen {c.smflags}")
    if c.touch:
        a(f"v_mov_b32 v{V_JUNK}, 0")
        a(f"v_mov_b32 v{V_T1}, 0")
        for p in (P_GW, P_W1, P_B1, P_W2, P_B2, P_WO, P_OUT):
            vm.op(f"global_load_ushort v{V_JUNK}, v{V_T1}, s[{p}:{p+1}] {c.smflags}")
        a(f"v_mov_b32 v{V_T1}, {WS_F}")
        vm.op(f"global_load_dword v{V_JUNK}, v{V_T1}, s[{P_WS}:{P_WS+1}] {c.smflags}")
        if c.touchv:
            a(f"s_lshl_b32 s{S_T0}, s{S_ID}, 20\ns_lshr_b32 s{S_T1}, s{S_ID}, 12")
            srd(a, SRD_E, P_V, f"s{S_T0}", f"s{S_T1}", 0x100000)
            a(f"v_mov_b32 v{V_T1}, 0")
            vm.op(f"buffer_load_dword v{V_JUNK}, v{V_T1}, s[{SRD_E}:{SRD_E+3}], 0 offen nt")
        if coop:
            a(f"v_mov_b32 v{V_T1}, {WS_Q}")
            vm.op(f"global_load_dword v{V_JUNK}, v{V_T1}, s[{P_WS}:{P_WS+1}] {c.smflags}")
    for j in range(head, first):
        wq_k[j] = wq_load(j)
    if c.stamps:
        rstamp(a, V_ST, 1)
    make_masks(a, V_LANE, V_MASK, V_T1, V_T2)

    if coop:
        a(f"v_mov_b32 v{V_T2}, 0\nv_mov_b32 v{V_T3}, {L_CNT}")
        a(f"ds_write_b32 v{V_T3}, v{V_T2}")
        for r in range(32):
            a(f"v_mov_b32 v{V_QA+r}, 0")
        a("s_waitcnt lgkmcnt(0)\ns_barrier")
        vm.wait(max(kx, wq_k[3]))
        if c.stamps:
            rstamp(a, V_ST, 2)
        for x in XS:
            a(f"v_lshl_or_b32 v{x}, v{x}, 16, v{x}")
        seq = [(j, bb) for j in range(4) for bb in range(8)]
        build_a(V_A0, XS[0], 0)
        for k, (j, bb) in enumerate(seq):
            A, An = (V_A0, V_A1) if k % 2 == 0 else (V_A1, V_A0)
            if k + 1 < len(seq):
                jn, bn = seq[k + 1]
                build_a(An, XS[bn >> 2], 4 * (bn & 3) + jn)
            acc = V_QA + 4 * bb
            a(f"v_mfma_f32_16x16x32_bf16 v[{acc}:{acc+3}], v[{A}:{A+3}], v[{WB+4*j}:{WB+4*j+3}], v[{acc}:{acc+3}]")
        if c.stamps:
            rstamp(a, V_ST, 3)
        a(f"v_lshlrev_b32 v{V_T0}, 5, v{V_C}\nv_lshl_add_u32 v{V_T0}, v{V_G}, 4, v{V_T0}")
        a(f"s_lshl_b32 s{S_T0}, s{S_ROLE}, 12")
        a(f"v_add_u32 v{V_T0}, s{S_T0}, v{V_T0}")
        a("s_mov_b32 exec_lo, -1\ns_mov_b32 exec_hi, 0")
        for bb in range(8):
            a(f"ds_write_b128 v{V_T0}, v[{V_QA+4*bb}:{V_QA+4*bb+3}] offset:{L_PQ + 512*bb}")
        a("s_mov_b64 exec, 1")
        a(f"v_mov_b32 v{V_T2}, 1")
        a(f"ds_add_u32 v{V_T3}, v{V_T2}")
        a("s_mov_b64 exec, -1")
        a(f"s_lshl_b32 s{S_T0}, s{S_B}, 10\ns_add_u32 s{S_QC}, s{S_QC}, s{S_T0}")
        a(f"v_lshlrev_b32 v{V_X1}, 4, v{V_LANE}\nv_add_u32 v{V_X1}, s{S_QC}, v{V_X1}")
        a(f"v_lshlrev_b32 v{V_T0}, 3, v{V_LANE}")
        a(f"s_lshl_b32 s{S_T0}, s{S_ROLE}, 10")
        a(f"v_add_u32 v{V_T0}, s{S_T0}, v{V_T0}")
        vm.wait(ke)
        for t in (V_TQ, V_TQ2, V_TF, V_TS):
            a(f"v_add_u32 v{t}, 1, v{t}\nv_add_u32 v{t+1}, 1, v{t+1}")
        a(f"s_mov_b32 s{S_T0}, {WS_Q}")
        srd(a, SRD_D, P_WS, f"s{S_T0}", None, 0x200000)
        a(f"s_mov_b32 s{S_CNT}, {SPIN_LIMIT}")
        a("L_qsync:")
        a(f"ds_read_b32 v{V_T2}, v{V_T3}")
        a(f"s_sub_u32 s{S_CNT}, s{S_CNT}, 1\ns_cbranch_scc1 L_qsync_out")
        a("s_waitcnt lgkmcnt(0)")
        a(f"v_readfirstlane_b32 s{S_T1}, v{V_T2}")
        a(f"s_cmp_lt_u32 s{S_T1}, 4\ns_cbranch_scc1 L_qsync")
        a("L_qsync_out:")
        for be in range(2):
            for w in range(4):
                a(f"ds_read_b64 v[{E+8*be+2*w}:{E+8*be+2*w+1}], v{V_T0} offset:{L_PQ + 4096*w + 512*be}")
        a(f"v_readfirstlane_b32 s{S_TS}, v{V_TS}\nv_readfirstlane_b32 s{S_TS+1}, v{V_TS+1}")
        a("s_waitcnt lgkmcnt(0)")
        for be in range(2):
            B = E + 8 * be
            for r in range(2):
                a(f"v_add_f32 v{B+r}, v{B+r}, v{B+2+r}\nv_add_f32 v{B+4+r}, v{B+4+r}, v{B+6+r}")
            for r in range(2):
                a(f"v_add_f32 v{B+r}, v{B+r}, v{B+4+r}")
            granule(G0 + 4 * be, B, B + 1, V_TQ2 if be else V_TQ)
        a(f"buffer_store_dwordx4 v[{G0}:{G0+3}], v{V_X1}, s[{SRD_D}:{SRD_D+3}], 0 offen {sc}")
        a(f"s_mov_b32 s{S_T0}, 0x40000")
        a(f"buffer_store_dwordx4 v[{G0+4}:{G0+7}], v{V_X1}, s[{SRD_D}:{SRD_D+3}], s{S_T0} offen {sc}")
        if c.stamps:
            rstamp(a, V_ST, 4)
        a(f"s_lshl_b32 s{S_T0}, s{S_ID}, 13\ns_lshl_b32 s{S_T1}, s{S_ROLE}, 11\ns_add_u32 s{S_T0}, s{S_T0}, s{S_T1}")
        a(f"v_lshlrev_b32 v{V_T0}, 4, v{V_LANE}\nv_add_u32 v{V_T0}, s{S_T0}, v{V_T0}")
        a(f"s_mov_b32 s{S_CNT}, {SPIN_LIMIT}")
        a("L_qpoll:")
        a(f"buffer_load_dwordx4 v[{E}:{E+3}], v{V_T0}, s[{SRD_D}:{SRD_D+3}], 0 offen {sc}")
        a(f"buffer_load_dwordx4 v[{E+4}:{E+7}], v{V_T0}, s[{SRD_D}:{SRD_D+3}], 0 offen offset:1024 {sc}")
        a(f"s_sub_u32 s{S_CNT}, s{S_CNT}, 1\ns_cbranch_scc1 L_qpoll_out")
        a("s_waitcnt vmcnt(0)")
        tags_bad((E, E + 4))
        if c.qsleep:
            a("s_cbranch_vccz L_qpoll_out")
            a(f"s_sleep {c.qsleep}")
            a("s_branch L_qpoll")
        else:
            a("s_cbranch_vccnz L_qpoll")
        a("L_qpoll_out:")
        if c.stamps:
            rstamp(a, V_ST, 7)
        a(f"v_add_f32 v{E}, v{E}, v{E+4}\nv_add_f32 v{E+1}, v{E+2}, v{E+6}")
        a(f"v_lshlrev_b32 v{V_T0}, 3, v{V_LANE}")
        a(f"s_lshl_b32 s{S_T0}, s{S_ROLE}, 9")
        a(f"v_add_u32 v{V_T0}, s{S_T0}, v{V_T0}")
        a(f"ds_write_b64 v{V_T0}, v[{E}:{E+1}] offset:{L_QP}")
        a("s_waitcnt lgkmcnt(0)\ns_barrier")
        vm.done = vm.issued
    else:
        for r in range(4):
            a(f"v_mov_b32 v{V_ACC+r}, 0")
        vm.wait(kx)
        if c.stamps:
            rstamp(a, V_ST, 2)
        for x in XS:
            a(f"v_lshl_or_b32 v{x}, v{x}, 16, v{x}")
        build_a(V_A0, XS[0], 0)
        nxt = first
        for j in range(32):
            A, An = (V_A0, V_A1) if j % 2 == 0 else (V_A1, V_A0)
            if j < 31:
                build_a(An, XS[(j + 1) >> 4], (j + 1) & 15)
            vm.wait(wq_k[j])
            if nxt < 32:
                wq_k[nxt] = wq_load(nxt)
                nxt += 1
            if c.stamps and j in (0, 8, 16, 24, 31):
                rstamp(a, V_ST, 3 + (0, 8, 16, 24, 31).index(j))
            a(f"v_mfma_f32_16x16x32_bf16 v[{V_ACC}:{V_ACC+3}], v[{A}:{A+3}], v[{WB+4*j}:{WB+4*j+3}], v[{V_ACC}:{V_ACC+3}]")
        a(f"v_lshlrev_b32 v{V_T0}, 5, v{V_C}\nv_lshl_add_u32 v{V_T0}, v{V_G}, 4, v{V_T0}")
        a(f"s_lshl_b32 s{S_T0}, s{S_ROLE}, 9")
        a(f"v_add_u32 v{V_T0}, s{S_T0}, v{V_T0}")
        a("s_mov_b32 exec_lo, -1\ns_mov_b32 exec_hi, 0")
        a(f"ds_write_b128 v{V_T0}, v[{V_ACC}:{V_ACC+3}] offset:{L_QP}")
        a("s_mov_b64 exec, -1")
        a("s_waitcnt lgkmcnt(0)\ns_barrier")
        vm.wait(vm.issued - 1)
        for t in (V_TF, V_TS):
            a(f"v_add_u32 v{t}, 1, v{t}\nv_add_u32 v{t+1}, 1, v{t+1}")
        a(f"v_readfirstlane_b32 s{S_TS}, v{V_TS}\nv_readfirstlane_b32 s{S_TS+1}, v{V_TS+1}")
    if c.stamps:
        rstamp(a, V_ST, 8)

    a(f"s_lshl_b32 s{S_T0}, s{S_B}, 10")
    srd(a, SRD_A, P_X, f"s{S_T0}", None, 1024 + 64)
    VB = V_E
    a(f"v_lshlrev_b32 v{V_T0}, 4, v{V_LANE}")
    a(f"buffer_load_dwordx4 v[{VB}:{VB+3}], v{V_T0}, s[{SRD_A}:{SRD_A+3}], 0 offen {c.smflags}")
    a(f"s_lshl_b32 s{S_T1}, s{S_H}, 5")
    a(f"v_lshlrev_b32 v{V_T1}, 1, v{V_C}")
    a(f"buffer_load_ushort v{V_H}, v{V_T1}, s[{SRD_A}:{SRD_A+3}], s{S_T1} offen {c.smflags}")
    srd(a, SRD_A, P_GW, None, None, 1024)
    a(f"buffer_load_dwordx4 v[{VB+8}:{VB+11}], v{V_T0}, s[{SRD_A}:{SRD_A+3}], 0 offen {c.smflags}")
    a(f"s_mul_i32 s{S_T1}, s{S_ROLE}, 896")
    a(f"v_lshlrev_b32 v{V_T1}, 1, v{V_LANE}")
    for base, ptr in ((V_W1, P_W1), (V_B1, P_B1), (V_W2, P_W2)):
        srd(a, SRD_A, ptr, None, None, 3584 + 64)
        for t in range(7):
            a(f"buffer_load_ushort v{base+t}, v{V_T1}, s[{SRD_A}:{SRD_A+3}], s{S_T1} offen offset:{128*t} {c.smflags}")
    srd(a, SRD_A, P_B2, None, None, 64)
    a(f"v_mov_b32 v{V_T2}, 0")
    a(f"buffer_load_ushort v{V_Y2}, v{V_T2}, s[{SRD_A}:{SRD_A+3}], 0 offen {c.smflags}")
    a("s_waitcnt vmcnt(0)")
    if c.stamps:
        rstamp(a, V_ST, 9)

    a(f"s_lshl_b32 s{S_T0}, s{S_H}, 17")
    srd(a, SRD_B, P_WO, f"s{S_T0}", None, 131072)
    a(f"v_lshlrev_b32 v{V_OFF}, 10, v{V_G}\nv_lshl_add_u32 v{V_OFF}, v{V_C}, 4, v{V_OFF}")
    a(f"s_lshl_b32 s{S_T0}, s{S_ROLE}, 8")
    a(f"v_add_u32 v{V_OFF}, s{S_T0}, v{V_OFF}")
    a(f"s_lshl_b32 s{S_OFFA}, s{S_B}, 14" if c.roto else f"s_mov_b32 s{S_OFFA}, 0")
    for j in range(32 if not (c.auxoff & 1) else 0):
        if j >= c.wo_depth:
            a(f"s_waitcnt vmcnt({c.wo_depth-1})")
        a(f"buffer_load_dwordx4 v[{WB+4*j}:{WB+4*j+3}], v{V_OFF}, s[{SRD_B}:{SRD_B+3}], s{S_OFFA} offen {c.woflags}")
        if j < 31:
            a(f"s_add_u32 s{S_OFFA}, s{S_OFFA}, 4096\ns_and_b32 s{S_OFFA}, s{S_OFFA}, 0x1ffff")
    if c.stamps:
        rstamp(a, V_ST, 10)

    def unpack8(src, dst):
        for r in range(4):
            a(f"v_lshlrev_b32 v{dst+2*r}, 16, v{src+r}")
            a(f"v_and_b32 v{dst+2*r+1}, s{S_HI16}, v{src+r}")

    def sum8(src, dst):
        a(f"v_add_f32 v{dst}, v{src}, v{src+1}")
        for e in range(2, 8):
            a(f"v_add_f32 v{dst}, v{dst}, v{src+e}")

    U = V_E + 12
    unpack8(VB, U)
    unpack8(VB + 8, U + 8)
    for e in range(8):
        a(f"v_mul_f32 v{U+e}, v{U+e}, v{U+8+e}")
    for r in range(4):
        a(f"v_cvt_pk_bf16_f32 v{U+8+r}, v{U+2*r}, v{U+2*r+1}")
    unpack8(U + 8, U)
    sum8(U, V_GATE)
    reduce64(a, "v_add_f32", V_GATE, V_T0)
    rne_bf16(a, V_GATE)
    a(f"v_mul_f32 v{V_GATE}, s{S_LOG2E}, v{V_GATE}")
    a(f"v_sub_f32 v{V_GATE}, 0, v{V_GATE}")
    a(f"v_exp_f32 v{V_GATE}, v{V_GATE}")
    a(f"v_add_f32 v{V_GATE}, 1.0, v{V_GATE}")
    a(f"v_rcp_f32 v{V_GATE}, v{V_GATE}")
    rne_bf16(a, V_GATE)

    unpack8(VB, U)
    sum8(U, V_T2)
    reduce64(a, "v_add_f32", V_T2, V_T0)
    a(f"v_mul_f32 v{V_T2}, {f2u(1/512):#x}, v{V_T2}")
    for e in range(8):
        a(f"v_sub_f32 v{U+e}, v{U+e}, v{V_T2}")
        a(f"v_mul_f32 v{U+e}, v{U+e}, v{U+e}")
    sum8(U, V_T3)
    reduce64(a, "v_add_f32", V_T3, V_T0)
    a(f"v_mul_f32 v{V_T3}, {f2u(1/512):#x}, v{V_T3}")
    rne_bf16(a, V_T2)
    rne_bf16(a, V_T3)
    a(f"v_add_f32 v{V_T3}, {f2u(1e-5):#x}, v{V_T3}")
    rne_bf16(a, V_T3)
    a(f"v_sqrt_f32 v{V_T3}, v{V_T3}")
    rne_bf16(a, V_T3)
    a(f"v_lshlrev_b32 v{V_H}, 16, v{V_H}")
    a(f"v_sub_f32 v{V_H}, v{V_H}, v{V_T2}")
    rne_bf16(a, V_H)
    div(a, V_H, V_H, V_T3, V_T0, V_T1)
    rne_bf16(a, V_H)
    if c.stamps:
        rstamp(a, V_ST, 11)

    for t in range(7):
        for base in (V_W1, V_B1, V_W2):
            a(f"v_lshlrev_b32 v{base+t}, 16, v{base+t}")
    kb = 0.7978845608028654
    c1 = -2.0 * kb * 1.4426950408889634
    a(f"v_mov_b32 v{V_C1}, {f2u(c1):#x}\nv_mov_b32 v{V_C2}, {f2u(c1 * 0.044715):#x}")
    a(f"v_mov_b32 v{V_Y1}, 0")
    a(f"v_mov_b32 v{V_T3}, 0")
    a(f"s_mov_b32 s{S_CNT}, {7 if not (c.auxoff & 2) else 1}")
    a("L_mlp:")
    for k in range(8):
        ua, ub, za, zb, p = E, E + 1, E + 2, E + 3, E + 4
        i0, i1 = 2 * k, 2 * k + 1

        def round2():
            a(f"v_cvt_pk_bf16_f32 v{p}, v{ua}, v{ub}")
            a(f"v_lshlrev_b32 v{ua}, 16, v{p}")
            a(f"v_and_b32 v{ub}, s{S_HI16}, v{p}")
        a(f"v_mul_f32_dpp v{ua}, v{V_W1}, v{V_H} row_newbcast:{i0} {DPPF}")
        a(f"v_mul_f32_dpp v{ub}, v{V_W1}, v{V_H} row_newbcast:{i1} {DPPF}")
        round2()
        a(f"v_add_f32_dpp v{ua}, v{V_B1}, v{ua} row_newbcast:{i0} {DPPF}")
        a(f"v_add_f32_dpp v{ub}, v{V_B1}, v{ub} row_newbcast:{i1} {DPPF}")
        round2()
        a(f"v_mul_f32 v{za}, v{ua}, v{ua}\nv_mul_f32 v{zb}, v{ub}, v{ub}")
        a(f"v_fma_f32 v{za}, v{za}, v{V_C2}, v{V_C1}\nv_fma_f32 v{zb}, v{zb}, v{V_C2}, v{V_C1}")
        a(f"v_mul_f32 v{za}, v{za}, v{ua}\nv_mul_f32 v{zb}, v{zb}, v{ub}")
        a(f"v_exp_f32 v{za}, v{za}\nv_exp_f32 v{zb}, v{zb}")
        a(f"v_add_f32 v{za}, 1.0, v{za}\nv_add_f32 v{zb}, 1.0, v{zb}")
        a(f"v_rcp_f32 v{za}, v{za}\nv_rcp_f32 v{zb}, v{zb}")
        a(f"v_mul_f32 v{ua}, v{ua}, v{za}\nv_mul_f32 v{ub}, v{ub}, v{zb}")
        round2()
        a(f"v_fmac_f32_dpp v{V_Y1}, v{V_W2}, v{ua} row_newbcast:{i0} {DPPF}")
        a(f"v_fmac_f32_dpp v{V_T3}, v{V_W2}, v{ub} row_newbcast:{i1} {DPPF}")
    for base in (V_W1, V_B1, V_W2):
        for t in range(6):
            a(f"v_mov_b32 v{base+t}, v{base+t+1}")
    a(f"s_sub_u32 s{S_CNT}, s{S_CNT}, 1\ns_cmp_lg_u32 s{S_CNT}, 0\ns_cbranch_scc1 L_mlp")
    a(f"v_add_f32 v{V_Y1}, v{V_Y1}, v{V_T3}")
    cross_rows(a, "v_add_f32", V_Y1, V_T0)
    a(f"v_lshlrev_b32 v{V_T0}, 2, v{V_C}")
    a(f"s_lshl_b32 s{S_T0}, s{S_ROLE}, 6")
    a(f"v_add_u32 v{V_T0}, s{S_T0}, v{V_T0}")
    a("s_mov_b64 exec, 0xffff")
    a(f"ds_write_b32 v{V_T0}, v{V_Y1} offset:{L_YP}")
    a("s_mov_b64 exec, -1")
    if c.stamps:
        rstamp(a, V_ST, 12)

    V_OA, V_OB, V_PUB, V_IN, V_TW, V_TR = V_X0, V_H, V_X1, V_OFF, V_C1, V_C2
    for be, dst in ((0, V_OA), (1, V_OB)):
        rot_index(dst, be, c.roto)
        a(f"v_lshlrev_b32 v{dst}, 4, v{dst}\nv_lshl_add_u32 v{dst}, v{V_G}, 2, v{dst}")
    a(f"v_lshrrev_b32 v{V_PUB}, 3, v{V_LANE}\nv_lshlrev_b32 v{V_PUB}, 12, v{V_PUB}")
    a(f"v_and_b32 v{V_T0}, 7, v{V_LANE}\nv_lshlrev_b32 v{V_T0}, 4, v{V_T0}")
    a(f"s_lshl_b32 s{S_T0}, s{S_ROLE}, 15\ns_lshl_b32 s{S_T1}, s{S_H}, 7\ns_add_u32 s{S_T0}, s{S_T0}, s{S_T1}")
    a(f"v_add3_u32 v{V_PUB}, v{V_PUB}, v{V_T0}, s{S_T0}")
    a(f"s_lshl_b32 s{S_T0}, s{S_ROLE}, 9\ns_add_u32 s{S_T0}, s{S_T0}, {L_TR}")
    a(f"v_lshlrev_b32 v{V_TW}, 5, v{V_C}\nv_lshl_add_u32 v{V_TW}, v{V_G}, 4, v{V_TW}\nv_add_u32 v{V_TW}, s{S_T0}, v{V_TW}")
    a(f"v_lshlrev_b32 v{V_TR}, 3, v{V_LANE}\nv_add_u32 v{V_TR}, s{S_T0}, v{V_TR}")
    a(f"s_lshl_b32 s{S_T0}, s{S_B}, 17\ns_add_u32 s{S_T0}, s{S_T0}, {WS_F}")
    srd(a, SRD_D, P_WS, f"s{S_T0}", None, 0x20000)
    a(f"s_lshl_b32 s{S_T0}, s{S_H}, 12")
    a(f"v_lshlrev_b32 v{V_IN}, 4, v{V_LANE}\nv_add_u32 v{V_IN}, s{S_T0}, v{V_IN}")
    a(f"s_lshl_b32 s{S_T0}, s{S_B}, 10\ns_lshl_b32 s{S_T1}, s{S_H}, 5\ns_add_u32 s{S_T0}, s{S_T0}, s{S_T1}")
    srd(a, SRD_E, P_OUT, f"s{S_T0}", None, 64)
    for r in range(4):
        a(f"v_mov_b32 v{V_ACC+r}, 0")
    a(f"v_mov_b32 v{V_T3}, 0")
    a(f"v_mov_b32 v{G0+1}, v{V_TF}\nv_mov_b32 v{G0+3}, v{V_TF+1}")
    a("s_waitcnt vmcnt(0) lgkmcnt(0)")
    a("s_barrier")
    if c.stamps:
        rstamp(a, V_ST, 13)

    MV, LV, OV = E, E + 4, E + 8
    a(f"ds_read_b128 v[{MV}:{MV+3}], v{V_T3} offset:{L_ML}")
    a(f"ds_read_b128 v[{LV}:{LV+3}], v{V_T3} offset:{L_ML+16}")
    for w in range(4):
        for be in range(2):
            a(f"ds_read_b32 v{OV+2*w+be}, v{V_OB if be else V_OA} offset:{L_OP + 512*w}")
    a("s_waitcnt lgkmcnt(8)")
    a(f"v_max3_f32 v{V_T0}, v{MV}, v{MV+1}, v{MV+2}\nv_max_f32 v{V_T0}, v{V_T0}, v{MV+3}")
    for w in range(4):
        a(f"v_sub_f32 v{MV+w}, v{MV+w}, v{V_T0}")
    for w in range(4):
        a(f"v_mul_f32 v{MV+w}, s{S_LOG2E}, v{MV+w}")
    for w in range(4):
        a(f"v_exp_f32 v{MV+w}, v{MV+w}")
    a(f"v_mul_f32 v{V_T1}, v{MV}, v{LV}")
    for w in range(1, 4):
        a(f"v_fmac_f32 v{V_T1}, v{MV+w}, v{LV+w}")
    a(f"v_rcp_f32 v{V_T2}, v{V_T1}")
    a(f"v_fma_f32 v{V_T0}, -v{V_T1}, v{V_T2}, 1.0")
    a(f"v_fmac_f32 v{V_T2}, v{V_T0}, v{V_T2}")
    a("s_waitcnt lgkmcnt(0)")
    for be in range(2):
        a(f"v_mul_f32 v{LV+be}, v{MV}, v{OV+be}")
    for w in range(1, 4):
        for be in range(2):
            a(f"v_fmac_f32 v{LV+be}, v{MV+w}, v{OV+2*w+be}")
    for be in range(2):
        a(f"v_mul_f32 v{LV+be}, v{LV+be}, v{V_T2}")
    for be in range(2):
        a(f"v_cvt_pk_bf16_f32 v{LV+be}, v{LV+be}, v{LV+be}")
    srcs = (LV, LV + 1)
    build_a(V_A0, srcs[0], 0)
    for j in range(32):
        A, An = (V_A0, V_A1) if j % 2 == 0 else (V_A1, V_A0)
        if j < 31:
            build_a(An, srcs[(j + 1) >> 4], (j + 1) & 15)
        a(f"v_mfma_f32_16x16x32_bf16 v[{V_ACC}:{V_ACC+3}], v[{A}:{A+3}], v[{WB+4*j}:{WB+4*j+3}], v[{V_ACC}:{V_ACC+3}]")
    a("s_mov_b32 exec_lo, -1\ns_mov_b32 exec_hi, 0")
    a(f"ds_write_b128 v{V_TW}, v[{V_ACC}:{V_ACC+3}]")
    a("s_mov_b64 exec, -1")
    a(f"ds_read_b64 v[{E}:{E+1}], v{V_TR}")
    a("s_waitcnt lgkmcnt(0)")
    a(f"v_mov_b32 v{G0}, v{E}\nv_mov_b32 v{G0+2}, v{E+1}")
    a(f"buffer_store_dwordx4 v[{G0}:{G0+3}], v{V_PUB}, s[{SRD_D}:{SRD_D+3}], 0 offen {sc}")
    if c.stamps:
        rstamp(a, V_ST, 14)
        a(f"s_cmp_eq_u32 s{S_ROLE}, 0\ns_cbranch_scc1 L_consumer")
        dump_stamps(a, V_ST, WS_ST + 0x100000, V_T0)
        a("s_endpgm")
        a("L_consumer:")
    else:
        a(f"s_cmp_lg_u32 s{S_ROLE}, 0\ns_cbranch_scc1 L_done")

    YA = E + 24
    a(f"v_and_b32 v{V_T0}, 7, v{V_LANE}\nv_lshlrev_b32 v{V_T0}, 3, v{V_T0}")
    for w in range(4):
        a(f"ds_read_b64 v[{MV+2*w}:{MV+2*w+1}], v{V_T0} offset:{L_YP + 64*w}")
    a(f"v_lshlrev_b32 v{V_Y2}, 16, v{V_Y2}")
    a(f"v_sub_f32 v{V_T1}, 1.0, v{V_GATE}")
    rne_bf16(a, V_T1)
    a("s_waitcnt lgkmcnt(0)")
    for r in range(2):
        a(f"v_add_f32 v{MV+r}, v{MV+r}, v{MV+2+r}\nv_add_f32 v{MV+4+r}, v{MV+4+r}, v{MV+6+r}")
        a(f"v_add_f32 v{YA+r}, v{MV+r}, v{MV+4+r}")
        rne_bf16(a, YA + r)
        a(f"v_add_f32 v{YA+r}, v{YA+r}, v{V_Y2}")
        rne_bf16(a, YA + r)
        a(f"v_mul_f32 v{YA+r}, v{V_T1}, v{YA+r}")
        rne_bf16(a, YA + r)
    IN = E
    a(f"s_mov_b32 s{S_CNT}, {SPIN_LIMIT}")
    a("L_poll:")
    for t in range(4):
        a(f"buffer_load_dwordx4 v[{IN+4*t}:{IN+4*t+3}], v{V_IN}, s[{SRD_D}:{SRD_D+3}], 0 offen offset:{1024*t} {sc}")
    a(f"s_sub_u32 s{S_CNT}, s{S_CNT}, 1\ns_cbranch_scc1 L_poll_out")
    a("s_waitcnt vmcnt(0)")
    tags_bad((IN, IN + 4, IN + 8, IN + 12))
    if c.fsleep:
        a("s_cbranch_vccz L_poll_out")
        a(f"s_sleep {c.fsleep}")
        a("s_branch L_poll")
    else:
        a("s_cbranch_vccnz L_poll")
    a("L_poll_out:")
    for r in (0, 2):
        a(f"v_add_f32 v{IN+r}, v{IN+r}, v{IN+4+r}\nv_add_f32 v{IN+8+r}, v{IN+8+r}, v{IN+12+r}")
    for r in (0, 2):
        a(f"v_add_f32 v{IN+r}, v{IN+r}, v{IN+8+r}")
    for r in (0, 2):
        a(f"v_add_f32_dpp v{IN+r}, v{IN+r}, v{IN+r} row_ror:8 {DPPF}")
    for r in (0, 2):
        cross_rows(a, "v_add_f32", IN + r, V_T0)
    for k, r in enumerate((0, 2)):
        rne_bf16(a, IN + r)
        a(f"v_mul_f32 v{IN+r}, v{V_GATE}, v{IN+r}")
        rne_bf16(a, IN + r)
        a(f"v_add_f32 v{IN+r}, v{IN+r}, v{YA+k}")
    if c.tripwire:
        rstamp(a, V_ST, 15)
        a(f"v_readlane_b32 s{S_T0}, v{V_ST}, 16")
        a(f"s_sub_u32 s{S_T0}, s{S_ST}, s{S_T0}")
        a(f"s_cmp_gt_u32 s{S_T0}, {c.tripwire}\ns_cbranch_scc0 L_notrip")
        a(f"s_cmp_eq_u32 s{S_ID}, {c.tripid}\ns_cbranch_scc0 L_notrip")
        a(f"v_cvt_f32_u32 v{IN}, s{S_T0}\nv_mov_b32 v{IN+2}, v{IN}")
        a("L_notrip:")
    a(f"v_cvt_pk_bf16_f32 v{IN}, v{IN}, v{IN+2}")
    a(f"v_lshlrev_b32 v{V_T0}, 2, v{V_LANE}")
    a("s_mov_b64 exec, 0xff")
    a(f"buffer_store_dword v{IN}, v{V_T0}, s[{SRD_E}:{SRD_E+3}], 0 offen")
    a("s_mov_b64 exec, 1")
    a(f"s_lshl_b32 s{S_T0}, s{S_ID}, 7")
    a(f"v_mov_b32 v{V_T0}, s{S_T0}")
    a(f"buffer_store_dwordx2 v[{V_TS}:{V_TS+1}], v{V_T0}, s[{SRD_C}:{SRD_C+3}], 0 offen {sc}")
    if c.stamps:
        a("s_mov_b64 exec, -1")
        rstamp(a, V_ST, 15)
        dump_stamps(a, V_ST, WS_ST + 0x100000, V_T0)
        if c.dbgout:
            a(f"s_cmp_lg_u32 s{S_ID}, {c.dbgout-1}\ns_cbranch_scc1 L_done")
            a(f"v_readlane_b32 s{S_T0}, v{V_ST}, 16")
            a(f"v_subrev_u32 v{V_T1}, s{S_T0}, v{V_ST}")
            a(f"v_lshlrev_b32 v{V_T0}, 2, v{V_LANE}")
            a("s_mov_b64 exec, 0xffff")
            a(f"global_store_dword v{V_T0}, v{V_T1}, s[{P_DBG}:{P_DBG+1}]")


if __name__ == "__main__":
    out = sys.argv[1]
    kw = {}
    for s in sys.argv[2:]:
        k, v = s.split("=")
        kw[k] = int(v) if v.lstrip("-").isdigit() else v.replace("_", " ") if k.endswith("flags") or k == "sc" else v
    open(out, "w").write(gen(**kw))
```

```python
import os, struct, sys
from asmlib import Asm

NAME = "gated_mix__mha_block_cached__mixer_token_mlp__decode_kernel"
HEAD = os.path.join(os.path.dirname(os.path.abspath(__file__)), "head.txt")
SPIN_LIMIT = 0x40000
DPPF = "row_mask:0xf bank_mask:0xf"

L_QP, L_OP, L_ML, L_YP = 0, 2048, 4096, 4352
L_CNT, L_TR, L_SC = 4608, 4864, 8192
L_PQ = L_SC
LDS_BYTES = 8192 + 16384
WS_E, WS_F, WS_Q = 0x0, 0x100000, 0x200000
WS_ST = 0x800000

S_WG, S_WAVE = 2, 3
P_X, P_K, P_V, P_WQ, P_WO, P_BX, P_W1, P_B1 = 8, 10, 12, 14, 16, 18, 20, 22
P_W2, P_B2, P_GW, P_OUT, P_DBG, P_WS = 24, 26, 28, 30, 32, 34
S_B, S_H, S_ROLE = 36, 37, 38
S_HI16, S_MI1, S_MI0 = 39, 40, 42
S_LOG2E, S_SCALE = 44, 45
S_T0, S_T1, S_T2, S_T3 = 46, 47, 48, 49
S_CNT, S_ID = 50, 51
SRD_A, SRD_B, SRD_C, SRD_D, SRD_E = 52, 56, 60, 64, 68
S_OFFA, S_OFFB = 72, 73
S_TS = 74
S_ST = 76
S_QC = 82


def f2u(x):
    return struct.unpack("<I", struct.pack("<f", x))[0]


def bitrev4(j):
    return ((j & 1) << 3) | ((j & 2) << 1) | ((j & 4) >> 1) | ((j & 8) >> 3)


class Cfg:
    D = 5
    D0 = 6
    DP = 6
    PF = 48
    DT = 8
    NT = 2
    kvflags = "nt"
    prio = 2
    wo_depth = 2
    wq_depth = 6
    wqflags = ""
    woflags = ""
    smflags = ""
    sc = "sc1"
    rot = 1
    roto = 1
    touchv = 1
    remap = 1
    qmode = "local"
    qsleep = 0
    fsleep = 0
    touch = 1
    stamps = 0
    auxoff = 0
    quick = 1
    tripwire = 0
    tripid = 0
    dbgout = 0


def srd(a, reg, ptr, add_lo=None, add_hi=None, size=0):
    if add_lo is None:
        a(f"s_mov_b32 s{reg}, s{ptr}\ns_mov_b32 s{reg+1}, s{ptr+1}")
    else:
        a(f"s_add_u32 s{reg}, s{ptr}, {add_lo}")
        a(f"s_addc_u32 s{reg+1}, s{ptr+1}, {add_hi if add_hi is not None else 0}")
    a(f"s_mov_b32 s{reg+2}, {size}\ns_mov_b32 s{reg+3}, 0x20000")


def cross_rows(a, op, v, t):
    a(f"v_mov_b32 v{t}, v{v}")
    a(f"v_permlane16_swap_b32 v{v}, v{t}")
    a(f"{op} v{v}, v{v}, v{t}")
    a(f"v_mov_b32 v{t}, v{v}")
    a(f"v_permlane32_swap_b32 v{v}, v{t}")
    a(f"{op} v{v}, v{v}, v{t}")


def reduce64(a, op, v, t):
    for n in (8, 4, 2, 1):
        a(f"{op}_dpp v{v}, v{v}, v{v} row_ror:{n} {DPPF}")
    cross_rows(a, op, v, t)


def rne_bf16(a, v):
    a(f"v_cvt_pk_bf16_f32 v{v}, v{v}, v{v}")
    a(f"v_and_b32 v{v}, s{S_HI16}, v{v}")


def make_masks(a, vlane, m0, t0, t1):
    a(f"v_and_b32 v{t0}, 15, v{vlane}")
    a(f"v_and_b32 v{t1}, 1, v{t0}")
    a(f"v_lshlrev_b32 v{t1}, 4, v{t1}")
    a(f"v_mov_b32 v{m0}, 0xffff")
    a(f"v_lshlrev_b32 v{t1}, v{t1}, v{m0}")
    a(f"v_lshrrev_b32 v{t0}, 1, v{t0}")
    for r in range(4):
        a(f"v_cmp_eq_u32 vcc, {r}, v{t0}")
        a(f"v_cndmask_b32 v{m0+r}, 0, v{t1}, vcc")


def div(a, dst, num, den, t0, t1):
    a(f"v_rcp_f32 v{t0}, v{den}")
    a(f"v_mul_f32 v{t1}, v{num}, v{t0}")
    a(f"v_fma_f32 v{dst}, -v{den}, v{t1}, v{num}")
    a(f"v_fma_f32 v{dst}, v{dst}, v{t0}, v{t1}")


def rstamp(a, v, idx):
    a(f"s_memrealtime s[{S_ST}:{S_ST+1}]\ns_waitcnt lgkmcnt(0)")
    a(f"v_writelane_b32 v{v}, s{S_ST}, {idx}")


def dump_stamps(a, v, region, t):
    a(f"s_lshl_b32 s{S_ST+2}, s{S_ID}, 2\ns_add_u32 s{S_ST+2}, s{S_ST+2}, s{S_ROLE}\ns_lshl_b32 s{S_ST+2}, s{S_ST+2}, 8")
    a(f"s_add_u32 s{S_ST+2}, s{S_ST+2}, {region}")
    a(f"v_lshlrev_b32 v{t}, 2, v0\nv_add_u32 v{t}, s{S_ST+2}, v{t}")
    a(f"global_store_dword v{t}, v{v}, s[{P_WS}:{P_WS+1}]")


class VM:
    def __init__(self, a):
        self.a, self.issued, self.done = a, 0, 0

    def op(self, text):
        self.a(text)
        self.issued += 1
        return self.issued - 1

    def wait(self, k):
        if self.done <= k:
            self.a(f"s_waitcnt vmcnt({min(63, self.issued - k - 1)})")
            self.done = max(self.done, k + 1 if self.issued - k - 1 <= 63 else self.issued - 63)

    def gate(self, depth):
        k = self.issued - depth
        if k >= 0:
            self.wait(k)


def gen(**kw):
    c = Cfg()
    for k, v in kw.items():
        assert hasattr(c, k), k
        setattr(c, k, v)
    a = Asm()
    a(f".amdgcn_target \"amdgcn-amd-amdhsa--gfx950\"\n.text\n.globl {NAME}\n.p2align 8\n.type {NAME},@function\n{NAME}:")
    a(f"s_cmp_ge_u32 s{S_WG}, 256\ns_cbranch_scc1 L_done")
    a("s_load_dwordx16 s[8:23], s[0:1], 0")
    a("s_load_dwordx8 s[24:31], s[0:1], 64")
    a("s_load_dwordx4 s[32:35], s[0:1], 96")
    if c.stamps:
        a(f"s_memrealtime s[{S_ST+4}:{S_ST+5}]")
    a("v_lshrrev_b32 v1, 6, v0")
    a("v_and_b32 v0, 63, v0")
    a(f"v_readfirstlane_b32 s{S_WAVE}, v1")
    if c.remap:
        a(f"s_lshr_b32 s{S_B}, s{S_WG}, 3\ns_and_b32 s{S_B}, s{S_B}, 7")
        a(f"s_lshr_b32 s{S_H}, s{S_WG}, 6\ns_lshl_b32 s{S_H}, s{S_H}, 3\ns_and_b32 s{S_T0}, s{S_WG}, 7\ns_or_b32 s{S_H}, s{S_H}, s{S_T0}")
    else:
        a(f"s_lshr_b32 s{S_B}, s{S_WG}, 5\ns_and_b32 s{S_H}, s{S_WG}, 31")
    a(f"s_lshl_b32 s{S_ID}, s{S_B}, 5\ns_or_b32 s{S_ID}, s{S_ID}, s{S_H}")
    a(f"s_and_b32 s{S_ROLE}, s{S_WAVE}, 3")
    a(f"s_mov_b32 s{S_HI16}, 0xffff0000")
    a(f"s_mov_b32 s{S_LOG2E}, {f2u(1.4426950408889634):#x}")
    a(f"s_cmp_ge_u32 s{S_WAVE}, 4\ns_cbranch_scc1 L_aux")
    streamer(a, c)
    a("L_aux:")
    aux(a, c)
    a("L_done:\ns_endpgm")
    body = a.finish()
    head = open(HEAD).read()
    tail = f""".section .rodata,"a"
.p2align 6
.amdhsa_kernel {NAME}
  .amdhsa_next_free_vgpr 256
  .amdhsa_next_free_sgpr 96
  .amdhsa_accum_offset 256
  .amdhsa_group_segment_fixed_size 0
  .amdhsa_kernarg_size 112
  .amdhsa_user_sgpr_count 2
  .amdhsa_user_sgpr_kernarg_segment_ptr 1
  .amdhsa_system_sgpr_workgroup_id_x 1
  .amdhsa_float_denorm_mode_32 3
.end_amdhsa_kernel
"""
    return head + f"; @launch grid=(256,1,1) block=(512,1,1) lds={LDS_BYTES}\n" + body + tail


def streamer(a, c):
    V_LANE, V_OFF, V_SCA = 0, 1, 2
    V_Q, V_MASK, V_A0, V_A1, V_ACC = 4, 8, 12, 16, 20
    V_P, V_T, V_U, V_X, V_S = 24, 26, 28, 30, 32
    V_T0, V_T1, V_M, V_L, V_P2, V_SN, V_P2N, V_ST = 33, 34, 35, 36, 37, 38, 39, 41
    V_TMP = 44
    R = 16
    PF, D = c.PF, c.D
    assert 16 <= PF <= 48 and max(D, c.DT, c.DP) < R
    PFB = 256 - 4 * PF
    assert PFB >= 60

    def dreg(n):
        return PFB + 4 * (n if n < PF else (n - PF) % R)

    if c.prio:
        a(f"s_setprio {c.prio}")
    a(f"v_lshlrev_b32 v{V_OFF}, 4, v{V_LANE}")
    a(f"s_lshl_b32 s{S_T0}, s{S_ROLE}, 12")
    a(f"v_add_u32 v{V_OFF}, s{S_T0}, v{V_OFF}")
    a(f"s_lshl_b32 s{S_T0}, s{S_ID}, 20\ns_lshr_b32 s{S_T1}, s{S_ID}, 12")
    a(f"s_mov_b32 s{S_OFFA}, 0\ns_mov_b32 s{S_OFFB}, 0")
    a("s_waitcnt lgkmcnt(0)")
    srd(a, SRD_A, P_K, f"s{S_T0}", f"s{S_T1}", 0x100000)
    srd(a, SRD_B, P_V, f"s{S_T0}", f"s{S_T1}", 0x100000)
    vm = VM(a)

    def load_text(n):
        r = dreg(n)
        s, so = (SRD_A, S_OFFA) if n < 256 else (SRD_B, S_OFFB)
        t = f"buffer_load_dwordx4 v[{r}:{r+3}], v{V_OFF}, s[{s}:{s+3}], s{so} offen offset:{(n & 3) * 1024} {c.kvflags}"
        if n & 3 == 3:
            t += f"\ns_add_u32 s{so}, s{so}, 16384"
        return t

    def issue():
        vm.op(load_text(vm.issued))

    if c.stamps:
        a(f"v_mov_b32 v{V_ST}, 0")
        a(f"v_writelane_b32 v{V_ST}, s{S_ST+4}, 43")
        a(f"s_getreg_b32 s{S_ST+2}, hwreg(HW_REG_XCC_ID)\nv_writelane_b32 v{V_ST}, s{S_ST+2}, 44")
        rstamp(a, V_ST, 32)
    marks = sorted(set((c.D0, 8, 12, 16, 24, PF - 1)))
    for n in range(PF):
        if n == c.D0 and c.qmode == "coop":
            a("s_barrier")
        if n >= c.D0:
            vm.gate(c.DP)
            if c.stamps and n in marks:
                rstamp(a, V_ST, 33 + marks.index(n))
        issue()
    a(f"s_mov_b32 s{S_MI1}, 0xcccccccc\ns_mov_b32 s{S_MI1+1}, 0xcccccccc")
    a(f"s_mov_b32 s{S_MI0}, 0xaaaaaaaa\ns_mov_b32 s{S_MI0+1}, 0xaaaaaaaa")
    a(f"s_mov_b32 s{S_SCALE}, {f2u(128 ** -0.5):#x}")
    make_masks(a, V_LANE, V_MASK, V_T0, V_T1)
    a(f"v_lshlrev_b32 v{V_SCA}, 2, v{V_LANE}")
    a(f"s_lshl_b32 s{S_T0}, s{S_ROLE}, 12\ns_add_u32 s{S_T0}, s{S_T0}, {L_SC}")
    a(f"v_add_u32 v{V_SCA}, s{S_T0}, v{V_SCA}")
    a(f"v_mov_b32 v{V_M}, 0xff800000")
    a(f"v_mov_b32 v{V_L}, 0")
    for r in range(4):
        a(f"v_mov_b32 v{V_ACC+r}, 0")
    a(f"v_and_b32 v{V_T0}, 15, v{V_LANE}\nv_lshlrev_b32 v{V_T0}, 5, v{V_T0}")
    a("s_barrier")
    for rnd in range(2):
        for w in range(2):
            ww = 2 * rnd + w
            a(f"ds_read_b128 v[{V_TMP+8*w}:{V_TMP+8*w+3}], v{V_T0} offset:{L_QP + 512*ww}")
            a(f"ds_read_b128 v[{V_TMP+8*w+4}:{V_TMP+8*w+7}], v{V_T0} offset:{L_QP + 512*ww + 16}")
        a("s_waitcnt lgkmcnt(0)")
        for e in range(8):
            a(f"v_add_f32 v{V_TMP+e}, v{V_TMP+e}, v{V_TMP+8+e}")
        if rnd == 0:
            for e in range(8):
                a(f"v_mov_b32 v{V_P+e}, v{V_TMP+e}")
    for e in range(8):
        a(f"v_add_f32 v{V_TMP+e}, v{V_P+e}, v{V_TMP+e}")
    for r in range(4):
        a(f"v_cvt_pk_bf16_f32 v{V_Q+r}, v{V_TMP+2*r}, v{V_TMP+2*r+1}")
    if c.stamps:
        rstamp(a, V_ST, 40)
        a(f"s_mov_b32 s{S_ST+3}, 0")

    def gstamp():
        if c.stamps:
            a(f"s_memrealtime s[{S_ST}:{S_ST+1}]\ns_waitcnt lgkmcnt(0)")
            a(f"s_mov_b32 m0, s{S_ST+3}")
            a(f"v_writelane_b32 v{V_ST}, s{S_ST}, m0")
            a(f"s_add_u32 s{S_ST+3}, s{S_ST+3}, 1")

    def k_reduce(j):
        if j & 1:
            t = V_T + ((j >> 1) & 1)
            a(f"v_add_f32_dpp v{t}, v{V_P}, v{V_P} row_ror:8 row_mask:0xf bank_mask:0x3")
            a(f"v_add_f32_dpp v{t}, v{V_P+1}, v{V_P+1} row_ror:8 row_mask:0xf bank_mask:0xc")
        if j & 3 == 3:
            u = V_U + ((j >> 2) & 1)
            a(f"v_add_f32_dpp v{u}, v{V_T}, v{V_T} row_ror:12 row_mask:0xf bank_mask:0x5")
            a(f"v_add_f32_dpp v{u}, v{V_T+1}, v{V_T+1} row_ror:4 row_mask:0xf bank_mask:0xa")
        if j & 7 == 7:
            x = V_X + ((j >> 3) & 1)
            a(f"v_cndmask_b32 v{V_T0}, v{V_U}, v{V_U+1}, s[{S_MI1}:{S_MI1+1}]")
            a(f"v_cndmask_b32 v{V_T1}, v{V_U+1}, v{V_U}, s[{S_MI1}:{S_MI1+1}]")
            a(f"v_add_f32_dpp v{x}, v{V_T1}, v{V_T0} quad_perm:[2,3,0,1] {DPPF}")
        if j == 15:
            a(f"v_cndmask_b32 v{V_T0}, v{V_X}, v{V_X+1}, s[{S_MI0}:{S_MI0+1}]")
            a(f"v_cndmask_b32 v{V_T1}, v{V_X+1}, v{V_X}, s[{S_MI0}:{S_MI0+1}]")
            a(f"v_add_f32_dpp v{V_S}, v{V_T1}, v{V_T0} quad_perm:[1,0,3,2] {DPPF}")
            rne_bf16(a, V_S)
            a(f"v_mul_f32 v{V_S}, s{S_SCALE}, v{V_S}")
            rne_bf16(a, V_S)
            a(f"v_max_f32 v{V_M}, v{V_M}, v{V_S}")
            a(f"ds_write_b32 v{V_SCA}, v{V_S}")
            a(f"v_add_u32 v{V_SCA}, 0x100, v{V_SCA}")

    def k_step(n, j):
        r = dreg(n)
        p = V_P + (j & 1)
        a(f"v_dot2_f32_bf16 v{p}, v{r}, v{V_Q}, 0")
        for e in range(1, 4):
            a(f"v_dot2_f32_bf16 v{p}, v{r+e}, v{V_Q+e}, v{p}")
        k_reduce(j)

    def static_feed(n, depth):
        vm.wait(n)
        while vm.issued < min(512, n + depth + 1):
            issue()

    g0 = (PF + 15) // 16
    for n in range(16 * g0):
        target = max(PF + min(n, D), n + D) if n < PF else n + D + 1
        if n >= PF:
            vm.wait(n)
        while vm.issued < target:
            if n < PF:
                vm.gate(D)
            issue()
        vm.wait(n)
        k_step(n, n & 15)
        if n & 15 == 15:
            gstamp()
    assert vm.issued == 16 * g0 + D, vm.issued
    a(f"s_mov_b32 s{S_CNT}, {15 - g0}")
    a("L_kloop:")
    for j in range(16):
        n = 16 * g0 + j
        a(f"s_waitcnt vmcnt({D-1})")
        a(load_text(n + D))
        k_step(n, j)
    gstamp()
    a(f"s_sub_u32 s{S_CNT}, s{S_CNT}, 1\ns_cmp_lg_u32 s{S_CNT}, 0\ns_cbranch_scc1 L_kloop")
    vm.issued, vm.done = 240 + D, 240
    for n in range(240, 256):
        static_feed(n, D)
        k_step(n, n & 15)
    gstamp()
    if c.stamps:
        rstamp(a, V_ST, 41)
    reduce64(a, "v_max_f32", V_M, V_T0)
    a(f"v_add_u32 v{V_SCA}, {-16*256 & 0xffffffff:#x}, v{V_SCA}")
    a("s_waitcnt lgkmcnt(0)")
    a(f"ds_read_b32 v{V_SN}, v{V_SCA}")

    def probs(dst):
        a("s_waitcnt lgkmcnt(0)")
        a(f"v_sub_f32 v{V_T0}, v{V_SN}, v{V_M}")
        a(f"v_mul_f32 v{V_T0}, s{S_LOG2E}, v{V_T0}")
        a(f"v_exp_f32 v{V_T0}, v{V_T0}")
        a(f"v_add_f32 v{V_L}, v{V_L}, v{V_T0}")
        a(f"v_cvt_pk_bf16_f32 v{dst}, v{V_T0}, v{V_T0}")

    def build_a(dst, src, j):
        for r in range(4):
            a(f"v_and_b32_dpp v{dst+r}, v{src}, v{V_MASK+r} row_newbcast:{bitrev4(j)} {DPPF}")

    probs(V_P2)
    build_a(V_A0, V_P2, 0)

    def v_step(n, j, last):
        r = dreg(n)
        A, An = (V_A0, V_A1) if j % 2 == 0 else (V_A1, V_A0)
        a(f"v_mfma_f32_16x16x32_bf16 v[{V_ACC}:{V_ACC+3}], v[{A}:{A+3}], v[{r}:{r+3}], v[{V_ACC}:{V_ACC+3}]")
        if j < 15:
            build_a(An, V_P2, j + 1)
        elif not last:
            build_a(An, V_P2N, 0)
            a(f"v_mov_b32 v{V_P2}, v{V_P2N}")
        if not last:
            if j == 1:
                a(f"v_add_u32 v{V_SCA}, 0x100, v{V_SCA}")
                a(f"ds_read_b32 v{V_SN}, v{V_SCA}")
            if j == 6:
                probs(V_P2N)
        elif j == 1:
            reduce64(a, "v_add_f32", V_L, V_T0)

    NT = c.NT
    assert 1 <= NT <= 15 and vm.issued == 256 + D
    a(f"s_mov_b32 s{S_CNT}, {16 - NT}")
    a("L_vloop:")
    for j in range(16):
        n = 256 + j
        a(f"s_waitcnt vmcnt({D-1})")
        a(load_text(n + D))
        v_step(n, j, False)
    gstamp()
    a(f"s_sub_u32 s{S_CNT}, s{S_CNT}, 1\ns_cmp_lg_u32 s{S_CNT}, 0\ns_cbranch_scc1 L_vloop")
    n0 = 512 - 16 * NT
    vm.issued, vm.done = n0 + D, n0
    for n in range(n0, 512):
        static_feed(n, c.DT)
        v_step(n, n & 15, n >= 496)
        if n & 15 == 15:
            gstamp()
    if c.stamps:
        rstamp(a, V_ST, 42)
    a(f"v_and_b32 v{V_T0}, 15, v{V_LANE}\nv_lshlrev_b32 v{V_T0}, 5, v{V_T0}")
    a(f"v_lshrrev_b32 v{V_T1}, 4, v{V_LANE}\nv_lshlrev_b32 v{V_T1}, 4, v{V_T1}")
    a(f"s_lshl_b32 s{S_T0}, s{S_ROLE}, 9")
    a(f"v_add3_u32 v{V_T0}, v{V_T0}, v{V_T1}, s{S_T0}")
    a(f"s_lshl_b32 s{S_T0}, s{S_ROLE}, 2")
    a(f"v_mov_b32 v{V_T1}, s{S_T0}")
    a("s_mov_b64 exec, 1")
    a(f"ds_write_b32 v{V_T1}, v{V_M} offset:{L_ML}")
    a(f"ds_write_b32 v{V_T1}, v{V_L} offset:{L_ML+16}")
    a("s_mov_b32 exec_lo, -1\ns_mov_b32 exec_hi, 0")
    a(f"ds_write_b128 v{V_T0}, v[{V_ACC}:{V_ACC+3}] offset:{L_OP}")
    a("s_waitcnt lgkmcnt(0)\ns_barrier")
    if c.stamps:
        a("s_mov_b64 exec, -1")
        dump_stamps(a, V_ST, WS_ST, V_T0)
    a("s_endpgm")


def aux(a, c):
    V_LANE, V_G, V_C = 0, 1, 2
    V_MASK, V_A0, V_A1, V_ACC = 4, 8, 12, 16
    V_X0, V_X1, V_T0, V_T1, V_T2, V_T3 = 20, 21, 22, 23, 24, 25
    V_OFF, V_H, V_GATE, V_Y1, V_Y2, V_C1, V_C2 = 26, 27, 28, 29, 30, 31, 32
    V_ST, V_JUNK, V_OFF2 = 33, 3, 57
    V_TQ, V_TQ2, V_TF, V_TS = 34, 102, 58, 100
    V_W1, V_B1, V_W2 = 36, 43, 50
    E = V_E = 60
    G0 = E + 16
    V_QA = 160
    WB = 128
    sc = c.sc
    coop = c.qmode == "coop"
    vm = VM(a)

    def build_a(dst, src, i):
        for r in range(4):
            a(f"v_and_b32_dpp v{dst+r}, v{src}, v{V_MASK+r} row_newbcast:{i} {DPPF}")

    def granule(dst, v0, v1, tag):
        a(f"v_mov_b32 v{dst}, v{v0}\nv_mov_b32 v{dst+1}, v{tag}\nv_mov_b32 v{dst+2}, v{v1}\nv_mov_b32 v{dst+3}, v{tag+1}")

    def tags_bad(regs):
        a(f"v_cmp_ne_u32 vcc, s{S_TS}, v{regs[0]+1}")
        for k, g in enumerate(regs):
            if k:
                a(f"v_cmp_ne_u32 s[{S_T2}:{S_T2+1}], s{S_TS}, v{g+1}")
                a(f"s_or_b64 vcc, vcc, s[{S_T2}:{S_T2+1}]")
            a(f"v_cmp_ne_u32 s[{S_T2}:{S_T2+1}], s{S_TS+1}, v{g+3}")
            a(f"s_or_b64 vcc, vcc, s[{S_T2}:{S_T2+1}]")

    def rot_index(dst, be, on):
        if on:
            a(f"s_lshl_b32 s{S_T2}, s{S_B}, 2")
            a(f"v_add_u32 v{dst}, s{S_T2}, v{V_C}")
        else:
            a(f"v_mov_b32 v{dst}, v{V_C}")
        if be:
            a(f"v_add_u32 v{dst}, 16, v{dst}")
        a(f"v_and_b32 v{dst}, 31, v{dst}")

    a(f"v_lshrrev_b32 v{V_G}, 4, v{V_LANE}\nv_and_b32 v{V_C}, 15, v{V_LANE}")
    a(f"v_lshlrev_b32 v{V_OFF}, 13, v{V_G}\nv_lshl_add_u32 v{V_OFF}, v{V_C}, 4, v{V_OFF}")
    if coop:
        a(f"v_lshrrev_b32 v{V_T0}, 2, v{V_C}\nv_lshlrev_b32 v{V_T0}, 10, v{V_T0}")
        a(f"v_and_b32 v{V_T1}, 3, v{V_C}\nv_lshlrev_b32 v{V_T1}, 3, v{V_T1}")
        a(f"v_lshl_add_u32 v{V_T1}, v{V_G}, 1, v{V_T1}")
        a(f"s_lshl_b32 s{S_T0}, s{S_B}, 7\ns_lshl_b32 s{S_T1}, s{S_ROLE}, 5\ns_add_u32 s{S_T0}, s{S_T0}, s{S_T1}")
        a(f"v_add3_u32 v{V_T0}, v{V_T0}, v{V_T1}, s{S_T0}")
        a(f"v_add_u32 v{V_T3}, 0x1000, v{V_T0}")
        a(f"s_lshl_b32 s{S_OFFA}, s{S_B}, 19\ns_lshl_b32 s{S_T1}, s{S_ROLE}, 17\ns_add_u32 s{S_OFFA}, s{S_OFFA}, s{S_T1}")
    else:
        a(f"s_lshl_b32 s{S_T0}, s{S_B}, 10\ns_lshl_b32 s{S_T1}, s{S_ROLE}, 8\ns_add_u32 s{S_T0}, s{S_T0}, s{S_T1}")
        for be, dst in ((0, V_T0), (1, V_T3)):
            rot_index(dst, be, c.rot)
            a(f"v_lshlrev_b32 v{dst}, 3, v{dst}\nv_lshl_add_u32 v{dst}, v{V_G}, 1, v{dst}")
            a(f"v_add_u32 v{dst}, s{S_T0}, v{dst}")
        a(f"s_lshl_b32 s{S_OFFA}, s{S_ROLE}, 20")
        a(f"s_lshl_b32 s{S_OFFB}, s{S_B}, 17" if c.rot else f"s_mov_b32 s{S_OFFB}, 0")
    a(f"v_lshrrev_b32 v{V_T2}, 1, v{V_C}")
    a(f"s_lshl_b32 s{S_T1}, s{S_B}, 5\ns_lshl_b32 s{S_T2}, s{S_ROLE}, 3\ns_add_u32 s{S_T1}, s{S_T1}, s{S_T2}")
    a(f"v_add_u32 v{V_T2}, s{S_T1}, v{V_T2}\nv_lshlrev_b32 v{V_T2}, 7, v{V_T2}")
    a(f"s_lshl_b32 s{S_T1}, s{S_ID}, 7")
    a(f"v_mov_b32 v{V_Y1}, s{S_T1}")
    if coop:
        a(f"s_lshl_b32 s{S_T1}, s{S_ROLE}, 6\ns_add_u32 s{S_T1}, s{S_T1}, s{S_H}")
        a(f"s_lshl_b32 s{S_QC}, s{S_T1}, 13")
        a(f"s_lshl_b32 s{S_T1}, s{S_T1}, 7")
        a(f"v_mov_b32 v{V_T1}, s{S_T1}")
    a(f"s_lshl_b32 s{S_T1}, s{S_H}, 8")
    a(f"s_sub_u32 s{S_T2}, 0x400000, s{S_T1}")
    a("s_waitcnt lgkmcnt(0)")
    if c.stamps:
        a(f"v_mov_b32 v{V_ST}, 0")
        a(f"v_writelane_b32 v{V_ST}, s{S_ST+4}, 16")
        rstamp(a, V_ST, 0)
    srd(a, SRD_B, P_WQ, f"s{S_T1}", None, f"s{S_T2}")
    srd(a, SRD_A, P_X, None, None, 8192 + 64)
    NW = 4 if coop else 32

    def wq_load(j):
        if coop:
            k = vm.op(f"buffer_load_dwordx4 v[{WB+4*j}:{WB+4*j+3}], v{V_OFF}, s[{SRD_B}:{SRD_B+3}], s{S_OFFA} offen {c.wqflags}")
            if j < NW - 1:
                a(f"s_add_u32 s{S_OFFA}, s{S_OFFA}, 32768")
        else:
            a(f"s_add_u32 s{S_T3}, s{S_OFFA}, s{S_OFFB}")
            k = vm.op(f"buffer_load_dwordx4 v[{WB+4*j}:{WB+4*j+3}], v{V_OFF}, s[{SRD_B}:{SRD_B+3}], s{S_T3} offen {c.wqflags}")
            if j < NW - 1:
                a(f"s_add_u32 s{S_OFFB}, s{S_OFFB}, 32768\ns_and_b32 s{S_OFFB}, s{S_OFFB}, 0xfffff")
        return k

    XS = (V_X0, V_X1)
    vm.op(f"buffer_load_ushort v{V_X0}, v{V_T0}, s[{SRD_A}:{SRD_A+3}], 0 offen {c.smflags}")
    kx = vm.op(f"buffer_load_ushort v{V_X1}, v{V_T3}, s[{SRD_A}:{SRD_A+3}], 0 offen {c.smflags}")
    wq_k = {}
    first = min(NW, c.wq_depth)
    head = min(first, 4)
    for j in range(head):
        wq_k[j] = wq_load(j)
    srd(a, SRD_C, P_WS, None, None, 0x8000)
    vm.op(f"buffer_load_dwordx2 v[{V_TF}:{V_TF+1}], v{V_T2}, s[{SRD_C}:{SRD_C+3}], 0 offen {c.smflags}")
    ke = vm.op(f"buffer_load_dwordx2 v[{V_TS}:{V_TS+1}], v{V_Y1}, s[{SRD_C}:{SRD_C+3}], 0 offen {c.smflags}")
    if coop:
        vm.op(f"buffer_load_dwordx2 v[{V_TQ}:{V_TQ+1}], v{V_T1}, s[{SRD_C}:{SRD_C+3}], 0 offen {c.smflags}")
        a(f"v_add_u32 v{V_T1}, 0x1000, v{V_T1}")
        ke = vm.op(f"buffer_load_dwordx2 v[{V_TQ2}:{V_TQ2+1}], v{V_T1}, s[{SRD_C}:{SRD_C+3}], 0 offen {c.smflags}")
    if c.touch:
        a(f"v_mov_b32 v{V_JUNK}, 0")
        a(f"v_mov_b32 v{V_T1}, 0")
        for p in (P_GW, P_W1, P_B1, P_W2, P_B2, P_WO, P_OUT):
            vm.op(f"global_load_ushort v{V_JUNK}, v{V_T1}, s[{p}:{p+1}] {c.smflags}")
        a(f"v_mov_b32 v{V_T1}, {WS_F}")
        vm.op(f"global_load_dword v{V_JUNK}, v{V_T1}, s[{P_WS}:{P_WS+1}] {c.smflags}")
        if c.touchv:
            a(f"s_lshl_b32 s{S_T0}, s{S_ID}, 20\ns_lshr_b32 s{S_T1}, s{S_ID}, 12")
            srd(a, SRD_E, P_V, f"s{S_T0}", f"s{S_T1}", 0x100000)
            a(f"v_mov_b32 v{V_T1}, 0")
            vm.op(f"buffer_load_dword v{V_JUNK}, v{V_T1}, s[{SRD_E}:{SRD_E+3}], 0 offen nt")
        if coop:
            a(f"v_mov_b32 v{V_T1}, {WS_Q}")
            vm.op(f"global_load_dword v{V_JUNK}, v{V_T1}, s[{P_WS}:{P_WS+1}] {c.smflags}")
    for j in range(head, first):
        wq_k[j] = wq_load(j)
    if c.stamps:
        rstamp(a, V_ST, 1)
    make_masks(a, V_LANE, V_MASK, V_T1, V_T2)

    if coop:
        a(f"v_mov_b32 v{V_T2}, 0\nv_mov_b32 v{V_T3}, {L_CNT}")
        a(f"ds_write_b32 v{V_T3}, v{V_T2}")
        for r in range(32):
            a(f"v_mov_b32 v{V_QA+r}, 0")
        a("s_waitcnt lgkmcnt(0)\ns_barrier")
        vm.wait(max(kx, wq_k[3]))
        if c.stamps:
            rstamp(a, V_ST, 2)
        for x in XS:
            a(f"v_lshl_or_b32 v{x}, v{x}, 16, v{x}")
        seq = [(j, bb) for j in range(4) for bb in range(8)]
        build_a(V_A0, XS[0], 0)
        for k, (j, bb) in enumerate(seq):
            A, An = (V_A0, V_A1) if k % 2 == 0 else (V_A1, V_A0)
            if k + 1 < len(seq):
                jn, bn = seq[k + 1]
                build_a(An, XS[bn >> 2], 4 * (bn & 3) + jn)
            acc = V_QA + 4 * bb
            a(f"v_mfma_f32_16x16x32_bf16 v[{acc}:{acc+3}], v[{A}:{A+3}], v[{WB+4*j}:{WB+4*j+3}], v[{acc}:{acc+3}]")
        if c.stamps:
            rstamp(a, V_ST, 3)
        a(f"v_lshlrev_b32 v{V_T0}, 5, v{V_C}\nv_lshl_add_u32 v{V_T0}, v{V_G}, 4, v{V_T0}")
        a(f"s_lshl_b32 s{S_T0}, s{S_ROLE}, 12")
        a(f"v_add_u32 v{V_T0}, s{S_T0}, v{V_T0}")
        a("s_mov_b32 exec_lo, -1\ns_mov_b32 exec_hi, 0")
        for bb in range(8):
            a(f"ds_write_b128 v{V_T0}, v[{V_QA+4*bb}:{V_QA+4*bb+3}] offset:{L_PQ + 512*bb}")
        a("s_mov_b64 exec, 1")
        a(f"v_mov_b32 v{V_T2}, 1")
        a(f"ds_add_u32 v{V_T3}, v{V_T2}")
        a("s_mov_b64 exec, -1")
        a(f"s_lshl_b32 s{S_T0}, s{S_B}, 10\ns_add_u32 s{S_QC}, s{S_QC}, s{S_T0}")
        a(f"v_lshlrev_b32 v{V_X1}, 4, v{V_LANE}\nv_add_u32 v{V_X1}, s{S_QC}, v{V_X1}")
        a(f"v_lshlrev_b32 v{V_T0}, 3, v{V_LANE}")
        a(f"s_lshl_b32 s{S_T0}, s{S_ROLE}, 10")
        a(f"v_add_u32 v{V_T0}, s{S_T0}, v{V_T0}")
        vm.wait(ke)
        for t in (V_TQ, V_TQ2, V_TF, V_TS):
            a(f"v_add_u32 v{t}, 1, v{t}\nv_add_u32 v{t+1}, 1, v{t+1}")
        a(f"s_mov_b32 s{S_T0}, {WS_Q}")
        srd(a, SRD_D, P_WS, f"s{S_T0}", None, 0x200000)
        a(f"s_mov_b32 s{S_CNT}, {SPIN_LIMIT}")
        a("L_qsync:")
        a(f"ds_read_b32 v{V_T2}, v{V_T3}")
        a(f"s_sub_u32 s{S_CNT}, s{S_CNT}, 1\ns_cbranch_scc1 L_qsync_out")
        a("s_waitcnt lgkmcnt(0)")
        a(f"v_readfirstlane_b32 s{S_T1}, v{V_T2}")
        a(f"s_cmp_lt_u32 s{S_T1}, 4\ns_cbranch_scc1 L_qsync")
        a("L_qsync_out:")
        for be in range(2):
            for w in range(4):
                a(f"ds_read_b64 v[{E+8*be+2*w}:{E+8*be+2*w+1}], v{V_T0} offset:{L_PQ + 4096*w + 512*be}")
        a(f"v_readfirstlane_b32 s{S_TS}, v{V_TS}\nv_readfirstlane_b32 s{S_TS+1}, v{V_TS+1}")
        a("s_waitcnt lgkmcnt(0)")
        for be in range(2):
            B = E + 8 * be
            for r in range(2):
                a(f"v_add_f32 v{B+r}, v{B+r}, v{B+2+r}\nv_add_f32 v{B+4+r}, v{B+4+r}, v{B+6+r}")
            for r in range(2):
                a(f"v_add_f32 v{B+r}, v{B+r}, v{B+4+r}")
            granule(G0 + 4 * be, B, B + 1, V_TQ2 if be else V_TQ)
        a(f"buffer_store_dwordx4 v[{G0}:{G0+3}], v{V_X1}, s[{SRD_D}:{SRD_D+3}], 0 offen {sc}")
        a(f"s_mov_b32 s{S_T0}, 0x40000")
        a(f"buffer_store_dwordx4 v[{G0+4}:{G0+7}], v{V_X1}, s[{SRD_D}:{SRD_D+3}], s{S_T0} offen {sc}")
        if c.stamps:
            rstamp(a, V_ST, 4)
        a(f"s_lshl_b32 s{S_T0}, s{S_ID}, 13\ns_lshl_b32 s{S_T1}, s{S_ROLE}, 11\ns_add_u32 s{S_T0}, s{S_T0}, s{S_T1}")
        a(f"v_lshlrev_b32 v{V_T0}, 4, v{V_LANE}\nv_add_u32 v{V_T0}, s{S_T0}, v{V_T0}")
        a(f"s_mov_b32 s{S_CNT}, {SPIN_LIMIT}")
        a("L_qpoll:")
        a(f"buffer_load_dwordx4 v[{E}:{E+3}], v{V_T0}, s[{SRD_D}:{SRD_D+3}], 0 offen {sc}")
        a(f"buffer_load_dwordx4 v[{E+4}:{E+7}], v{V_T0}, s[{SRD_D}:{SRD_D+3}], 0 offen offset:1024 {sc}")
        a(f"s_sub_u32 s{S_CNT}, s{S_CNT}, 1\ns_cbranch_scc1 L_qpoll_out")
        a("s_waitcnt vmcnt(0)")
        tags_bad((E, E + 4))
        if c.qsleep:
            a("s_cbranch_vccz L_qpoll_out")
            a(f"s_sleep {c.qsleep}")
            a("s_branch L_qpoll")
        else:
            a("s_cbranch_vccnz L_qpoll")
        a("L_qpoll_out:")
        if c.stamps:
            rstamp(a, V_ST, 7)
        a(f"v_add_f32 v{E}, v{E}, v{E+4}\nv_add_f32 v{E+1}, v{E+2}, v{E+6}")
        a(f"v_lshlrev_b32 v{V_T0}, 3, v{V_LANE}")
        a(f"s_lshl_b32 s{S_T0}, s{S_ROLE}, 9")
        a(f"v_add_u32 v{V_T0}, s{S_T0}, v{V_T0}")
        a(f"ds_write_b64 v{V_T0}, v[{E}:{E+1}] offset:{L_QP}")
        a("s_waitcnt lgkmcnt(0)\ns_barrier")
        vm.done = vm.issued
    else:
        for r in range(4):
            a(f"v_mov_b32 v{V_ACC+r}, 0")
        vm.wait(kx)
        if c.stamps:
            rstamp(a, V_ST, 2)
        for x in XS:
            a(f"v_lshl_or_b32 v{x}, v{x}, 16, v{x}")
        build_a(V_A0, XS[0], 0)
        nxt = first
        for j in range(32):
            A, An = (V_A0, V_A1) if j % 2 == 0 else (V_A1, V_A0)
            if j < 31:
                build_a(An, XS[(j + 1) >> 4], (j + 1) & 15)
            vm.wait(wq_k[j])
            if nxt < 32:
                wq_k[nxt] = wq_load(nxt)
                nxt += 1
            if c.stamps and j in (0, 8, 16, 24, 31):
                rstamp(a, V_ST, 3 + (0, 8, 16, 24, 31).index(j))
            a(f"v_mfma_f32_16x16x32_bf16 v[{V_ACC}:{V_ACC+3}], v[{A}:{A+3}], v[{WB+4*j}:{WB+4*j+3}], v[{V_ACC}:{V_ACC+3}]")
        a(f"v_lshlrev_b32 v{V_T0}, 5, v{V_C}\nv_lshl_add_u32 v{V_T0}, v{V_G}, 4, v{V_T0}")
        a(f"s_lshl_b32 s{S_T0}, s{S_ROLE}, 9")
        a(f"v_add_u32 v{V_T0}, s{S_T0}, v{V_T0}")
        a("s_mov_b32 exec_lo, -1\ns_mov_b32 exec_hi, 0")
        a(f"ds_write_b128 v{V_T0}, v[{V_ACC}:{V_ACC+3}] offset:{L_QP}")
        a("s_mov_b64 exec, -1")
        a("s_waitcnt lgkmcnt(0)\ns_barrier")
        vm.wait(vm.issued - 1)
        for t in (V_TF, V_TS):
            a(f"v_add_u32 v{t}, 1, v{t}\nv_add_u32 v{t+1}, 1, v{t+1}")
        a(f"v_readfirstlane_b32 s{S_TS}, v{V_TS}\nv_readfirstlane_b32 s{S_TS+1}, v{V_TS+1}")
    if c.stamps:
        rstamp(a, V_ST, 8)

    a(f"s_lshl_b32 s{S_T0}, s{S_B}, 10")
    srd(a, SRD_A, P_X, f"s{S_T0}", None, 1024 + 64)
    VB = V_E
    a(f"v_lshlrev_b32 v{V_T0}, 4, v{V_LANE}")
    a(f"buffer_load_dwordx4 v[{VB}:{VB+3}], v{V_T0}, s[{SRD_A}:{SRD_A+3}], 0 offen {c.smflags}")
    a(f"s_lshl_b32 s{S_T1}, s{S_H}, 5")
    a(f"v_lshlrev_b32 v{V_T1}, 1, v{V_C}")
    a(f"buffer_load_ushort v{V_H}, v{V_T1}, s[{SRD_A}:{SRD_A+3}], s{S_T1} offen {c.smflags}")
    srd(a, SRD_A, P_GW, None, None, 1024)
    a(f"buffer_load_dwordx4 v[{VB+8}:{VB+11}], v{V_T0}, s[{SRD_A}:{SRD_A+3}], 0 offen {c.smflags}")
    a(f"s_mul_i32 s{S_T1}, s{S_ROLE}, 896")
    a(f"v_lshlrev_b32 v{V_T1}, 1, v{V_LANE}")
    for base, ptr in ((V_W1, P_W1), (V_B1, P_B1), (V_W2, P_W2)):
        srd(a, SRD_A, ptr, None, None, 3584 + 64)
        for t in range(7):
            a(f"buffer_load_ushort v{base+t}, v{V_T1}, s[{SRD_A}:{SRD_A+3}], s{S_T1} offen offset:{128*t} {c.smflags}")
    srd(a, SRD_A, P_B2, None, None, 64)
    a(f"v_mov_b32 v{V_T2}, 0")
    a(f"buffer_load_ushort v{V_Y2}, v{V_T2}, s[{SRD_A}:{SRD_A+3}], 0 offen {c.smflags}")
    a("s_waitcnt vmcnt(0)")
    if c.stamps:
        rstamp(a, V_ST, 9)

    a(f"s_lshl_b32 s{S_T0}, s{S_H}, 17")
    srd(a, SRD_B, P_WO, f"s{S_T0}", None, 131072)
    a(f"v_lshlrev_b32 v{V_OFF}, 10, v{V_G}\nv_lshl_add_u32 v{V_OFF}, v{V_C}, 4, v{V_OFF}")
    a(f"s_lshl_b32 s{S_T0}, s{S_ROLE}, 8")
    a(f"v_add_u32 v{V_OFF}, s{S_T0}, v{V_OFF}")
    a(f"s_lshl_b32 s{S_OFFA}, s{S_B}, 14" if c.roto else f"s_mov_b32 s{S_OFFA}, 0")
    for j in range(32 if not (c.auxoff & 1) else 0):
        if j >= c.wo_depth:
            a(f"s_waitcnt vmcnt({c.wo_depth-1})")
        a(f"buffer_load_dwordx4 v[{WB+4*j}:{WB+4*j+3}], v{V_OFF}, s[{SRD_B}:{SRD_B+3}], s{S_OFFA} offen {c.woflags}")
        if j < 31:
            a(f"s_add_u32 s{S_OFFA}, s{S_OFFA}, 4096\ns_and_b32 s{S_OFFA}, s{S_OFFA}, 0x1ffff")
    if c.stamps:
        rstamp(a, V_ST, 10)

    def unpack8(src, dst):
        for r in range(4):
            a(f"v_lshlrev_b32 v{dst+2*r}, 16, v{src+r}")
            a(f"v_and_b32 v{dst+2*r+1}, s{S_HI16}, v{src+r}")

    def sum8(src, dst):
        a(f"v_add_f32 v{dst}, v{src}, v{src+1}")
        for e in range(2, 8):
            a(f"v_add_f32 v{dst}, v{dst}, v{src+e}")

    U = V_E + 12
    unpack8(VB, U)
    unpack8(VB + 8, U + 8)
    for e in range(8):
        a(f"v_mul_f32 v{U+e}, v{U+e}, v{U+8+e}")
    for r in range(4):
        a(f"v_cvt_pk_bf16_f32 v{U+8+r}, v{U+2*r}, v{U+2*r+1}")
    unpack8(U + 8, U)
    sum8(U, V_GATE)
    reduce64(a, "v_add_f32", V_GATE, V_T0)
    rne_bf16(a, V_GATE)
    a(f"v_mul_f32 v{V_GATE}, s{S_LOG2E}, v{V_GATE}")
    a(f"v_sub_f32 v{V_GATE}, 0, v{V_GATE}")
    a(f"v_exp_f32 v{V_GATE}, v{V_GATE}")
    a(f"v_add_f32 v{V_GATE}, 1.0, v{V_GATE}")
    a(f"v_rcp_f32 v{V_GATE}, v{V_GATE}")
    rne_bf16(a, V_GATE)

    unpack8(VB, U)
    sum8(U, V_T2)
    reduce64(a, "v_add_f32", V_T2, V_T0)
    a(f"v_mul_f32 v{V_T2}, {f2u(1/512):#x}, v{V_T2}")
    for e in range(8):
        a(f"v_sub_f32 v{U+e}, v{U+e}, v{V_T2}")
        a(f"v_mul_f32 v{U+e}, v{U+e}, v{U+e}")
    sum8(U, V_T3)
    reduce64(a, "v_add_f32", V_T3, V_T0)
    a(f"v_mul_f32 v{V_T3}, {f2u(1/512):#x}, v{V_T3}")
    rne_bf16(a, V_T2)
    rne_bf16(a, V_T3)
    a(f"v_add_f32 v{V_T3}, {f2u(1e-5):#x}, v{V_T3}")
    rne_bf16(a, V_T3)
    a(f"v_sqrt_f32 v{V_T3}, v{V_T3}")
    rne_bf16(a, V_T3)
    a(f"v_lshlrev_b32 v{V_H}, 16, v{V_H}")
    a(f"v_sub_f32 v{V_H}, v{V_H}, v{V_T2}")
    rne_bf16(a, V_H)
    div(a, V_H, V_H, V_T3, V_T0, V_T1)
    rne_bf16(a, V_H)
    if c.stamps:
        rstamp(a, V_ST, 11)

    for t in range(7):
        for base in (V_W1, V_B1, V_W2):
            a(f"v_lshlrev_b32 v{base+t}, 16, v{base+t}")
    kb = 0.7978845608028654
    c1 = -2.0 * kb * 1.4426950408889634
    a(f"v_mov_b32 v{V_C1}, {f2u(c1):#x}\nv_mov_b32 v{V_C2}, {f2u(c1 * 0.044715):#x}")
    a(f"v_mov_b32 v{V_Y1}, 0")
    a(f"v_mov_b32 v{V_T3}, 0")
    a(f"s_mov_b32 s{S_CNT}, {7 if not (c.auxoff & 2) else 1}")
    a("L_mlp:")
    for k in range(8):
        ua, ub, za, zb, p = E, E + 1, E + 2, E + 3, E + 4
        i0, i1 = 2 * k, 2 * k + 1

        def round2():
            a(f"v_cvt_pk_bf16_f32 v{p}, v{ua}, v{ub}")
            a(f"v_lshlrev_b32 v{ua}, 16, v{p}")
            a(f"v_and_b32 v{ub}, s{S_HI16}, v{p}")
        a(f"v_mul_f32_dpp v{ua}, v{V_W1}, v{V_H} row_newbcast:{i0} {DPPF}")
        a(f"v_mul_f32_dpp v{ub}, v{V_W1}, v{V_H} row_newbcast:{i1} {DPPF}")
        round2()
        a(f"v_add_f32_dpp v{ua}, v{V_B1}, v{ua} row_newbcast:{i0} {DPPF}")
        a(f"v_add_f32_dpp v{ub}, v{V_B1}, v{ub} row_newbcast:{i1} {DPPF}")
        round2()
        a(f"v_mul_f32 v{za}, v{ua}, v{ua}\nv_mul_f32 v{zb}, v{ub}, v{ub}")
        a(f"v_fma_f32 v{za}, v{za}, v{V_C2}, v{V_C1}\nv_fma_f32 v{zb}, v{zb}, v{V_C2}, v{V_C1}")
        a(f"v_mul_f32 v{za}, v{za}, v{ua}\nv_mul_f32 v{zb}, v{zb}, v{ub}")
        a(f"v_exp_f32 v{za}, v{za}\nv_exp_f32 v{zb}, v{zb}")
        a(f"v_add_f32 v{za}, 1.0, v{za}\nv_add_f32 v{zb}, 1.0, v{zb}")
        a(f"v_rcp_f32 v{za}, v{za}\nv_rcp_f32 v{zb}, v{zb}")
        a(f"v_mul_f32 v{ua}, v{ua}, v{za}\nv_mul_f32 v{ub}, v{ub}, v{zb}")
        round2()
        a(f"v_fmac_f32_dpp v{V_Y1}, v{V_W2}, v{ua} row_newbcast:{i0} {DPPF}")
        a(f"v_fmac_f32_dpp v{V_T3}, v{V_W2}, v{ub} row_newbcast:{i1} {DPPF}")
    for base in (V_W1, V_B1, V_W2):
        for t in range(6):
            a(f"v_mov_b32 v{base+t}, v{base+t+1}")
    a(f"s_sub_u32 s{S_CNT}, s{S_CNT}, 1\ns_cmp_lg_u32 s{S_CNT}, 0\ns_cbranch_scc1 L_mlp")
    a(f"v_add_f32 v{V_Y1}, v{V_Y1}, v{V_T3}")
    cross_rows(a, "v_add_f32", V_Y1, V_T0)
    a(f"v_lshlrev_b32 v{V_T0}, 2, v{V_C}")
    a(f"s_lshl_b32 s{S_T0}, s{S_ROLE}, 6")
    a(f"v_add_u32 v{V_T0}, s{S_T0}, v{V_T0}")
    a("s_mov_b64 exec, 0xffff")
    a(f"ds_write_b32 v{V_T0}, v{V_Y1} offset:{L_YP}")
    a("s_mov_b64 exec, -1")
    if c.stamps:
        rstamp(a, V_ST, 12)

    V_OA, V_OB, V_PUB, V_IN = V_X0, V_H, V_X1, V_OFF
    for be, dst in ((0, V_OA), (1, V_OB)):
        rot_index(dst, be, c.roto)
        a(f"v_lshlrev_b32 v{dst}, 4, v{dst}\nv_lshl_add_u32 v{dst}, v{V_G}, 2, v{dst}")
    a(f"v_lshrrev_b32 v{V_PUB}, 1, v{V_C}\nv_lshlrev_b32 v{V_PUB}, 12, v{V_PUB}")
    a(f"v_and_b32 v{V_T0}, 1, v{V_C}\nv_lshlrev_b32 v{V_T0}, 6, v{V_T0}")
    a(f"v_and_b32 v{V_T1}, 1, v{V_G}\nv_lshl_add_u32 v{V_T0}, v{V_T1}, 5, v{V_T0}")
    a(f"v_lshrrev_b32 v{V_T1}, 1, v{V_G}\nv_lshl_add_u32 v{V_T0}, v{V_T1}, 4, v{V_T0}")
    a(f"s_lshl_b32 s{S_T0}, s{S_ROLE}, 15\ns_lshl_b32 s{S_T1}, s{S_H}, 7\ns_add_u32 s{S_T0}, s{S_T0}, s{S_T1}")
    a(f"v_add3_u32 v{V_PUB}, v{V_PUB}, v{V_T0}, s{S_T0}")
    a(f"s_lshl_b32 s{S_T0}, s{S_B}, 17\ns_add_u32 s{S_T0}, s{S_T0}, {WS_F}")
    srd(a, SRD_D, P_WS, f"s{S_T0}", None, 0x20000)
    a(f"s_lshl_b32 s{S_T0}, s{S_H}, 12")
    a(f"v_lshlrev_b32 v{V_IN}, 4, v{V_LANE}\nv_add_u32 v{V_IN}, s{S_T0}, v{V_IN}")
    a(f"s_lshl_b32 s{S_T0}, s{S_B}, 10\ns_lshl_b32 s{S_T1}, s{S_H}, 5\ns_add_u32 s{S_T0}, s{S_T0}, s{S_T1}")
    srd(a, SRD_E, P_OUT, f"s{S_T0}", None, 64)
    for r in range(4):
        a(f"v_mov_b32 v{V_ACC+r}, 0")
    a(f"v_mov_b32 v{V_T3}, 0")
    a(f"v_mov_b32 v{G0+1}, v{V_TF}\nv_mov_b32 v{G0+3}, v{V_TF+1}")
    a("s_waitcnt vmcnt(0) lgkmcnt(0)")
    a("s_barrier")
    if c.stamps:
        rstamp(a, V_ST, 13)

    MV, LV, OV = E, E + 4, E + 8
    a(f"ds_read_b128 v[{MV}:{MV+3}], v{V_T3} offset:{L_ML}")
    a(f"ds_read_b128 v[{LV}:{LV+3}], v{V_T3} offset:{L_ML+16}")
    for w in range(4):
        for be in range(2):
            a(f"ds_read_b32 v{OV+2*w+be}, v{V_OB if be else V_OA} offset:{L_OP + 512*w}")
    a("s_waitcnt lgkmcnt(8)")
    a(f"v_max3_f32 v{V_T0}, v{MV}, v{MV+1}, v{MV+2}\nv_max_f32 v{V_T0}, v{V_T0}, v{MV+3}")
    for w in range(4):
        a(f"v_sub_f32 v{MV+w}, v{MV+w}, v{V_T0}")
    for w in range(4):
        a(f"v_mul_f32 v{MV+w}, s{S_LOG2E}, v{MV+w}")
    for w in range(4):
        a(f"v_exp_f32 v{MV+w}, v{MV+w}")
    a(f"v_mul_f32 v{V_T1}, v{MV}, v{LV}")
    for w in range(1, 4):
        a(f"v_fmac_f32 v{V_T1}, v{MV+w}, v{LV+w}")
    a(f"v_rcp_f32 v{V_T2}, v{V_T1}")
    a(f"v_fma_f32 v{V_T0}, -v{V_T1}, v{V_T2}, 1.0")
    a(f"v_fmac_f32 v{V_T2}, v{V_T0}, v{V_T2}")
    a("s_waitcnt lgkmcnt(0)")
    for be in range(2):
        a(f"v_mul_f32 v{LV+be}, v{MV}, v{OV+be}")
    for w in range(1, 4):
        for be in range(2):
            a(f"v_fmac_f32 v{LV+be}, v{MV+w}, v{OV+2*w+be}")
    for be in range(2):
        a(f"v_mul_f32 v{LV+be}, v{LV+be}, v{V_T2}")
    for be in range(2):
        a(f"v_cvt_pk_bf16_f32 v{LV+be}, v{LV+be}, v{LV+be}")
    srcs = (LV, LV + 1)
    build_a(V_A0, srcs[0], 0)
    for j in range(32):
        A, An = (V_A0, V_A1) if j % 2 == 0 else (V_A1, V_A0)
        if j < 31:
            build_a(An, srcs[(j + 1) >> 4], (j + 1) & 15)
        a(f"v_mfma_f32_16x16x32_bf16 v[{V_ACC}:{V_ACC+3}], v[{A}:{A+3}], v[{WB+4*j}:{WB+4*j+3}], v[{V_ACC}:{V_ACC+3}]")
    a(f"v_mov_b32 v{G0}, v{V_ACC}\nv_mov_b32 v{G0+2}, v{V_ACC+1}")
    a(f"v_permlane32_swap_b32 v{G0}, v{V_ACC+2}")
    a(f"v_permlane32_swap_b32 v{G0+2}, v{V_ACC+3}")
    a(f"buffer_store_dwordx4 v[{G0}:{G0+3}], v{V_PUB}, s[{SRD_D}:{SRD_D+3}], 0 offen {sc}")
    if c.stamps:
        rstamp(a, V_ST, 14)
        a(f"s_cmp_eq_u32 s{S_ROLE}, 0\ns_cbranch_scc1 L_consumer")
        dump_stamps(a, V_ST, WS_ST + 0x100000, V_T0)
        a("s_endpgm")
        a("L_consumer:")
    else:
        a(f"s_cmp_lg_u32 s{S_ROLE}, 0\ns_cbranch_scc1 L_done")

    YA = E + 24
    a(f"v_and_b32 v{V_T0}, 7, v{V_LANE}\nv_lshlrev_b32 v{V_T0}, 3, v{V_T0}")
    a(f"v_lshrrev_b32 v{V_T2}, 5, v{V_LANE}\nv_lshl_add_u32 v{V_T0}, v{V_T2}, 2, v{V_T0}")
    for w in range(4):
        a(f"ds_read_b32 v{MV+w}, v{V_T0} offset:{L_YP + 64*w}")
    a(f"v_lshrrev_b32 v{V_OFF2}, 1, v{V_T0}")
    a(f"v_lshlrev_b32 v{V_Y2}, 16, v{V_Y2}")
    a(f"v_sub_f32 v{V_T1}, 1.0, v{V_GATE}")
    rne_bf16(a, V_T1)
    a("s_waitcnt lgkmcnt(0)")
    a(f"v_add_f32 v{MV}, v{MV}, v{MV+1}\nv_add_f32 v{MV+2}, v{MV+2}, v{MV+3}")
    a(f"v_add_f32 v{YA}, v{MV}, v{MV+2}")
    rne_bf16(a, YA)
    a(f"v_add_f32 v{YA}, v{YA}, v{V_Y2}")
    rne_bf16(a, YA)
    a(f"v_mul_f32 v{YA}, v{V_T1}, v{YA}")
    rne_bf16(a, YA)
    a(f"s_lshl_b32 s{S_T0}, s{S_ID}, 7")
    a(f"v_mov_b32 v{V_T3}, s{S_T0}")
    IN = E
    a(f"s_mov_b32 s{S_CNT}, {SPIN_LIMIT}")
    a("L_poll:")
    for t in range(4):
        a(f"buffer_load_dwordx4 v[{IN+4*t}:{IN+4*t+3}], v{V_IN}, s[{SRD_D}:{SRD_D+3}], 0 offen offset:{1024*t} {sc}")
    a(f"s_sub_u32 s{S_CNT}, s{S_CNT}, 1\ns_cbranch_scc1 L_poll_out")
    a("s_waitcnt vmcnt(0)")
    tags_bad((IN, IN + 4, IN + 8, IN + 12))
    if c.fsleep:
        a("s_cbranch_vccz L_poll_out")
        a(f"s_sleep {c.fsleep}")
        a("s_branch L_poll")
    else:
        a("s_cbranch_vccnz L_poll")
    a("L_poll_out:")
    for r in (0, 2):
        a(f"v_add_f32 v{IN+r}, v{IN+r}, v{IN+4+r}\nv_add_f32 v{IN+8+r}, v{IN+8+r}, v{IN+12+r}")
    for r in (0, 2):
        a(f"v_add_f32 v{IN+r}, v{IN+r}, v{IN+8+r}")
    a(f"v_permlane32_swap_b32 v{IN}, v{IN+2}")
    a(f"v_add_f32 v{IN}, v{IN}, v{IN+2}")
    a(f"v_add_f32_dpp v{IN}, v{IN}, v{IN} row_ror:8 {DPPF}")
    a(f"v_mov_b32 v{V_T0}, v{IN}")
    a(f"v_permlane16_swap_b32 v{IN}, v{V_T0}")
    a(f"v_add_f32 v{IN}, v{IN}, v{V_T0}")
    rne_bf16(a, IN)
    a(f"v_mul_f32 v{IN}, v{V_GATE}, v{IN}")
    rne_bf16(a, IN)
    a(f"v_add_f32 v{IN}, v{IN}, v{YA}")
    if c.tripwire:
        rstamp(a, V_ST, 15)
        a(f"v_readlane_b32 s{S_T0}, v{V_ST}, 16")
        a(f"s_sub_u32 s{S_T0}, s{S_ST}, s{S_T0}")
        a(f"s_cmp_gt_u32 s{S_T0}, {c.tripwire}\ns_cbranch_scc0 L_notrip")
        a(f"s_cmp_eq_u32 s{S_ID}, {c.tripid}\ns_cbranch_scc0 L_notrip")
        a(f"v_cvt_f32_u32 v{IN}, s{S_T0}")
        a("L_notrip:")
    a(f"v_cvt_pk_bf16_f32 v{IN}, v{IN}, v{IN}")
    a("s_mov_b32 exec_lo, 0xff\ns_mov_b32 exec_hi, 0xff")
    a(f"buffer_store_short v{IN}, v{V_OFF2}, s[{SRD_E}:{SRD_E+3}], 0 offen")
    a("s_mov_b64 exec, 1")
    a(f"buffer_store_dwordx2 v[{V_TS}:{V_TS+1}], v{V_T3}, s[{SRD_C}:{SRD_C+3}], 0 offen {sc}")
    if c.stamps:
        a("s_mov_b64 exec, -1")
        rstamp(a, V_ST, 15)
        dump_stamps(a, V_ST, WS_ST + 0x100000, V_T0)
        if c.dbgout:
            a(f"s_cmp_lg_u32 s{S_ID}, {c.dbgout-1}\ns_cbranch_scc1 L_done")
            a(f"v_readlane_b32 s{S_T0}, v{V_ST}, 16")
            a(f"v_subrev_u32 v{V_T1}, s{S_T0}, v{V_ST}")
            a(f"v_lshlrev_b32 v{V_T0}, 2, v{V_LANE}")
            a("s_mov_b64 exec, 0xffff")
            a(f"global_store_dword v{V_T0}, v{V_T1}, s[{P_DBG}:{P_DBG+1}]")


if __name__ == "__main__":
    out = sys.argv[1]
    kw = {}
    for s in sys.argv[2:]:
        k, v = s.split("=")
        kw[k] = int(v) if v.lstrip("-").isdigit() else v.replace("_", " ") if k.endswith("flags") or k == "sc" else v
    open(out, "w").write(gen(**kw))
```

```python
import os, struct, sys
from asmlib import Asm

NAME = "gated_mix__mha_block_cached__mixer_token_mlp__decode_kernel"
HEAD = os.path.join(os.path.dirname(os.path.abspath(__file__)), "head.txt")
SPIN_LIMIT = 0x40000
DPPF = "row_mask:0xf bank_mask:0xf"

L_QP, L_OP, L_ML, L_YP = 0, 2048, 4096, 4352
L_CNT, L_TR, L_SC = 4608, 4864, 8192
L_PROG, L_MODE = 4616, 4620
L_PQ = L_SC
LDS_BYTES = 8192 + 16384
WS_E, WS_F, WS_Q = 0x0, 0x100000, 0x200000
WS_P = 0x10000
WS_ST = 0x800000

S_WG, S_WAVE = 2, 3
P_X, P_K, P_V, P_WQ, P_WO, P_BX, P_W1, P_B1 = 8, 10, 12, 14, 16, 18, 20, 22
P_W2, P_B2, P_GW, P_OUT, P_DBG, P_WS = 24, 26, 28, 30, 32, 34
S_B, S_H, S_ROLE = 36, 37, 38
S_HI16, S_MI1, S_MI0 = 39, 40, 42
S_LOG2E, S_SCALE = 44, 45
S_T0, S_T1, S_T2, S_T3 = 46, 47, 48, 49
S_CNT, S_ID = 50, 51
SRD_A, SRD_B, SRD_C, SRD_D, SRD_E = 52, 56, 60, 64, 68
S_OFFA, S_OFFB = 72, 73
S_TS = 74
S_ST = 76
S_QC = 82


def f2u(x):
    return struct.unpack("<I", struct.pack("<f", x))[0]


def bitrev4(j):
    return ((j & 1) << 3) | ((j & 2) << 1) | ((j & 4) >> 1) | ((j & 8) >> 3)


class Cfg:
    D = 5
    D0 = 6
    DP = 6
    PF = 48
    DT = 8
    NT = 2
    kvflags = "nt"
    prio = 2
    wo_depth = 1
    wq_depth = 6
    wqflags = ""
    woflags = ""
    smflags = ""
    sc = "sc1"
    rot = 1
    roto = 1
    touchv = 1
    remap = 1
    qmode = "local"
    qsleep = 0
    fsleep = 0
    fmask = 1
    esc = ""
    pairs = 1
    early = 1
    touch = 1
    stamps = 0
    auxoff = 0
    quick = 1
    ctl = 0
    DH = 7
    cbias = -3
    csleep = 24
    cact = 1
    cst = "sc1"
    cld = "sc1"
    cskip = 0
    cpeers = 8
    clocal = 1
    tripwire = 0
    tripid = 0
    dbgout = 0


def srd(a, reg, ptr, add_lo=None, add_hi=None, size=0):
    if add_lo is None:
        a(f"s_mov_b32 s{reg}, s{ptr}\ns_mov_b32 s{reg+1}, s{ptr+1}")
    else:
        a(f"s_add_u32 s{reg}, s{ptr}, {add_lo}")
        a(f"s_addc_u32 s{reg+1}, s{ptr+1}, {add_hi if add_hi is not None else 0}")
    a(f"s_mov_b32 s{reg+2}, {size}\ns_mov_b32 s{reg+3}, 0x20000")


def cross_rows(a, op, v, t):
    a(f"v_mov_b32 v{t}, v{v}")
    a(f"v_permlane16_swap_b32 v{v}, v{t}")
    a(f"{op} v{v}, v{v}, v{t}")
    a(f"v_mov_b32 v{t}, v{v}")
    a(f"v_permlane32_swap_b32 v{v}, v{t}")
    a(f"{op} v{v}, v{v}, v{t}")


def reduce64(a, op, v, t):
    for n in (8, 4, 2, 1):
        a(f"{op}_dpp v{v}, v{v}, v{v} row_ror:{n} {DPPF}")
    cross_rows(a, op, v, t)


def rne_bf16(a, v):
    a(f"v_cvt_pk_bf16_f32 v{v}, v{v}, v{v}")
    a(f"v_and_b32 v{v}, s{S_HI16}, v{v}")


def make_masks(a, vlane, m0, t0, t1):
    a(f"v_and_b32 v{t0}, 15, v{vlane}")
    a(f"v_and_b32 v{t1}, 1, v{t0}")
    a(f"v_lshlrev_b32 v{t1}, 4, v{t1}")
    a(f"v_mov_b32 v{m0}, 0xffff")
    a(f"v_lshlrev_b32 v{t1}, v{t1}, v{m0}")
    a(f"v_lshrrev_b32 v{t0}, 1, v{t0}")
    for r in range(4):
        a(f"v_cmp_eq_u32 vcc, {r}, v{t0}")
        a(f"v_cndmask_b32 v{m0+r}, 0, v{t1}, vcc")


def div(a, dst, num, den, t0, t1):
    a(f"v_rcp_f32 v{t0}, v{den}")
    a(f"v_mul_f32 v{t1}, v{num}, v{t0}")
    a(f"v_fma_f32 v{dst}, -v{den}, v{t1}, v{num}")
    a(f"v_fma_f32 v{dst}, v{dst}, v{t0}, v{t1}")


def rstamp(a, v, idx):
    a(f"s_memrealtime s[{S_ST}:{S_ST+1}]\ns_waitcnt lgkmcnt(0)")
    a(f"v_writelane_b32 v{v}, s{S_ST}, {idx}")


def dump_stamps(a, v, region, t):
    a(f"s_lshl_b32 s{S_ST+2}, s{S_ID}, 2\ns_add_u32 s{S_ST+2}, s{S_ST+2}, s{S_ROLE}\ns_lshl_b32 s{S_ST+2}, s{S_ST+2}, 8")
    a(f"s_add_u32 s{S_ST+2}, s{S_ST+2}, {region}")
    a(f"v_lshlrev_b32 v{t}, 2, v0\nv_add_u32 v{t}, s{S_ST+2}, v{t}")
    a(f"global_store_dword v{t}, v{v}, s[{P_WS}:{P_WS+1}]")


class VM:
    def __init__(self, a):
        self.a, self.issued, self.done = a, 0, 0

    def op(self, text):
        self.a(text)
        self.issued += 1
        return self.issued - 1

    def wait(self, k):
        if self.done <= k:
            self.a(f"s_waitcnt vmcnt({min(63, self.issued - k - 1)})")
            self.done = max(self.done, k + 1 if self.issued - k - 1 <= 63 else self.issued - 63)

    def gate(self, depth):
        k = self.issued - depth
        if k >= 0:
            self.wait(k)


def gen(**kw):
    c = Cfg()
    for k, v in kw.items():
        assert hasattr(c, k), k
        setattr(c, k, v)
    a = Asm()
    a(f".amdgcn_target \"amdgcn-amd-amdhsa--gfx950\"\n.text\n.globl {NAME}\n.p2align 8\n.type {NAME},@function\n{NAME}:")
    a(f"s_cmp_ge_u32 s{S_WG}, 256\ns_cbranch_scc1 L_done")
    a("v_lshrrev_b32 v1, 6, v0")
    a("v_and_b32 v0, 63, v0")
    a(f"v_readfirstlane_b32 s{S_WAVE}, v1")
    if c.stamps:
        a(f"s_memrealtime s[{S_ST+4}:{S_ST+5}]")
    if c.early and not c.stamps:
        a(f"s_cmp_ge_u32 s{S_WAVE}, 4\ns_cbranch_scc1 L_args_aux")
        a("s_load_dwordx4 s[8:11], s[0:1], 8\ns_branch L_args_done".replace("s[8:11]", "s[12:15]"))
        a("L_args_aux:")
    a("s_load_dwordx16 s[8:23], s[0:1], 0")
    a("s_load_dwordx8 s[24:31], s[0:1], 64")
    a("s_load_dwordx4 s[32:35], s[0:1], 96")
    if c.early and not c.stamps:
        a("L_args_done:")
    if c.remap:
        a(f"s_lshr_b32 s{S_B}, s{S_WG}, 3\ns_and_b32 s{S_B}, s{S_B}, 7")
        a(f"s_lshr_b32 s{S_H}, s{S_WG}, 6\ns_lshl_b32 s{S_H}, s{S_H}, 3\ns_and_b32 s{S_T0}, s{S_WG}, 7\ns_or_b32 s{S_H}, s{S_H}, s{S_T0}")
    else:
        a(f"s_lshr_b32 s{S_B}, s{S_WG}, 5\ns_and_b32 s{S_H}, s{S_WG}, 31")
    a(f"s_lshl_b32 s{S_ID}, s{S_B}, 5\ns_or_b32 s{S_ID}, s{S_ID}, s{S_H}")
    a(f"s_and_b32 s{S_ROLE}, s{S_WAVE}, 3")
    a(f"s_mov_b32 s{S_HI16}, 0xffff0000")
    a(f"s_mov_b32 s{S_LOG2E}, {f2u(1.4426950408889634):#x}")
    a(f"s_cmp_ge_u32 s{S_WAVE}, 4\ns_cbranch_scc1 L_aux")
    streamer(a, c)
    a("L_aux:")
    aux(a, c)
    a("L_done:\ns_endpgm")
    body = a.finish()
    head = open(HEAD).read()
    tail = f""".section .rodata,"a"
.p2align 6
.amdhsa_kernel {NAME}
  .amdhsa_next_free_vgpr 256
  .amdhsa_next_free_sgpr 96
  .amdhsa_accum_offset 256
  .amdhsa_group_segment_fixed_size 0
  .amdhsa_kernarg_size 112
  .amdhsa_user_sgpr_count 2
  .amdhsa_user_sgpr_kernarg_segment_ptr 1
  .amdhsa_system_sgpr_workgroup_id_x 1
  .amdhsa_float_denorm_mode_32 3
.end_amdhsa_kernel
"""
    return head + f"; @launch grid=(256,1,1) block=(512,1,1) lds={LDS_BYTES}\n" + body + tail


def streamer(a, c):
    V_LANE, V_OFF, V_SCA = 0, 1, 2
    V_Q, V_MASK, V_A0, V_A1, V_ACC = 4, 8, 12, 16, 20
    V_P, V_T, V_U, V_X, V_S = 24, 26, 28, 30, 32
    V_T0, V_T1, V_M, V_L, V_P2, V_SN, V_P2N, V_ST = 33, 34, 35, 36, 37, 38, 39, 41
    V_TMP = 44
    V_PA, V_ONE, V_MD = 40, 42, 43
    R = 16
    PF, D = c.PF, c.D
    assert 16 <= PF <= 48 and max(D, c.DT, c.DP) < R
    PFB = 256 - 4 * PF
    assert PFB >= 60

    def dreg(n):
        return PFB + 4 * (n if n < PF else (n - PF) % R)

    if c.prio:
        a(f"s_setprio {c.prio}")
    a(f"v_lshlrev_b32 v{V_OFF}, 4, v{V_LANE}")
    a(f"s_lshl_b32 s{S_T0}, s{S_ROLE}, 12")
    a(f"v_add_u32 v{V_OFF}, s{S_T0}, v{V_OFF}")
    a(f"s_lshl_b32 s{S_T0}, s{S_ID}, 20\ns_lshr_b32 s{S_T1}, s{S_ID}, 12")
    a(f"s_mov_b32 s{S_OFFA}, 0\ns_mov_b32 s{S_OFFB}, 0")
    a("s_waitcnt lgkmcnt(0)")
    pk, pv = (12, 14) if c.early and not c.stamps else (P_K, P_V)
    srd(a, SRD_A, pk, f"s{S_T0}", f"s{S_T1}", 0x100000)
    srd(a, SRD_B, pv, f"s{S_T0}", f"s{S_T1}", 0x100000)
    vm = VM(a)

    def load_text(n):
        r = dreg(n)
        s, so = (SRD_A, S_OFFA) if n < 256 else (SRD_B, S_OFFB)
        t = f"buffer_load_dwordx4 v[{r}:{r+3}], v{V_OFF}, s[{s}:{s+3}], s{so} offen offset:{(n & 3) * 1024} {c.kvflags}"
        if n & 3 == 3:
            t += f"\ns_add_u32 s{so}, s{so}, 16384"
        return t

    def issue():
        vm.op(load_text(vm.issued))

    if c.stamps:
        a(f"v_mov_b32 v{V_ST}, 0")
        a(f"v_writelane_b32 v{V_ST}, s{S_ST+4}, 43")
        a(f"s_getreg_b32 s{S_ST+2}, hwreg(HW_REG_XCC_ID)\nv_writelane_b32 v{V_ST}, s{S_ST+2}, 44")
        a(f"s_getreg_b32 s{S_ST+2}, hwreg(HW_REG_HW_ID)\nv_writelane_b32 v{V_ST}, s{S_ST+2}, 45")
        rstamp(a, V_ST, 32)
    marks = sorted(set((c.D0, 8, 12, 16, 24, PF - 1)))
    def setup():
        a(f"s_mov_b32 s{S_MI1}, 0xcccccccc\ns_mov_b32 s{S_MI1+1}, 0xcccccccc")
        a(f"s_mov_b32 s{S_MI0}, 0xaaaaaaaa\ns_mov_b32 s{S_MI0+1}, 0xaaaaaaaa")
        a(f"s_mov_b32 s{S_SCALE}, {f2u(128 ** -0.5):#x}")
        make_masks(a, V_LANE, V_MASK, V_T0, V_T1)
        a(f"v_lshlrev_b32 v{V_SCA}, 2, v{V_LANE}")
        a(f"s_lshl_b32 s{S_T0}, s{S_ROLE}, 12\ns_add_u32 s{S_T0}, s{S_T0}, {L_SC}")
        a(f"v_add_u32 v{V_SCA}, s{S_T0}, v{V_SCA}")
        a(f"v_mov_b32 v{V_M}, 0xff800000")
        a(f"v_mov_b32 v{V_L}, 0")
        for r in range(4):
            a(f"v_mov_b32 v{V_ACC+r}, 0")
        a(f"v_and_b32 v{V_T0}, 15, v{V_LANE}\nv_lshlrev_b32 v{V_T0}, 5, v{V_T0}")

    for n in range(PF):
        if n == c.D0:
            setup()
        if n == c.D0 and c.qmode == "coop":
            a("s_barrier")
        if n >= c.D0:
            vm.gate(c.DP)
            if c.stamps and n in marks:
                rstamp(a, V_ST, 33 + marks.index(n))
        issue()
    a("s_barrier")
    QB = (V_TMP, V_TMP + 8, V_P, V_A0)
    for w in range(4):
        a(f"ds_read_b128 v[{QB[w]}:{QB[w]+3}], v{V_T0} offset:{L_QP + 512*w}")
        a(f"ds_read_b128 v[{QB[w]+4}:{QB[w]+7}], v{V_T0} offset:{L_QP + 512*w + 16}")
    a("s_waitcnt lgkmcnt(4)")
    for e in range(8):
        a(f"v_add_f32 v{QB[0]+e}, v{QB[0]+e}, v{QB[1]+e}")
    a("s_waitcnt lgkmcnt(0)")
    for e in range(8):
        a(f"v_add_f32 v{QB[2]+e}, v{QB[2]+e}, v{QB[3]+e}")
    for e in range(8):
        a(f"v_add_f32 v{QB[0]+e}, v{QB[0]+e}, v{QB[2]+e}")
    for r in range(4):
        a(f"v_cvt_pk_bf16_f32 v{V_Q+r}, v{V_TMP+2*r}, v{V_TMP+2*r+1}")
    if c.stamps:
        rstamp(a, V_ST, 40)
        a(f"s_mov_b32 s{S_ST+3}, 0")

    def gstamp():
        if c.stamps:
            a(f"s_memrealtime s[{S_ST}:{S_ST+1}]\ns_waitcnt lgkmcnt(0)")
            a(f"s_mov_b32 m0, s{S_ST+3}")
            a(f"v_writelane_b32 v{V_ST}, s{S_ST}, m0")
            a(f"s_add_u32 s{S_ST+3}, s{S_ST+3}, 1")

    def k_reduce(j):
        if j & 1:
            t = V_T + ((j >> 1) & 1)
            a(f"v_add_f32_dpp v{t}, v{V_P}, v{V_P} row_ror:8 row_mask:0xf bank_mask:0x3")
            a(f"v_add_f32_dpp v{t}, v{V_P+1}, v{V_P+1} row_ror:8 row_mask:0xf bank_mask:0xc")
        if j & 3 == 3:
            u = V_U + ((j >> 2) & 1)
            a(f"v_add_f32_dpp v{u}, v{V_T}, v{V_T} row_ror:12 row_mask:0xf bank_mask:0x5")
            a(f"v_add_f32_dpp v{u}, v{V_T+1}, v{V_T+1} row_ror:4 row_mask:0xf bank_mask:0xa")
        if j & 7 == 7:
            x = V_X + ((j >> 3) & 1)
            a(f"v_cndmask_b32 v{V_T0}, v{V_U}, v{V_U+1}, s[{S_MI1}:{S_MI1+1}]")
            a(f"v_cndmask_b32 v{V_T1}, v{V_U+1}, v{V_U}, s[{S_MI1}:{S_MI1+1}]")
            a(f"v_add_f32_dpp v{x}, v{V_T1}, v{V_T0} quad_perm:[2,3,0,1] {DPPF}")
        if j == 15:
            a(f"v_cndmask_b32 v{V_T0}, v{V_X}, v{V_X+1}, s[{S_MI0}:{S_MI0+1}]")
            a(f"v_cndmask_b32 v{V_T1}, v{V_X+1}, v{V_X}, s[{S_MI0}:{S_MI0+1}]")
            a(f"v_add_f32_dpp v{V_S}, v{V_T1}, v{V_T0} quad_perm:[1,0,3,2] {DPPF}")
            rne_bf16(a, V_S)
            a(f"v_mul_f32 v{V_S}, s{S_SCALE}, v{V_S}")
            rne_bf16(a, V_S)
            a(f"v_max_f32 v{V_M}, v{V_M}, v{V_S}")
            a(f"ds_write_b32 v{V_SCA}, v{V_S}")
            a(f"v_add_u32 v{V_SCA}, 0x100, v{V_SCA}")

    def k_step(n, j):
        r = dreg(n)
        p = V_P + (j & 1)
        a(f"v_dot2_f32_bf16 v{p}, v{r}, v{V_Q}, 0")
        for e in range(1, 4):
            a(f"v_dot2_f32_bf16 v{p}, v{r+e}, v{V_Q+e}, v{p}")
        k_reduce(j)

    LA = c.DH if c.ctl else D

    def static_feed(n, depth, look):
        while vm.issued < min(512, n + look + 1):
            vm.gate(depth)
            issue()
        vm.wait(n)

    def loop_feed(n, tag):
        a(f"s_waitcnt vmcnt({LA-1})")
        if c.ctl:
            a(f"s_cbranch_vccnz L_deep_{tag}")
            a(f"s_waitcnt vmcnt({D-1})")
            a(f"L_deep_{tag}:")
        a(load_text(n + LA))

    def ctl_hooks(j):
        if not c.ctl:
            return
        if j in (7, 15):
            a("s_mov_b64 exec, 1")
            a(f"ds_add_u32 v{V_PA}, v{V_ONE}")
            a("s_mov_b64 exec, -1")
        if j == 1:
            a(f"ds_read_b32 v{V_MD}, v{V_PA} offset:4")
        if j == 6:
            a("s_waitcnt lgkmcnt(0)")
            a(f"v_readfirstlane_b32 s{S_T0}, v{V_MD}")
            a(f"s_cmp_lg_u32 s{S_T0}, 0\ns_cselect_b64 vcc, -1, 0")

    g0 = (PF + LA - D + 15) // 16
    if c.ctl:
        a(f"v_mov_b32 v{V_PA}, {L_PROG}\nv_mov_b32 v{V_ONE}, 1")
        a("s_mov_b64 vcc, 0")
    skip = set()
    for n in range(16 * g0):
        if n < PF:
            target = max(PF + min(n, LA), n + LA)
            while vm.issued < target:
                vm.gate(D)
                issue()
            vm.wait(n)
        else:
            static_feed(n, D, LA)
        if n in skip:
            k_reduce(n & 15)
        elif c.pairs and n % 2 == 0 and n + 1 < PF and vm.done > n + 1:
            r0, r1 = dreg(n), dreg(n + 1)
            a(f"v_dot2_f32_bf16 v{V_P}, v{r0}, v{V_Q}, 0")
            a(f"v_dot2_f32_bf16 v{V_P+1}, v{r1}, v{V_Q}, 0")
            for e in range(1, 4):
                a(f"v_dot2_f32_bf16 v{V_P}, v{r0+e}, v{V_Q+e}, v{V_P}")
                a(f"v_dot2_f32_bf16 v{V_P+1}, v{r1+e}, v{V_Q+e}, v{V_P+1}")
            skip.add(n + 1)
        else:
            k_step(n, n & 15)
        if c.ctl and n & 7 == 7:
            ctl_hooks(7)
        if n & 15 == 15:
            gstamp()
    assert vm.issued == 16 * g0 + LA, vm.issued
    a(f"s_mov_b32 s{S_CNT}, {15 - g0}")
    a("L_kloop:")
    for j in range(16):
        n = 16 * g0 + j
        loop_feed(n, f"k{j}")
        k_step(n, j)
        ctl_hooks(j)
    gstamp()
    a(f"s_sub_u32 s{S_CNT}, s{S_CNT}, 1\ns_cmp_lg_u32 s{S_CNT}, 0\ns_cbranch_scc1 L_kloop")
    vm.issued, vm.done = 240 + LA, 240
    for n in range(240, 256):
        static_feed(n, D, LA)
        k_step(n, n & 15)
        if c.ctl and n & 7 == 7:
            ctl_hooks(7)
    gstamp()
    if c.stamps:
        rstamp(a, V_ST, 41)
    reduce64(a, "v_max_f32", V_M, V_T0)
    a(f"v_add_u32 v{V_SCA}, {-16*256 & 0xffffffff:#x}, v{V_SCA}")
    a("s_waitcnt lgkmcnt(0)")
    a(f"ds_read_b32 v{V_SN}, v{V_SCA}")

    def probs(dst):
        a("s_waitcnt lgkmcnt(0)")
        a(f"v_sub_f32 v{V_T0}, v{V_SN}, v{V_M}")
        a(f"v_mul_f32 v{V_T0}, s{S_LOG2E}, v{V_T0}")
        a(f"v_exp_f32 v{V_T0}, v{V_T0}")
        a(f"v_add_f32 v{V_L}, v{V_L}, v{V_T0}")
        a(f"v_cvt_pk_bf16_f32 v{dst}, v{V_T0}, v{V_T0}")

    def build_a(dst, src, j):
        for r in range(4):
            a(f"v_and_b32_dpp v{dst+r}, v{src}, v{V_MASK+r} row_newbcast:{bitrev4(j)} {DPPF}")

    probs(V_P2)
    build_a(V_A0, V_P2, 0)

    def v_step(n, j, last):
        r = dreg(n)
        A, An = (V_A0, V_A1) if j % 2 == 0 else (V_A1, V_A0)
        a(f"v_mfma_f32_16x16x32_bf16 v[{V_ACC}:{V_ACC+3}], v[{A}:{A+3}], v[{r}:{r+3}], v[{V_ACC}:{V_ACC+3}]")
        if j < 15:
            build_a(An, V_P2, j + 1)
        elif not last:
            build_a(An, V_P2N, 0)
            a(f"v_mov_b32 v{V_P2}, v{V_P2N}")
        if not last:
            if j == 1:
                a(f"v_add_u32 v{V_SCA}, 0x100, v{V_SCA}")
                a(f"ds_read_b32 v{V_SN}, v{V_SCA}")
            if j == 6:
                probs(V_P2N)
        elif j == 1:
            reduce64(a, "v_add_f32", V_L, V_T0)

    NT = c.NT
    assert 1 <= NT <= 15 and vm.issued == 256 + LA
    a(f"s_mov_b32 s{S_CNT}, {16 - NT}")
    a("L_vloop:")
    for j in range(16):
        n = 256 + j
        loop_feed(n, f"v{j}")
        v_step(n, j, False)
        ctl_hooks(j)
    gstamp()
    a(f"s_sub_u32 s{S_CNT}, s{S_CNT}, 1\ns_cmp_lg_u32 s{S_CNT}, 0\ns_cbranch_scc1 L_vloop")
    n0 = 512 - 16 * NT
    vm.issued, vm.done = n0 + LA, n0
    for n in range(n0, 512):
        static_feed(n, c.DT, max(c.DT, LA))
        v_step(n, n & 15, n >= 496)
        if n & 15 == 15:
            gstamp()
    if c.stamps:
        rstamp(a, V_ST, 42)
    a(f"v_and_b32 v{V_T0}, 15, v{V_LANE}\nv_lshlrev_b32 v{V_T0}, 5, v{V_T0}")
    a(f"v_lshrrev_b32 v{V_T1}, 4, v{V_LANE}\nv_lshlrev_b32 v{V_T1}, 4, v{V_T1}")
    a(f"s_lshl_b32 s{S_T0}, s{S_ROLE}, 9")
    a(f"v_add3_u32 v{V_T0}, v{V_T0}, v{V_T1}, s{S_T0}")
    a(f"s_lshl_b32 s{S_T0}, s{S_ROLE}, 2")
    a(f"v_mov_b32 v{V_T1}, s{S_T0}")
    a("s_mov_b64 exec, 1")
    a(f"ds_write_b32 v{V_T1}, v{V_M} offset:{L_ML}")
    a(f"ds_write_b32 v{V_T1}, v{V_L} offset:{L_ML+16}")
    a("s_mov_b32 exec_lo, -1\ns_mov_b32 exec_hi, 0")
    a(f"ds_write_b128 v{V_T0}, v[{V_ACC}:{V_ACC+3}] offset:{L_OP}")
    a("s_waitcnt lgkmcnt(0)\ns_barrier")
    if c.stamps:
        a("s_mov_b64 exec, -1")
        dump_stamps(a, V_ST, WS_ST, V_T0)
    a("s_endpgm")


def control(a, c, R):
    PA, PP, TG, W, VAL, CN, T, OWN = R, R + 1, R + 2, R + 3, R + 4, R + 5, R + 6, R + 7
    EXIT = 8 * (32 - c.NT - 1)
    a(f"s_cmp_lg_u32 s{S_ROLE}, 1\ns_cbranch_scc1 L_ctl_done")
    if c.clocal:
        a(f"v_lshlrev_b32 v{PP}, 2, v0\nv_add_u32 v{PP}, 1, v{PP}\nv_lshlrev_b32 v{PP}, 3, v{PP}")
    else:
        a(f"v_add_u32 v{PP}, 1, v0\nv_mul_u32_u24 v{PP}, 33, v{PP}")
    a(f"v_add_u32 v{PP}, s{S_ID}, v{PP}\nv_and_b32 v{PP}, 255, v{PP}\nv_lshlrev_b32 v{PP}, 7, v{PP}")
    a("s_mov_b64 exec, 0xff")
    a(f"buffer_load_dword v{TG}, v{PP}, s[{SRD_C}:{SRD_C+3}], 0 offen")
    a("s_mov_b64 exec, -1")
    a(f"v_add_u32 v{PP}, {WS_P}, v{PP}")
    a(f"s_lshl_b32 s{S_T0}, s{S_ID}, 7\ns_add_u32 s{S_T0}, s{S_T0}, {WS_P}")
    a(f"v_mov_b32 v{OWN}, s{S_T0}")
    a(f"v_mov_b32 v{PA}, {L_PROG}")
    a(f"s_lshl_b32 s{S_QC}, s{S_TS}, 9")
    a("s_waitcnt vmcnt(0)")
    a(f"v_add_u32 v{TG}, 1, v{TG}\nv_and_b32 v{TG}, 0x7fffff, v{TG}")
    a(f"s_mov_b32 s{S_CNT}, {SPIN_LIMIT}")
    a("L_ctl:")
    a(f"ds_read_b32 v{T}, v{PA}")
    a(f"s_sub_u32 s{S_CNT}, s{S_CNT}, 1\ns_cbranch_scc1 L_ctl_done")
    a("s_waitcnt lgkmcnt(0)")
    a(f"v_readfirstlane_b32 s{S_T1}, v{T}")
    a(f"s_cmp_ge_u32 s{S_T1}, {EXIT}\ns_cbranch_scc1 L_ctl_done")
    a(f"s_or_b32 s{S_T0}, s{S_QC}, s{S_T1}")
    a(f"v_mov_b32 v{T}, s{S_T0}")
    a("s_mov_b64 exec, 1")
    if not c.cskip & 1:
        if c.cst == "swap":
            a(f"global_atomic_swap v{OWN}, v{T}, s[{P_WS}:{P_WS+1}]")
        elif c.cst == "swap1":
            a(f"global_atomic_swap v{OWN}, v{T}, s[{P_WS}:{P_WS+1}] sc1")
        else:
            a(f"global_store_dword v{OWN}, v{T}, s[{P_WS}:{P_WS+1}] {c.cst}")
    a(f"s_mov_b64 exec, {(1 << c.cpeers) - 1:#x}")
    if not c.cskip & 2:
        a(f"global_load_dword v{W}, v{PP}, s[{P_WS}:{P_WS+1}] {c.cld}")
    a("s_mov_b64 exec, -1")
    a(f"v_mov_b32 v{VAL}, 0\nv_mov_b32 v{CN}, 0")
    a("s_waitcnt vmcnt(0)")
    a(f"s_mov_b64 exec, {(1 << c.cpeers) - 1:#x}")
    a(f"v_lshrrev_b32 v{T}, 9, v{W}")
    a(f"v_cmp_eq_u32 vcc, v{T}, v{TG}")
    a(f"v_and_b32 v{W}, 0x1ff, v{W}")
    a(f"v_cndmask_b32 v{VAL}, 0, v{W}, vcc")
    a(f"v_cndmask_b32 v{CN}, 0, 1, vcc")
    a("s_mov_b64 exec, -1")
    for n in (4, 2, 1):
        a(f"v_add_u32_dpp v{VAL}, v{VAL}, v{VAL} row_shl:{n} row_mask:0xf bank_mask:0xf bound_ctrl:0")
        a(f"v_add_u32_dpp v{CN}, v{CN}, v{CN} row_shl:{n} row_mask:0xf bank_mask:0xf bound_ctrl:0")
    a(f"v_readfirstlane_b32 s{S_T2}, v{VAL}\nv_readfirstlane_b32 s{S_T3}, v{CN}")
    a(f"s_add_i32 s{S_T1}, s{S_T1}, {c.cbias}\ns_mul_i32 s{S_T1}, s{S_T1}, s{S_T3}")
    a(f"s_cmp_lt_i32 s{S_T1}, s{S_T2}\ns_cselect_b32 s{S_T0}, {1 if c.cact else 0}, 0")
    a(f"v_mov_b32 v{T}, s{S_T0}")
    a(f"ds_write_b32 v{PA}, v{T} offset:4")
    a(f"s_sleep {c.csleep}")
    a("s_branch L_ctl")
    a("L_ctl_done:")


def aux(a, c):
    V_LANE, V_G, V_C = 0, 1, 2
    V_MASK, V_A0, V_A1, V_ACC = 4, 8, 12, 16
    V_X0, V_X1, V_T0, V_T1, V_T2, V_T3 = 20, 21, 22, 23, 24, 25
    V_OFF, V_H, V_GATE, V_Y1, V_Y2, V_C1, V_C2 = 26, 27, 28, 29, 30, 31, 32
    V_ST, V_JUNK, V_OFF2 = 33, 3, 57
    V_TQ, V_TQ2, V_TF, V_TS = 34, 102, 58, 100
    V_W1, V_B1, V_W2 = 36, 43, 50
    E = V_E = 60
    G0 = E + 16
    V_QA = 160
    WB = 128
    sc = c.sc
    coop = c.qmode == "coop"
    vm = VM(a)

    def build_a(dst, src, i):
        for r in range(4):
            a(f"v_and_b32_dpp v{dst+r}, v{src}, v{V_MASK+r} row_newbcast:{i} {DPPF}")

    def granule(dst, v0, v1, tag):
        a(f"v_mov_b32 v{dst}, v{v0}\nv_mov_b32 v{dst+1}, v{tag}\nv_mov_b32 v{dst+2}, v{v1}\nv_mov_b32 v{dst+3}, v{tag+1}")

    def tags_bad(regs):
        a(f"v_cmp_ne_u32 vcc, s{S_TS}, v{regs[0]+1}")
        for k, g in enumerate(regs):
            if k:
                a(f"v_cmp_ne_u32 s[{S_T2}:{S_T2+1}], s{S_TS}, v{g+1}")
                a(f"s_or_b64 vcc, vcc, s[{S_T2}:{S_T2+1}]")
            a(f"v_cmp_ne_u32 s[{S_T2}:{S_T2+1}], s{S_TS+1}, v{g+3}")
            a(f"s_or_b64 vcc, vcc, s[{S_T2}:{S_T2+1}]")

    def rot_index(dst, be, on):
        if on:
            a(f"s_lshl_b32 s{S_T2}, s{S_B}, 2")
            a(f"v_add_u32 v{dst}, s{S_T2}, v{V_C}")
        else:
            a(f"v_mov_b32 v{dst}, v{V_C}")
        if be:
            a(f"v_add_u32 v{dst}, 16, v{dst}")
        a(f"v_and_b32 v{dst}, 31, v{dst}")

    a(f"v_lshrrev_b32 v{V_G}, 4, v{V_LANE}\nv_and_b32 v{V_C}, 15, v{V_LANE}")
    a(f"v_lshlrev_b32 v{V_OFF}, 13, v{V_G}\nv_lshl_add_u32 v{V_OFF}, v{V_C}, 4, v{V_OFF}")
    if coop:
        a(f"v_lshrrev_b32 v{V_T0}, 2, v{V_C}\nv_lshlrev_b32 v{V_T0}, 10, v{V_T0}")
        a(f"v_and_b32 v{V_T1}, 3, v{V_C}\nv_lshlrev_b32 v{V_T1}, 3, v{V_T1}")
        a(f"v_lshl_add_u32 v{V_T1}, v{V_G}, 1, v{V_T1}")
        a(f"s_lshl_b32 s{S_T0}, s{S_B}, 7\ns_lshl_b32 s{S_T1}, s{S_ROLE}, 5\ns_add_u32 s{S_T0}, s{S_T0}, s{S_T1}")
        a(f"v_add3_u32 v{V_T0}, v{V_T0}, v{V_T1}, s{S_T0}")
        a(f"v_add_u32 v{V_T3}, 0x1000, v{V_T0}")
        a(f"s_lshl_b32 s{S_OFFA}, s{S_B}, 19\ns_lshl_b32 s{S_T1}, s{S_ROLE}, 17\ns_add_u32 s{S_OFFA}, s{S_OFFA}, s{S_T1}")
    else:
        a(f"s_lshl_b32 s{S_T0}, s{S_B}, 10\ns_lshl_b32 s{S_T1}, s{S_ROLE}, 8\ns_add_u32 s{S_T0}, s{S_T0}, s{S_T1}")
        for be, dst in ((0, V_T0), (1, V_T3)):
            rot_index(dst, be, c.rot)
            a(f"v_lshlrev_b32 v{dst}, 3, v{dst}\nv_lshl_add_u32 v{dst}, v{V_G}, 1, v{dst}")
            a(f"v_add_u32 v{dst}, s{S_T0}, v{dst}")
        a(f"s_lshl_b32 s{S_OFFA}, s{S_ROLE}, 20")
        a(f"s_lshl_b32 s{S_OFFB}, s{S_B}, 17" if c.rot else f"s_mov_b32 s{S_OFFB}, 0")
    a(f"v_lshrrev_b32 v{V_T2}, 1, v{V_C}")
    a(f"s_lshl_b32 s{S_T1}, s{S_B}, 5\ns_lshl_b32 s{S_T2}, s{S_ROLE}, 3\ns_add_u32 s{S_T1}, s{S_T1}, s{S_T2}")
    a(f"v_add_u32 v{V_T2}, s{S_T1}, v{V_T2}\nv_lshlrev_b32 v{V_T2}, 7, v{V_T2}")
    a(f"s_lshl_b32 s{S_T1}, s{S_ID}, 7")
    a(f"v_mov_b32 v{V_Y1}, s{S_T1}")
    if coop:
        a(f"s_lshl_b32 s{S_T1}, s{S_ROLE}, 6\ns_add_u32 s{S_T1}, s{S_T1}, s{S_H}")
        a(f"s_lshl_b32 s{S_QC}, s{S_T1}, 13")
        a(f"s_lshl_b32 s{S_T1}, s{S_T1}, 7")
        a(f"v_mov_b32 v{V_T1}, s{S_T1}")
    a(f"s_lshl_b32 s{S_T1}, s{S_H}, 8")
    a(f"s_sub_u32 s{S_T2}, 0x400000, s{S_T1}")
    a("s_waitcnt lgkmcnt(0)")
    if c.stamps:
        a(f"v_mov_b32 v{V_ST}, 0")
        a(f"v_writelane_b32 v{V_ST}, s{S_ST+4}, 16")
        rstamp(a, V_ST, 0)
    srd(a, SRD_B, P_WQ, f"s{S_T1}", None, f"s{S_T2}")
    srd(a, SRD_A, P_X, None, None, 8192 + 64)
    NW = 4 if coop else 32

    def wq_load(j):
        if coop:
            k = vm.op(f"buffer_load_dwordx4 v[{WB+4*j}:{WB+4*j+3}], v{V_OFF}, s[{SRD_B}:{SRD_B+3}], s{S_OFFA} offen {c.wqflags}")
            if j < NW - 1:
                a(f"s_add_u32 s{S_OFFA}, s{S_OFFA}, 32768")
        else:
            a(f"s_add_u32 s{S_T3}, s{S_OFFA}, s{S_OFFB}")
            k = vm.op(f"buffer_load_dwordx4 v[{WB+4*j}:{WB+4*j+3}], v{V_OFF}, s[{SRD_B}:{SRD_B+3}], s{S_T3} offen {c.wqflags}")
            if j < NW - 1:
                a(f"s_add_u32 s{S_OFFB}, s{S_OFFB}, 32768\ns_and_b32 s{S_OFFB}, s{S_OFFB}, 0xfffff")
        return k

    XS = (V_X0, V_X1)
    vm.op(f"buffer_load_ushort v{V_X0}, v{V_T0}, s[{SRD_A}:{SRD_A+3}], 0 offen {c.smflags}")
    kx = vm.op(f"buffer_load_ushort v{V_X1}, v{V_T3}, s[{SRD_A}:{SRD_A+3}], 0 offen {c.smflags}")
    wq_k = {}
    first = min(NW, c.wq_depth)
    head = min(first, 4)
    for j in range(head):
        wq_k[j] = wq_load(j)
    srd(a, SRD_C, P_WS, None, None, 0x8000)
    vm.op(f"buffer_load_dwordx2 v[{V_TF}:{V_TF+1}], v{V_T2}, s[{SRD_C}:{SRD_C+3}], 0 offen {c.smflags}")
    ke = vm.op(f"buffer_load_dwordx2 v[{V_TS}:{V_TS+1}], v{V_Y1}, s[{SRD_C}:{SRD_C+3}], 0 offen {c.smflags}")
    if coop:
        vm.op(f"buffer_load_dwordx2 v[{V_TQ}:{V_TQ+1}], v{V_T1}, s[{SRD_C}:{SRD_C+3}], 0 offen {c.smflags}")
        a(f"v_add_u32 v{V_T1}, 0x1000, v{V_T1}")
        ke = vm.op(f"buffer_load_dwordx2 v[{V_TQ2}:{V_TQ2+1}], v{V_T1}, s[{SRD_C}:{SRD_C+3}], 0 offen {c.smflags}")
    if c.touch:
        a(f"v_mov_b32 v{V_JUNK}, 0")
        a(f"v_mov_b32 v{V_T1}, 0")
        for p in (P_GW, P_W1, P_B1, P_W2, P_B2, P_WO, P_OUT):
            vm.op(f"global_load_ushort v{V_JUNK}, v{V_T1}, s[{p}:{p+1}] {c.smflags}")
        a(f"v_mov_b32 v{V_T1}, {WS_F}")
        vm.op(f"global_load_dword v{V_JUNK}, v{V_T1}, s[{P_WS}:{P_WS+1}] {c.smflags}")
        if c.touchv:
            a(f"s_lshl_b32 s{S_T0}, s{S_ID}, 20\ns_lshr_b32 s{S_T1}, s{S_ID}, 12")
            srd(a, SRD_E, P_V, f"s{S_T0}", f"s{S_T1}", 0x100000)
            a(f"v_mov_b32 v{V_T1}, 0")
            vm.op(f"buffer_load_dword v{V_JUNK}, v{V_T1}, s[{SRD_E}:{SRD_E+3}], 0 offen nt")
        if coop:
            a(f"v_mov_b32 v{V_T1}, {WS_Q}")
            vm.op(f"global_load_dword v{V_JUNK}, v{V_T1}, s[{P_WS}:{P_WS+1}] {c.smflags}")
    for j in range(head, first):
        wq_k[j] = wq_load(j)
    if c.stamps:
        rstamp(a, V_ST, 1)
    make_masks(a, V_LANE, V_MASK, V_T1, V_T2)

    if coop:
        a(f"v_mov_b32 v{V_T2}, 0\nv_mov_b32 v{V_T3}, {L_CNT}")
        a(f"ds_write_b32 v{V_T3}, v{V_T2}")
        for r in range(32):
            a(f"v_mov_b32 v{V_QA+r}, 0")
        a("s_waitcnt lgkmcnt(0)\ns_barrier")
        vm.wait(max(kx, wq_k[3]))
        if c.stamps:
            rstamp(a, V_ST, 2)
        for x in XS:
            a(f"v_lshl_or_b32 v{x}, v{x}, 16, v{x}")
        seq = [(j, bb) for j in range(4) for bb in range(8)]
        build_a(V_A0, XS[0], 0)
        for k, (j, bb) in enumerate(seq):
            A, An = (V_A0, V_A1) if k % 2 == 0 else (V_A1, V_A0)
            if k + 1 < len(seq):
                jn, bn = seq[k + 1]
                build_a(An, XS[bn >> 2], 4 * (bn & 3) + jn)
            acc = V_QA + 4 * bb
            a(f"v_mfma_f32_16x16x32_bf16 v[{acc}:{acc+3}], v[{A}:{A+3}], v[{WB+4*j}:{WB+4*j+3}], v[{acc}:{acc+3}]")
        if c.stamps:
            rstamp(a, V_ST, 3)
        a(f"v_lshlrev_b32 v{V_T0}, 5, v{V_C}\nv_lshl_add_u32 v{V_T0}, v{V_G}, 4, v{V_T0}")
        a(f"s_lshl_b32 s{S_T0}, s{S_ROLE}, 12")
        a(f"v_add_u32 v{V_T0}, s{S_T0}, v{V_T0}")
        a("s_mov_b32 exec_lo, -1\ns_mov_b32 exec_hi, 0")
        for bb in range(8):
            a(f"ds_write_b128 v{V_T0}, v[{V_QA+4*bb}:{V_QA+4*bb+3}] offset:{L_PQ + 512*bb}")
        a("s_mov_b64 exec, 1")
        a(f"v_mov_b32 v{V_T2}, 1")
        a(f"ds_add_u32 v{V_T3}, v{V_T2}")
        a("s_mov_b64 exec, -1")
        a(f"s_lshl_b32 s{S_T0}, s{S_B}, 10\ns_add_u32 s{S_QC}, s{S_QC}, s{S_T0}")
        a(f"v_lshlrev_b32 v{V_X1}, 4, v{V_LANE}\nv_add_u32 v{V_X1}, s{S_QC}, v{V_X1}")
        a(f"v_lshlrev_b32 v{V_T0}, 3, v{V_LANE}")
        a(f"s_lshl_b32 s{S_T0}, s{S_ROLE}, 10")
        a(f"v_add_u32 v{V_T0}, s{S_T0}, v{V_T0}")
        vm.wait(ke)
        for t in (V_TQ, V_TQ2, V_TF, V_TS):
            a(f"v_add_u32 v{t}, 1, v{t}\nv_add_u32 v{t+1}, 1, v{t+1}")
        a(f"s_mov_b32 s{S_T0}, {WS_Q}")
        srd(a, SRD_D, P_WS, f"s{S_T0}", None, 0x200000)
        a(f"s_mov_b32 s{S_CNT}, {SPIN_LIMIT}")
        a("L_qsync:")
        a(f"ds_read_b32 v{V_T2}, v{V_T3}")
        a(f"s_sub_u32 s{S_CNT}, s{S_CNT}, 1\ns_cbranch_scc1 L_qsync_out")
        a("s_waitcnt lgkmcnt(0)")
        a(f"v_readfirstlane_b32 s{S_T1}, v{V_T2}")
        a(f"s_cmp_lt_u32 s{S_T1}, 4\ns_cbranch_scc1 L_qsync")
        a("L_qsync_out:")
        for be in range(2):
            for w in range(4):
                a(f"ds_read_b64 v[{E+8*be+2*w}:{E+8*be+2*w+1}], v{V_T0} offset:{L_PQ + 4096*w + 512*be}")
        a(f"v_readfirstlane_b32 s{S_TS}, v{V_TS}\nv_readfirstlane_b32 s{S_TS+1}, v{V_TS+1}")
        a("s_waitcnt lgkmcnt(0)")
        for be in range(2):
            B = E + 8 * be
            for r in range(2):
                a(f"v_add_f32 v{B+r}, v{B+r}, v{B+2+r}\nv_add_f32 v{B+4+r}, v{B+4+r}, v{B+6+r}")
            for r in range(2):
                a(f"v_add_f32 v{B+r}, v{B+r}, v{B+4+r}")
            granule(G0 + 4 * be, B, B + 1, V_TQ2 if be else V_TQ)
        a(f"buffer_store_dwordx4 v[{G0}:{G0+3}], v{V_X1}, s[{SRD_D}:{SRD_D+3}], 0 offen {sc}")
        a(f"s_mov_b32 s{S_T0}, 0x40000")
        a(f"buffer_store_dwordx4 v[{G0+4}:{G0+7}], v{V_X1}, s[{SRD_D}:{SRD_D+3}], s{S_T0} offen {sc}")
        if c.stamps:
            rstamp(a, V_ST, 4)
        a(f"s_lshl_b32 s{S_T0}, s{S_ID}, 13\ns_lshl_b32 s{S_T1}, s{S_ROLE}, 11\ns_add_u32 s{S_T0}, s{S_T0}, s{S_T1}")
        a(f"v_lshlrev_b32 v{V_T0}, 4, v{V_LANE}\nv_add_u32 v{V_T0}, s{S_T0}, v{V_T0}")
        a(f"s_mov_b32 s{S_CNT}, {SPIN_LIMIT}")
        a("L_qpoll:")
        a(f"buffer_load_dwordx4 v[{E}:{E+3}], v{V_T0}, s[{SRD_D}:{SRD_D+3}], 0 offen {sc}")
        a(f"buffer_load_dwordx4 v[{E+4}:{E+7}], v{V_T0}, s[{SRD_D}:{SRD_D+3}], 0 offen offset:1024 {sc}")
        a(f"s_sub_u32 s{S_CNT}, s{S_CNT}, 1\ns_cbranch_scc1 L_qpoll_out")
        a("s_waitcnt vmcnt(0)")
        tags_bad((E, E + 4))
        if c.qsleep:
            a("s_cbranch_vccz L_qpoll_out")
            a(f"s_sleep {c.qsleep}")
            a("s_branch L_qpoll")
        else:
            a("s_cbranch_vccnz L_qpoll")
        a("L_qpoll_out:")
        if c.stamps:
            rstamp(a, V_ST, 7)
        a(f"v_add_f32 v{E}, v{E}, v{E+4}\nv_add_f32 v{E+1}, v{E+2}, v{E+6}")
        a(f"v_lshlrev_b32 v{V_T0}, 3, v{V_LANE}")
        a(f"s_lshl_b32 s{S_T0}, s{S_ROLE}, 9")
        a(f"v_add_u32 v{V_T0}, s{S_T0}, v{V_T0}")
        a(f"ds_write_b64 v{V_T0}, v[{E}:{E+1}] offset:{L_QP}")
        a("s_waitcnt lgkmcnt(0)\ns_barrier")
        vm.done = vm.issued
    else:
        for r in range(4):
            a(f"v_mov_b32 v{V_ACC+r}, 0")
        vm.wait(kx)
        if c.stamps:
            rstamp(a, V_ST, 2)
        for x in XS:
            a(f"v_lshl_or_b32 v{x}, v{x}, 16, v{x}")
        build_a(V_A0, XS[0], 0)
        nxt = first
        for j in range(32):
            A, An = (V_A0, V_A1) if j % 2 == 0 else (V_A1, V_A0)
            if j < 31:
                build_a(An, XS[(j + 1) >> 4], (j + 1) & 15)
            vm.wait(wq_k[j])
            if nxt < 32:
                wq_k[nxt] = wq_load(nxt)
                nxt += 1
            if c.stamps and j in (0, 8, 16, 24, 31):
                rstamp(a, V_ST, 3 + (0, 8, 16, 24, 31).index(j))
            a(f"v_mfma_f32_16x16x32_bf16 v[{V_ACC}:{V_ACC+3}], v[{A}:{A+3}], v[{WB+4*j}:{WB+4*j+3}], v[{V_ACC}:{V_ACC+3}]")
        a(f"v_lshlrev_b32 v{V_T0}, 5, v{V_C}\nv_lshl_add_u32 v{V_T0}, v{V_G}, 4, v{V_T0}")
        a(f"s_lshl_b32 s{S_T0}, s{S_ROLE}, 9")
        a(f"v_add_u32 v{V_T0}, s{S_T0}, v{V_T0}")
        a("s_mov_b32 exec_lo, -1\ns_mov_b32 exec_hi, 0")
        a(f"ds_write_b128 v{V_T0}, v[{V_ACC}:{V_ACC+3}] offset:{L_QP}")
        a("s_mov_b64 exec, -1")
        if c.ctl:
            a(f"v_mov_b32 v{V_T0}, {L_PROG}\nv_mov_b32 v{V_T2}, 0\nv_mov_b32 v{V_T3}, 0")
            a(f"ds_write_b64 v{V_T0}, v[{V_T2}:{V_T3}]")
        a("s_waitcnt lgkmcnt(0)\ns_barrier")
        vm.wait(vm.issued - 1)
        for t in (V_TF, V_TS):
            a(f"v_add_u32 v{t}, 1, v{t}\nv_add_u32 v{t+1}, 1, v{t+1}")
        a(f"v_readfirstlane_b32 s{S_TS}, v{V_TS}\nv_readfirstlane_b32 s{S_TS+1}, v{V_TS+1}")
    if c.stamps:
        rstamp(a, V_ST, 8)

    a(f"s_lshl_b32 s{S_T0}, s{S_B}, 10")
    srd(a, SRD_A, P_X, f"s{S_T0}", None, 1024 + 64)
    VB = V_E
    a(f"v_lshlrev_b32 v{V_T0}, 4, v{V_LANE}")
    a(f"buffer_load_dwordx4 v[{VB}:{VB+3}], v{V_T0}, s[{SRD_A}:{SRD_A+3}], 0 offen {c.smflags}")
    a(f"s_lshl_b32 s{S_T1}, s{S_H}, 5")
    a(f"v_lshlrev_b32 v{V_T1}, 1, v{V_C}")
    a(f"buffer_load_ushort v{V_H}, v{V_T1}, s[{SRD_A}:{SRD_A+3}], s{S_T1} offen {c.smflags}")
    srd(a, SRD_A, P_GW, None, None, 1024)
    a(f"buffer_load_dwordx4 v[{VB+8}:{VB+11}], v{V_T0}, s[{SRD_A}:{SRD_A+3}], 0 offen {c.smflags}")
    a(f"s_mul_i32 s{S_T1}, s{S_ROLE}, 896")
    a(f"v_lshlrev_b32 v{V_T1}, 1, v{V_LANE}")
    for base, ptr in ((V_W1, P_W1), (V_B1, P_B1), (V_W2, P_W2)):
        srd(a, SRD_A, ptr, None, None, 3584 + 64)
        for t in range(7):
            a(f"buffer_load_ushort v{base+t}, v{V_T1}, s[{SRD_A}:{SRD_A+3}], s{S_T1} offen offset:{128*t} {c.smflags}")
    srd(a, SRD_A, P_B2, None, None, 64)
    a(f"v_mov_b32 v{V_T2}, 0")
    a(f"buffer_load_ushort v{V_Y2}, v{V_T2}, s[{SRD_A}:{SRD_A+3}], 0 offen {c.smflags}")
    a("s_waitcnt vmcnt(0)")
    if c.stamps:
        rstamp(a, V_ST, 9)

    a(f"s_lshl_b32 s{S_T0}, s{S_H}, 17")
    srd(a, SRD_B, P_WO, f"s{S_T0}", None, 131072)
    a(f"v_lshlrev_b32 v{V_OFF}, 10, v{V_G}\nv_lshl_add_u32 v{V_OFF}, v{V_C}, 4, v{V_OFF}")
    a(f"s_lshl_b32 s{S_T0}, s{S_ROLE}, 8")
    a(f"v_add_u32 v{V_OFF}, s{S_T0}, v{V_OFF}")
    a(f"s_lshl_b32 s{S_OFFA}, s{S_B}, 14" if c.roto else f"s_mov_b32 s{S_OFFA}, 0")
    for j in range(32 if not (c.auxoff & 1) else 0):
        if j >= c.wo_depth:
            a(f"s_waitcnt vmcnt({c.wo_depth-1})")
        a(f"buffer_load_dwordx4 v[{WB+4*j}:{WB+4*j+3}], v{V_OFF}, s[{SRD_B}:{SRD_B+3}], s{S_OFFA} offen {c.woflags}")
        if j < 31:
            a(f"s_add_u32 s{S_OFFA}, s{S_OFFA}, 4096\ns_and_b32 s{S_OFFA}, s{S_OFFA}, 0x1ffff")
    if c.stamps:
        rstamp(a, V_ST, 10)

    def unpack8(src, dst):
        for r in range(4):
            a(f"v_lshlrev_b32 v{dst+2*r}, 16, v{src+r}")
            a(f"v_and_b32 v{dst+2*r+1}, s{S_HI16}, v{src+r}")

    def sum8(src, dst):
        a(f"v_add_f32 v{dst}, v{src}, v{src+1}")
        for e in range(2, 8):
            a(f"v_add_f32 v{dst}, v{dst}, v{src+e}")

    U = V_E + 12
    unpack8(VB, U)
    unpack8(VB + 8, U + 8)
    for e in range(8):
        a(f"v_mul_f32 v{U+e}, v{U+e}, v{U+8+e}")
    for r in range(4):
        a(f"v_cvt_pk_bf16_f32 v{U+8+r}, v{U+2*r}, v{U+2*r+1}")
    unpack8(U + 8, U)
    sum8(U, V_GATE)
    reduce64(a, "v_add_f32", V_GATE, V_T0)
    rne_bf16(a, V_GATE)
    a(f"v_mul_f32 v{V_GATE}, s{S_LOG2E}, v{V_GATE}")
    a(f"v_sub_f32 v{V_GATE}, 0, v{V_GATE}")
    a(f"v_exp_f32 v{V_GATE}, v{V_GATE}")
    a(f"v_add_f32 v{V_GATE}, 1.0, v{V_GATE}")
    a(f"v_rcp_f32 v{V_GATE}, v{V_GATE}")
    rne_bf16(a, V_GATE)

    unpack8(VB, U)
    sum8(U, V_T2)
    reduce64(a, "v_add_f32", V_T2, V_T0)
    a(f"v_mul_f32 v{V_T2}, {f2u(1/512):#x}, v{V_T2}")
    for e in range(8):
        a(f"v_sub_f32 v{U+e}, v{U+e}, v{V_T2}")
        a(f"v_mul_f32 v{U+e}, v{U+e}, v{U+e}")
    sum8(U, V_T3)
    reduce64(a, "v_add_f32", V_T3, V_T0)
    a(f"v_mul_f32 v{V_T3}, {f2u(1/512):#x}, v{V_T3}")
    rne_bf16(a, V_T2)
    rne_bf16(a, V_T3)
    a(f"v_add_f32 v{V_T3}, {f2u(1e-5):#x}, v{V_T3}")
    rne_bf16(a, V_T3)
    a(f"v_sqrt_f32 v{V_T3}, v{V_T3}")
    rne_bf16(a, V_T3)
    a(f"v_lshlrev_b32 v{V_H}, 16, v{V_H}")
    a(f"v_sub_f32 v{V_H}, v{V_H}, v{V_T2}")
    rne_bf16(a, V_H)
    div(a, V_H, V_H, V_T3, V_T0, V_T1)
    rne_bf16(a, V_H)
    if c.stamps:
        rstamp(a, V_ST, 11)

    for t in range(7):
        for base in (V_W1, V_B1, V_W2):
            a(f"v_lshlrev_b32 v{base+t}, 16, v{base+t}")
    kb = 0.7978845608028654
    c1 = -2.0 * kb * 1.4426950408889634
    a(f"v_mov_b32 v{V_C1}, {f2u(c1):#x}\nv_mov_b32 v{V_C2}, {f2u(c1 * 0.044715):#x}")
    a(f"v_mov_b32 v{V_Y1}, 0")
    a(f"v_mov_b32 v{V_T3}, 0")
    a(f"s_mov_b32 s{S_CNT}, {7 if not (c.auxoff & 2) else 1}")
    a("L_mlp:")
    for k in range(8):
        ua, ub, za, zb, p = E, E + 1, E + 2, E + 3, E + 4
        i0, i1 = 2 * k, 2 * k + 1

        def round2():
            a(f"v_cvt_pk_bf16_f32 v{p}, v{ua}, v{ub}")
            a(f"v_lshlrev_b32 v{ua}, 16, v{p}")
            a(f"v_and_b32 v{ub}, s{S_HI16}, v{p}")
        a(f"v_mul_f32_dpp v{ua}, v{V_W1}, v{V_H} row_newbcast:{i0} {DPPF}")
        a(f"v_mul_f32_dpp v{ub}, v{V_W1}, v{V_H} row_newbcast:{i1} {DPPF}")
        round2()
        a(f"v_add_f32_dpp v{ua}, v{V_B1}, v{ua} row_newbcast:{i0} {DPPF}")
        a(f"v_add_f32_dpp v{ub}, v{V_B1}, v{ub} row_newbcast:{i1} {DPPF}")
        round2()
        a(f"v_mul_f32 v{za}, v{ua}, v{ua}\nv_mul_f32 v{zb}, v{ub}, v{ub}")
        a(f"v_fma_f32 v{za}, v{za}, v{V_C2}, v{V_C1}\nv_fma_f32 v{zb}, v{zb}, v{V_C2}, v{V_C1}")
        a(f"v_mul_f32 v{za}, v{za}, v{ua}\nv_mul_f32 v{zb}, v{zb}, v{ub}")
        a(f"v_exp_f32 v{za}, v{za}\nv_exp_f32 v{zb}, v{zb}")
        a(f"v_add_f32 v{za}, 1.0, v{za}\nv_add_f32 v{zb}, 1.0, v{zb}")
        a(f"v_rcp_f32 v{za}, v{za}\nv_rcp_f32 v{zb}, v{zb}")
        a(f"v_mul_f32 v{ua}, v{ua}, v{za}\nv_mul_f32 v{ub}, v{ub}, v{zb}")
        round2()
        a(f"v_fmac_f32_dpp v{V_Y1}, v{V_W2}, v{ua} row_newbcast:{i0} {DPPF}")
        a(f"v_fmac_f32_dpp v{V_T3}, v{V_W2}, v{ub} row_newbcast:{i1} {DPPF}")
    for base in (V_W1, V_B1, V_W2):
        for t in range(6):
            a(f"v_mov_b32 v{base+t}, v{base+t+1}")
    a(f"s_sub_u32 s{S_CNT}, s{S_CNT}, 1\ns_cmp_lg_u32 s{S_CNT}, 0\ns_cbranch_scc1 L_mlp")
    a(f"v_add_f32 v{V_Y1}, v{V_Y1}, v{V_T3}")
    cross_rows(a, "v_add_f32", V_Y1, V_T0)
    a(f"v_lshlrev_b32 v{V_T0}, 2, v{V_C}")
    a(f"s_lshl_b32 s{S_T0}, s{S_ROLE}, 6")
    a(f"v_add_u32 v{V_T0}, s{S_T0}, v{V_T0}")
    a("s_mov_b64 exec, 0xffff")
    a(f"ds_write_b32 v{V_T0}, v{V_Y1} offset:{L_YP}")
    a("s_mov_b64 exec, -1")
    if c.stamps:
        rstamp(a, V_ST, 12)

    V_OA, V_OB, V_PUB, V_IN = V_X0, V_H, V_X1, V_OFF
    for be, dst in ((0, V_OA), (1, V_OB)):
        rot_index(dst, be, c.roto)
        a(f"v_lshlrev_b32 v{dst}, 4, v{dst}\nv_lshl_add_u32 v{dst}, v{V_G}, 2, v{dst}")
    a(f"v_lshrrev_b32 v{V_PUB}, 1, v{V_C}\nv_lshlrev_b32 v{V_PUB}, 12, v{V_PUB}")
    a(f"v_and_b32 v{V_T0}, 1, v{V_C}\nv_lshlrev_b32 v{V_T0}, 6, v{V_T0}")
    a(f"v_and_b32 v{V_T1}, 1, v{V_G}\nv_lshl_add_u32 v{V_T0}, v{V_T1}, 5, v{V_T0}")
    a(f"v_lshrrev_b32 v{V_T1}, 1, v{V_G}\nv_lshl_add_u32 v{V_T0}, v{V_T1}, 4, v{V_T0}")
    a(f"s_lshl_b32 s{S_T0}, s{S_ROLE}, 15\ns_lshl_b32 s{S_T1}, s{S_H}, 7\ns_add_u32 s{S_T0}, s{S_T0}, s{S_T1}")
    a(f"v_add3_u32 v{V_PUB}, v{V_PUB}, v{V_T0}, s{S_T0}")
    a(f"s_lshl_b32 s{S_T0}, s{S_B}, 17\ns_add_u32 s{S_T0}, s{S_T0}, {WS_F}")
    srd(a, SRD_D, P_WS, f"s{S_T0}", None, 0x20000)
    a(f"s_lshl_b32 s{S_T0}, s{S_H}, 12")
    a(f"v_lshlrev_b32 v{V_IN}, 4, v{V_LANE}\nv_add_u32 v{V_IN}, s{S_T0}, v{V_IN}")
    a(f"s_lshl_b32 s{S_T0}, s{S_B}, 10\ns_lshl_b32 s{S_T1}, s{S_H}, 5\ns_add_u32 s{S_T0}, s{S_T0}, s{S_T1}")
    srd(a, SRD_E, P_OUT, f"s{S_T0}", None, 64)
    for r in range(4):
        a(f"v_mov_b32 v{V_ACC+r}, 0")
    a(f"v_mov_b32 v{V_T3}, 0")
    a(f"v_mov_b32 v{G0+1}, v{V_TF}\nv_mov_b32 v{G0+3}, v{V_TF+1}")
    if c.ctl:
        control(a, c, E + 24)
    a("s_waitcnt vmcnt(0) lgkmcnt(0)")
    a("s_barrier")
    if c.stamps:
        rstamp(a, V_ST, 13)

    MV, LV, OV = E, E + 4, E + 8
    a(f"ds_read_b128 v[{MV}:{MV+3}], v{V_T3} offset:{L_ML}")
    a(f"ds_read_b128 v[{LV}:{LV+3}], v{V_T3} offset:{L_ML+16}")
    for w in range(4):
        for be in range(2):
            a(f"ds_read_b32 v{OV+2*w+be}, v{V_OB if be else V_OA} offset:{L_OP + 512*w}")
    a("s_waitcnt lgkmcnt(8)")
    a(f"v_max3_f32 v{V_T0}, v{MV}, v{MV+1}, v{MV+2}\nv_max_f32 v{V_T0}, v{V_T0}, v{MV+3}")
    for w in range(4):
        a(f"v_sub_f32 v{MV+w}, v{MV+w}, v{V_T0}")
    for w in range(4):
        a(f"v_mul_f32 v{MV+w}, s{S_LOG2E}, v{MV+w}")
    for w in range(4):
        a(f"v_exp_f32 v{MV+w}, v{MV+w}")
    a(f"v_mul_f32 v{V_T1}, v{MV}, v{LV}")
    for w in range(1, 4):
        a(f"v_fmac_f32 v{V_T1}, v{MV+w}, v{LV+w}")
    a(f"v_rcp_f32 v{V_T2}, v{V_T1}")
    a(f"v_fma_f32 v{V_T0}, -v{V_T1}, v{V_T2}, 1.0")
    a(f"v_fmac_f32 v{V_T2}, v{V_T0}, v{V_T2}")
    a("s_waitcnt lgkmcnt(0)")
    for be in range(2):
        a(f"v_mul_f32 v{LV+be}, v{MV}, v{OV+be}")
    for w in range(1, 4):
        for be in range(2):
            a(f"v_fmac_f32 v{LV+be}, v{MV+w}, v{OV+2*w+be}")
    for be in range(2):
        a(f"v_mul_f32 v{LV+be}, v{LV+be}, v{V_T2}")
    for be in range(2):
        a(f"v_cvt_pk_bf16_f32 v{LV+be}, v{LV+be}, v{LV+be}")
    srcs = (LV, LV + 1)
    build_a(V_A0, srcs[0], 0)
    for j in range(32):
        A, An = (V_A0, V_A1) if j % 2 == 0 else (V_A1, V_A0)
        if j < 31:
            build_a(An, srcs[(j + 1) >> 4], (j + 1) & 15)
        a(f"v_mfma_f32_16x16x32_bf16 v[{V_ACC}:{V_ACC+3}], v[{A}:{A+3}], v[{WB+4*j}:{WB+4*j+3}], v[{V_ACC}:{V_ACC+3}]")
    a(f"v_mov_b32 v{G0}, v{V_ACC}\nv_mov_b32 v{G0+2}, v{V_ACC+1}")
    a(f"v_permlane32_swap_b32 v{G0}, v{V_ACC+2}")
    a(f"v_permlane32_swap_b32 v{G0+2}, v{V_ACC+3}")
    a(f"buffer_store_dwordx4 v[{G0}:{G0+3}], v{V_PUB}, s[{SRD_D}:{SRD_D+3}], 0 offen {sc}")
    if c.stamps:
        rstamp(a, V_ST, 14)
        a(f"s_cmp_eq_u32 s{S_ROLE}, 0\ns_cbranch_scc1 L_consumer")
        dump_stamps(a, V_ST, WS_ST + 0x100000, V_T0)
        a("s_endpgm")
        a("L_consumer:")
    else:
        a(f"s_cmp_lg_u32 s{S_ROLE}, 0\ns_cbranch_scc1 L_done")

    YA = E + 24
    a(f"v_and_b32 v{V_T0}, 7, v{V_LANE}\nv_lshlrev_b32 v{V_T0}, 3, v{V_T0}")
    a(f"v_lshrrev_b32 v{V_T2}, 5, v{V_LANE}\nv_lshl_add_u32 v{V_T0}, v{V_T2}, 2, v{V_T0}")
    for w in range(4):
        a(f"ds_read_b32 v{MV+w}, v{V_T0} offset:{L_YP + 64*w}")
    a(f"v_lshrrev_b32 v{V_OFF2}, 1, v{V_T0}")
    a(f"v_lshlrev_b32 v{V_Y2}, 16, v{V_Y2}")
    a(f"v_sub_f32 v{V_T1}, 1.0, v{V_GATE}")
    rne_bf16(a, V_T1)
    a("s_waitcnt lgkmcnt(0)")
    a(f"v_add_f32 v{MV}, v{MV}, v{MV+1}\nv_add_f32 v{MV+2}, v{MV+2}, v{MV+3}")
    a(f"v_add_f32 v{YA}, v{MV}, v{MV+2}")
    rne_bf16(a, YA)
    a(f"v_add_f32 v{YA}, v{YA}, v{V_Y2}")
    rne_bf16(a, YA)
    a(f"v_mul_f32 v{YA}, v{V_T1}, v{YA}")
    rne_bf16(a, YA)
    a(f"s_lshl_b32 s{S_T0}, s{S_ID}, 7")
    a(f"v_mov_b32 v{V_T3}, s{S_T0}")
    IN = E
    a(f"s_mov_b32 s{S_CNT}, {SPIN_LIMIT}")
    if c.fmask:
        MK = 84
        for t in range(4):
            a(f"s_mov_b64 s[{MK+2*t}:{MK+2*t+1}], -1")
        a("L_poll:")
        for t in range(4):
            a(f"s_mov_b64 exec, s[{MK+2*t}:{MK+2*t+1}]")
            a(f"s_cbranch_execz L_pskip{t}")
            a(f"buffer_load_dwordx4 v[{IN+4*t}:{IN+4*t+3}], v{V_IN}, s[{SRD_D}:{SRD_D+3}], 0 offen offset:{1024*t} {sc}")
            a(f"L_pskip{t}:")
        a("s_mov_b64 exec, -1")
        a(f"s_sub_u32 s{S_CNT}, s{S_CNT}, 1\ns_cbranch_scc1 L_poll_out")
        a("s_waitcnt vmcnt(0)")
        for t in range(4):
            a(f"v_cmp_ne_u32 s[{MK+2*t}:{MK+2*t+1}], s{S_TS}, v{IN+4*t+1}")
            a(f"v_cmp_ne_u32 vcc, s{S_TS+1}, v{IN+4*t+3}")
            a(f"s_or_b64 s[{MK+2*t}:{MK+2*t+1}], s[{MK+2*t}:{MK+2*t+1}], vcc")
        a(f"s_or_b64 vcc, s[{MK}:{MK+1}], s[{MK+2}:{MK+3}]")
        a(f"s_or_b64 s[{S_T2}:{S_T2+1}], s[{MK+4}:{MK+5}], s[{MK+6}:{MK+7}]")
        a(f"s_or_b64 vcc, vcc, s[{S_T2}:{S_T2+1}]")
    else:
        a("L_poll:")
        for t in range(4):
            a(f"buffer_load_dwordx4 v[{IN+4*t}:{IN+4*t+3}], v{V_IN}, s[{SRD_D}:{SRD_D+3}], 0 offen offset:{1024*t} {sc}")
        a(f"s_sub_u32 s{S_CNT}, s{S_CNT}, 1\ns_cbranch_scc1 L_poll_out")
        a("s_waitcnt vmcnt(0)")
        tags_bad((IN, IN + 4, IN + 8, IN + 12))
    if c.fsleep:
        a("s_cbranch_vccz L_poll_out")
        a(f"s_sleep {c.fsleep}")
        a("s_branch L_poll")
    else:
        a("s_cbranch_vccnz L_poll")
    a("L_poll_out:")
    for r in (0, 2):
        a(f"v_add_f32 v{IN+r}, v{IN+r}, v{IN+4+r}\nv_add_f32 v{IN+8+r}, v{IN+8+r}, v{IN+12+r}")
    for r in (0, 2):
        a(f"v_add_f32 v{IN+r}, v{IN+r}, v{IN+8+r}")
    a(f"v_permlane32_swap_b32 v{IN}, v{IN+2}")
    a(f"v_add_f32 v{IN}, v{IN}, v{IN+2}")
    a(f"v_add_f32_dpp v{IN}, v{IN}, v{IN} row_ror:8 {DPPF}")
    a(f"v_mov_b32 v{V_T0}, v{IN}")
    a(f"v_permlane16_swap_b32 v{IN}, v{V_T0}")
    a(f"v_add_f32 v{IN}, v{IN}, v{V_T0}")
    rne_bf16(a, IN)
    a(f"v_mul_f32 v{IN}, v{V_GATE}, v{IN}")
    rne_bf16(a, IN)
    a(f"v_add_f32 v{IN}, v{IN}, v{YA}")
    if c.tripwire:
        rstamp(a, V_ST, 15)
        a(f"v_readlane_b32 s{S_T0}, v{V_ST}, 16")
        a(f"s_sub_u32 s{S_T0}, s{S_ST}, s{S_T0}")
        a(f"s_cmp_gt_u32 s{S_T0}, {c.tripwire}\ns_cbranch_scc0 L_notrip")
        a(f"s_cmp_eq_u32 s{S_ID}, {c.tripid}\ns_cbranch_scc0 L_notrip")
        a(f"v_cvt_f32_u32 v{IN}, s{S_T0}")
        a("L_notrip:")
    a(f"v_cvt_pk_bf16_f32 v{IN}, v{IN}, v{IN}")
    a("s_mov_b32 exec_lo, 0xff\ns_mov_b32 exec_hi, 0xff")
    a(f"buffer_store_short v{IN}, v{V_OFF2}, s[{SRD_E}:{SRD_E+3}], 0 offen")
    a("s_mov_b64 exec, 1")
    a(f"buffer_store_dwordx2 v[{V_TS}:{V_TS+1}], v{V_T3}, s[{SRD_C}:{SRD_C+3}], 0 offen {c.esc}")
    if c.stamps:
        a("s_mov_b64 exec, -1")
        rstamp(a, V_ST, 15)
        dump_stamps(a, V_ST, WS_ST + 0x100000, V_T0)
        if c.dbgout:
            a(f"s_cmp_lg_u32 s{S_ID}, {c.dbgout-1}\ns_cbranch_scc1 L_done")
            a(f"v_readlane_b32 s{S_T0}, v{V_ST}, 16")
            a(f"v_subrev_u32 v{V_T1}, s{S_T0}, v{V_ST}")
            a(f"v_lshlrev_b32 v{V_T0}, 2, v{V_LANE}")
            a("s_mov_b64 exec, 0xffff")
            a(f"global_store_dword v{V_T0}, v{V_T1}, s[{P_DBG}:{P_DBG+1}]")


if __name__ == "__main__":
    out = sys.argv[1]
    kw = {}
    for s in sys.argv[2:]:
        k, v = s.split("=")
        kw[k] = int(v) if v.lstrip("-").isdigit() else v.replace("_", " ") if k.endswith("flags") or k in ("sc", "cst", "cld") else v
    open(out, "w").write(gen(**kw))
```

```python
import os, struct, sys
from asmlib import Asm

NAME = "gated_mix__mha_block_cached__mixer_token_mlp__decode_kernel"
HEAD = os.path.join(os.path.dirname(os.path.abspath(__file__)), "head.txt")
SPIN_LIMIT = 0x40000
DPPF = "row_mask:0xf bank_mask:0xf"

L_QP, L_OP, L_ML, L_YP = 0, 2048, 4096, 4352
L_CNT, L_TR, L_SC = 4608, 4864, 8192
L_PROG, L_MODE = 4616, 4620
L_PQ = L_SC
LDS_BYTES = 8192 + 16384
WS_E, WS_F, WS_Q = 0x0, 0x100000, 0x200000
WS_P = 0x10000
WS_ST = 0x800000

S_WG, S_WAVE = 2, 3
P_X, P_K, P_V, P_WQ, P_WO, P_BX, P_W1, P_B1 = 8, 10, 12, 14, 16, 18, 20, 22
P_W2, P_B2, P_GW, P_OUT, P_DBG, P_WS = 24, 26, 28, 30, 32, 34
S_B, S_H, S_ROLE = 36, 37, 38
S_HI16, S_MI1, S_MI0 = 39, 40, 42
S_LOG2E, S_SCALE = 44, 45
S_T0, S_T1, S_T2, S_T3 = 46, 47, 48, 49
S_CNT, S_ID = 50, 51
SRD_A, SRD_B, SRD_C, SRD_D, SRD_E = 52, 56, 60, 64, 68
S_OFFA, S_OFFB = 72, 73
S_TS = 74
S_ST = 76
S_QC = 82


NOTES = """;
;     scores by v_dot2 + a transposing DPP reduction, softmax with the wave's true row maximum,
; Hand-off through d_ws: 16-byte granules {v0, tag_lo, v1, tag_hi}; the tag of a consumer is its epoch
; LDS: 0 q partials, 2048 o partials, 4096 m / l, 4352 mixer partials, 8192 scores.
"""


def f2u(x):
    return struct.unpack("<I", struct.pack("<f", x))[0]


def bitrev4(j):
    return ((j & 1) << 3) | ((j & 2) << 1) | ((j & 4) >> 1) | ((j & 8) >> 3)


class Cfg:
    D = 5
    D0 = 6
    DP = 6
    PF = 48
    DT = 8
    NT = 2
    kvflags = "nt"
    prio = 2
    wo_depth = 1
    wq_depth = 6
    wqflags = ""
    woflags = ""
    smflags = ""
    sc = "sc1"
    rot = 1
    roto = 1
    touchv = 1
    remap = 1
    qmode = "local"
    qsleep = 0
    fsleep = 0
    fmask = 1
    pollers = 1
    newton = 1
    esc = ""
    pairs = 1
    early = 1
    touch = 1
    stamps = 0
    auxoff = 0
    quick = 1
    fixdeep = -1
    ctl = 0
    DH = 7
    cbias = -3
    csleep = 24
    cact = 1
    cst = "sc1"
    cld = "sc1"
    cskip = 0
    cpeers = 8
    cwhen = 3
    coff = 24
    cgain = 44
    cmax = 5
    clocal = 1
    tripwire = 0
    tripid = 0
    dbgout = 0


def srd(a, reg, ptr, add_lo=None, add_hi=None, size=0):
    if add_lo is None:
        a(f"s_mov_b32 s{reg}, s{ptr}\ns_mov_b32 s{reg+1}, s{ptr+1}")
    else:
        a(f"s_add_u32 s{reg}, s{ptr}, {add_lo}")
        a(f"s_addc_u32 s{reg+1}, s{ptr+1}, {add_hi if add_hi is not None else 0}")
    a(f"s_mov_b32 s{reg+2}, {size}\ns_mov_b32 s{reg+3}, 0x20000")


def cross_rows(a, op, v, t):
    a(f"v_mov_b32 v{t}, v{v}")
    a(f"v_permlane16_swap_b32 v{v}, v{t}")
    a(f"{op} v{v}, v{v}, v{t}")
    a(f"v_mov_b32 v{t}, v{v}")
    a(f"v_permlane32_swap_b32 v{v}, v{t}")
    a(f"{op} v{v}, v{v}, v{t}")


def reduce64(a, op, v, t):
    for n in (8, 4, 2, 1):
        a(f"{op}_dpp v{v}, v{v}, v{v} row_ror:{n} {DPPF}")
    cross_rows(a, op, v, t)


def rne_bf16(a, v):
    a(f"v_cvt_pk_bf16_f32 v{v}, v{v}, v{v}")
    a(f"v_and_b32 v{v}, s{S_HI16}, v{v}")


def make_masks(a, vlane, m0, t0, t1):
    a(f"v_and_b32 v{t0}, 15, v{vlane}")
    a(f"v_and_b32 v{t1}, 1, v{t0}")
    a(f"v_lshlrev_b32 v{t1}, 4, v{t1}")
    a(f"v_mov_b32 v{m0}, 0xffff")
    a(f"v_lshlrev_b32 v{t1}, v{t1}, v{m0}")
    a(f"v_lshrrev_b32 v{t0}, 1, v{t0}")
    for r in range(4):
        a(f"v_cmp_eq_u32 vcc, {r}, v{t0}")
        a(f"v_cndmask_b32 v{m0+r}, 0, v{t1}, vcc")


def div(a, dst, num, den, t0, t1):
    a(f"v_rcp_f32 v{t0}, v{den}")
    a(f"v_mul_f32 v{t1}, v{num}, v{t0}")
    a(f"v_fma_f32 v{dst}, -v{den}, v{t1}, v{num}")
    a(f"v_fma_f32 v{dst}, v{dst}, v{t0}, v{t1}")


def rstamp(a, v, idx):
    a(f"s_memrealtime s[{S_ST}:{S_ST+1}]\ns_waitcnt lgkmcnt(0)")
    a(f"v_writelane_b32 v{v}, s{S_ST}, {idx}")


def dump_stamps(a, v, region, t):
    a(f"s_lshl_b32 s{S_ST+2}, s{S_ID}, 2\ns_add_u32 s{S_ST+2}, s{S_ST+2}, s{S_ROLE}\ns_lshl_b32 s{S_ST+2}, s{S_ST+2}, 8")
    a(f"s_add_u32 s{S_ST+2}, s{S_ST+2}, {region}")
    a(f"v_lshlrev_b32 v{t}, 2, v0\nv_add_u32 v{t}, s{S_ST+2}, v{t}")
    a(f"global_store_dword v{t}, v{v}, s[{P_WS}:{P_WS+1}]")


class VM:
    def __init__(self, a):
        self.a, self.issued, self.done = a, 0, 0

    def op(self, text):
        self.a(text)
        self.issued += 1
        return self.issued - 1

    def wait(self, k):
        if self.done <= k:
            self.a(f"s_waitcnt vmcnt({min(63, self.issued - k - 1)})")
            self.done = max(self.done, k + 1 if self.issued - k - 1 <= 63 else self.issued - 63)

    def gate(self, depth):
        k = self.issued - depth
        if k >= 0:
            self.wait(k)


def gen(**kw):
    c = Cfg()
    for k, v in kw.items():
        assert hasattr(c, k), k
        setattr(c, k, v)
    a = Asm()
    a(f".amdgcn_target \"amdgcn-amd-amdhsa--gfx950\"\n.text\n.globl {NAME}\n.p2align 8\n.type {NAME},@function\n{NAME}:")
    a(f"s_cmp_ge_u32 s{S_WG}, 256\ns_cbranch_scc1 L_done")
    a("v_lshrrev_b32 v1, 6, v0")
    a("v_and_b32 v0, 63, v0")
    a(f"v_readfirstlane_b32 s{S_WAVE}, v1")
    if c.stamps:
        a(f"s_memrealtime s[{S_ST+4}:{S_ST+5}]")
    if c.early and not c.stamps:
        a(f"s_cmp_ge_u32 s{S_WAVE}, 4\ns_cbranch_scc1 L_args_aux")
        a("s_load_dwordx4 s[8:11], s[0:1], 8\ns_branch L_args_done".replace("s[8:11]", "s[12:15]"))
        a("L_args_aux:")
    a("s_load_dwordx16 s[8:23], s[0:1], 0")
    a("s_load_dwordx8 s[24:31], s[0:1], 64")
    a("s_load_dwordx4 s[32:35], s[0:1], 96")
    if c.early and not c.stamps:
        a("L_args_done:")
    if c.remap:
        a(f"s_lshr_b32 s{S_B}, s{S_WG}, 3\ns_and_b32 s{S_B}, s{S_B}, 7")
        a(f"s_lshr_b32 s{S_H}, s{S_WG}, 6\ns_lshl_b32 s{S_H}, s{S_H}, 3\ns_and_b32 s{S_T0}, s{S_WG}, 7\ns_or_b32 s{S_H}, s{S_H}, s{S_T0}")
    else:
        a(f"s_lshr_b32 s{S_B}, s{S_WG}, 5\ns_and_b32 s{S_H}, s{S_WG}, 31")
    a(f"s_lshl_b32 s{S_ID}, s{S_B}, 5\ns_or_b32 s{S_ID}, s{S_ID}, s{S_H}")
    a(f"s_and_b32 s{S_ROLE}, s{S_WAVE}, 3")
    a(f"s_mov_b32 s{S_HI16}, 0xffff0000")
    a(f"s_mov_b32 s{S_LOG2E}, {f2u(1.4426950408889634):#x}")
    a(f"s_cmp_ge_u32 s{S_WAVE}, 4\ns_cbranch_scc1 L_aux")
    streamer(a, c)
    a("L_aux:")
    aux(a, c)
    a("L_done:\ns_endpgm")
    body = a.finish()
    head = open(HEAD).read()
    tail = f""".section .rodata,"a"
.p2align 6
.amdhsa_kernel {NAME}
  .amdhsa_next_free_vgpr 256
  .amdhsa_next_free_sgpr 96
  .amdhsa_accum_offset 256
  .amdhsa_group_segment_fixed_size 0
  .amdhsa_kernarg_size 112
  .amdhsa_user_sgpr_count 2
  .amdhsa_user_sgpr_kernarg_segment_ptr 1
  .amdhsa_system_sgpr_workgroup_id_x 1
  .amdhsa_float_denorm_mode_32 3
.end_amdhsa_kernel
"""
    return head + f"; @launch grid=(256,1,1) block=(512,1,1) lds={LDS_BYTES}\n" + NOTES + body + tail


def streamer(a, c):
    V_LANE, V_OFF, V_SCA = 0, 1, 2
    V_Q, V_MASK, V_A0, V_A1, V_ACC = 4, 8, 12, 16, 20
    V_P, V_T, V_U, V_X, V_S = 24, 26, 28, 30, 32
    V_T0, V_T1, V_M, V_L, V_P2, V_SN, V_P2N, V_ST = 33, 34, 35, 36, 37, 38, 39, 41
    V_TMP = 44
    V_PA, V_ONE, V_MD = 40, 42, 43
    R = 16
    PF, D = c.PF, c.D
    assert 16 <= PF <= 48 and max(D, c.DT, c.DP) < R
    PFB = 256 - 4 * PF
    assert PFB >= 60

    def dreg(n):
        return PFB + 4 * (n if n < PF else (n - PF) % R)

    if c.prio:
        a(f"s_setprio {c.prio}")
    a(f"v_lshlrev_b32 v{V_OFF}, 4, v{V_LANE}")
    a(f"s_lshl_b32 s{S_T0}, s{S_ROLE}, 12")
    a(f"v_add_u32 v{V_OFF}, s{S_T0}, v{V_OFF}")
    a(f"s_lshl_b32 s{S_T0}, s{S_ID}, 20\ns_lshr_b32 s{S_T1}, s{S_ID}, 12")
    a(f"s_mov_b32 s{S_OFFA}, 0\ns_mov_b32 s{S_OFFB}, 0")
    a("s_waitcnt lgkmcnt(0)")
    pk, pv = (12, 14) if c.early and not c.stamps else (P_K, P_V)
    srd(a, SRD_A, pk, f"s{S_T0}", f"s{S_T1}", 0x100000)
    srd(a, SRD_B, pv, f"s{S_T0}", f"s{S_T1}", 0x100000)
    vm = VM(a)

    def load_text(n):
        r = dreg(n)
        s, so = (SRD_A, S_OFFA) if n < 256 else (SRD_B, S_OFFB)
        t = f"buffer_load_dwordx4 v[{r}:{r+3}], v{V_OFF}, s[{s}:{s+3}], s{so} offen offset:{(n & 3) * 1024} {c.kvflags}"
        if n & 3 == 3:
            t += f"\ns_add_u32 s{so}, s{so}, 16384"
        return t

    def issue():
        vm.op(load_text(vm.issued))

    if c.stamps:
        a(f"v_mov_b32 v{V_ST}, 0")
        a(f"v_writelane_b32 v{V_ST}, s{S_ST+4}, 43")
        a(f"s_getreg_b32 s{S_ST+2}, hwreg(HW_REG_XCC_ID)\nv_writelane_b32 v{V_ST}, s{S_ST+2}, 44")
        a(f"s_getreg_b32 s{S_ST+2}, hwreg(HW_REG_HW_ID)\nv_writelane_b32 v{V_ST}, s{S_ST+2}, 45")
        rstamp(a, V_ST, 32)
    marks = sorted(set((c.D0, 8, 12, 16, 24, PF - 1)))
    def setup():
        a(f"s_mov_b32 s{S_MI1}, 0xcccccccc\ns_mov_b32 s{S_MI1+1}, 0xcccccccc")
        a(f"s_mov_b32 s{S_MI0}, 0xaaaaaaaa\ns_mov_b32 s{S_MI0+1}, 0xaaaaaaaa")
        a(f"s_mov_b32 s{S_SCALE}, {f2u(128 ** -0.5):#x}")
        make_masks(a, V_LANE, V_MASK, V_T0, V_T1)
        a(f"v_lshlrev_b32 v{V_SCA}, 2, v{V_LANE}")
        a(f"s_lshl_b32 s{S_T0}, s{S_ROLE}, 12\ns_add_u32 s{S_T0}, s{S_T0}, {L_SC}")
        a(f"v_add_u32 v{V_SCA}, s{S_T0}, v{V_SCA}")
        a(f"v_mov_b32 v{V_M}, 0xff800000")
        a(f"v_mov_b32 v{V_L}, 0")
        for r in range(4):
            a(f"v_mov_b32 v{V_ACC+r}, 0")
        a(f"v_and_b32 v{V_T0}, 15, v{V_LANE}\nv_lshlrev_b32 v{V_T0}, 5, v{V_T0}")

    for n in range(PF):
        if n == c.D0:
            setup()
        if n == c.D0 and c.qmode == "coop":
            a("s_barrier")
        if n >= c.D0:
            vm.gate(c.DP)
            if c.stamps and n in marks:
                rstamp(a, V_ST, 33 + marks.index(n))
        issue()
    a("s_barrier")
    QB = (V_TMP, V_TMP + 8, V_P, V_A0)
    for w in range(4):
        a(f"ds_read_b128 v[{QB[w]}:{QB[w]+3}], v{V_T0} offset:{L_QP + 512*w}")
        a(f"ds_read_b128 v[{QB[w]+4}:{QB[w]+7}], v{V_T0} offset:{L_QP + 512*w + 16}")
    a("s_waitcnt lgkmcnt(4)")
    for e in range(8):
        a(f"v_add_f32 v{QB[0]+e}, v{QB[0]+e}, v{QB[1]+e}")
    a("s_waitcnt lgkmcnt(0)")
    for e in range(8):
        a(f"v_add_f32 v{QB[2]+e}, v{QB[2]+e}, v{QB[3]+e}")
    for e in range(8):
        a(f"v_add_f32 v{QB[0]+e}, v{QB[0]+e}, v{QB[2]+e}")
    for r in range(4):
        a(f"v_cvt_pk_bf16_f32 v{V_Q+r}, v{V_TMP+2*r}, v{V_TMP+2*r+1}")
    if c.stamps:
        rstamp(a, V_ST, 40)
        a(f"s_mov_b32 s{S_ST+3}, 0")

    def gstamp():
        if c.stamps:
            a(f"s_memrealtime s[{S_ST}:{S_ST+1}]\ns_waitcnt lgkmcnt(0)")
            a(f"s_mov_b32 m0, s{S_ST+3}")
            a(f"v_writelane_b32 v{V_ST}, s{S_ST}, m0")
            a(f"s_add_u32 s{S_ST+3}, s{S_ST+3}, 1")

    def k_reduce(j):
        if j & 1:
            t = V_T + ((j >> 1) & 1)
            a(f"v_add_f32_dpp v{t}, v{V_P}, v{V_P} row_ror:8 row_mask:0xf bank_mask:0x3")
            a(f"v_add_f32_dpp v{t}, v{V_P+1}, v{V_P+1} row_ror:8 row_mask:0xf bank_mask:0xc")
        if j & 3 == 3:
            u = V_U + ((j >> 2) & 1)
            a(f"v_add_f32_dpp v{u}, v{V_T}, v{V_T} row_ror:12 row_mask:0xf bank_mask:0x5")
            a(f"v_add_f32_dpp v{u}, v{V_T+1}, v{V_T+1} row_ror:4 row_mask:0xf bank_mask:0xa")
        if j & 7 == 7:
            x = V_X + ((j >> 3) & 1)
            a(f"v_cndmask_b32 v{V_T0}, v{V_U}, v{V_U+1}, s[{S_MI1}:{S_MI1+1}]")
            a(f"v_cndmask_b32 v{V_T1}, v{V_U+1}, v{V_U}, s[{S_MI1}:{S_MI1+1}]")
            a(f"v_add_f32_dpp v{x}, v{V_T1}, v{V_T0} quad_perm:[2,3,0,1] {DPPF}")
        if j == 15:
            a(f"v_cndmask_b32 v{V_T0}, v{V_X}, v{V_X+1}, s[{S_MI0}:{S_MI0+1}]")
            a(f"v_cndmask_b32 v{V_T1}, v{V_X+1}, v{V_X}, s[{S_MI0}:{S_MI0+1}]")
            a(f"v_add_f32_dpp v{V_S}, v{V_T1}, v{V_T0} quad_perm:[1,0,3,2] {DPPF}")
            rne_bf16(a, V_S)
            a(f"v_mul_f32 v{V_S}, s{S_SCALE}, v{V_S}")
            rne_bf16(a, V_S)
            a(f"v_max_f32 v{V_M}, v{V_M}, v{V_S}")
            a(f"ds_write_b32 v{V_SCA}, v{V_S}")
            a(f"v_add_u32 v{V_SCA}, 0x100, v{V_SCA}")

    def k_step(n, j):
        r = dreg(n)
        p = V_P + (j & 1)
        a(f"v_dot2_f32_bf16 v{p}, v{r}, v{V_Q}, 0")
        for e in range(1, 4):
            a(f"v_dot2_f32_bf16 v{p}, v{r+e}, v{V_Q+e}, v{p}")
        k_reduce(j)

    LA = c.DH if (c.ctl or c.fixdeep >= 0) else D

    def static_feed(n, depth, look):
        while vm.issued < min(512, n + look + 1):
            vm.gate(depth)
            issue()
        vm.wait(n)

    def loop_feed(n, tag):
        a(f"s_waitcnt vmcnt({LA-1})")
        if c.ctl or c.fixdeep >= 0:
            a(f"s_cbranch_vccnz L_deep_{tag}")
            a(f"s_waitcnt vmcnt({D-1})")
            a(f"L_deep_{tag}:")
        a(load_text(n + LA))

    def ctl_hooks(j):
        if not c.ctl:
            return
        if j in (7, 15) and c.ctl == 1:
            a("s_mov_b64 exec, 1")
            a(f"ds_add_u32 v{V_PA}, v{V_ONE}")
            a("s_mov_b64 exec, -1")
        if j == 1:
            a(f"ds_read_b32 v{V_MD}, v{V_PA} offset:4")
        if j == 6:
            a("s_waitcnt lgkmcnt(0)")
            a(f"v_readfirstlane_b32 s{S_T0}, v{V_MD}")
            if c.ctl == 2:
                a(f"s_cmp_lt_u32 s{S_OFFB+10}, s{S_T0}\ns_cselect_b64 vcc, -1, 0")
                a(f"s_addc_u32 s{S_OFFB+10}, s{S_OFFB+10}, 0")
            else:
                a(f"s_cmp_lg_u32 s{S_T0}, 0\ns_cselect_b64 vcc, -1, 0")

    a("; scores of the prefetched K rows")
    g0 = (PF + LA - D + 15) // 16
    if c.ctl:
        a(f"v_mov_b32 v{V_PA}, {L_PROG}\nv_mov_b32 v{V_ONE}, 1")
        a("s_mov_b64 vcc, 0")
        a(f"s_mov_b32 s{S_OFFB+10}, 0")
    if c.fixdeep >= 0:
        a(f"s_cmp_lt_u32 s{S_ROLE}, {c.fixdeep}\ns_cselect_b64 vcc, -1, 0")
    skip = set()
    for n in range(16 * g0):
        if n < PF:
            target = max(PF + min(n, LA), n + LA)
            while vm.issued < target:
                vm.gate(D)
                issue()
            vm.wait(n)
        else:
            static_feed(n, D, LA)
        if n in skip:
            k_reduce(n & 15)
        elif c.pairs and n % 2 == 0 and n + 1 < PF and vm.done > n + 1:
            r0, r1 = dreg(n), dreg(n + 1)
            a(f"v_dot2_f32_bf16 v{V_P}, v{r0}, v{V_Q}, 0")
            a(f"v_dot2_f32_bf16 v{V_P+1}, v{r1}, v{V_Q}, 0")
            for e in range(1, 4):
                a(f"v_dot2_f32_bf16 v{V_P}, v{r0+e}, v{V_Q+e}, v{V_P}")
                a(f"v_dot2_f32_bf16 v{V_P+1}, v{r1+e}, v{V_Q+e}, v{V_P+1}")
            skip.add(n + 1)
        else:
            k_step(n, n & 15)
        if c.ctl and n & 7 == 7:
            ctl_hooks(7)
        if n & 15 == 15:
            gstamp()
    assert vm.issued == 16 * g0 + LA, vm.issued
    a(f"s_mov_b32 s{S_CNT}, {15 - g0}")
    a("L_kloop:")
    for j in range(16):
        n = 16 * g0 + j
        loop_feed(n, f"k{j}")
        k_step(n, j)
        ctl_hooks(j)
    gstamp()
    a(f"s_sub_u32 s{S_CNT}, s{S_CNT}, 1\ns_cmp_lg_u32 s{S_CNT}, 0\ns_cbranch_scc1 L_kloop")
    vm.issued, vm.done = 240 + LA, 240
    for n in range(240, 256):
        static_feed(n, D, LA)
        k_step(n, n & 15)
        if c.ctl and n & 7 == 7:
            ctl_hooks(7)
    gstamp()
    if c.stamps:
        rstamp(a, V_ST, 41)
    a("; row maximum of this wave's 1024 scores")
    reduce64(a, "v_max_f32", V_M, V_T0)
    a(f"v_add_u32 v{V_SCA}, {-16*256 & 0xffffffff:#x}, v{V_SCA}")
    a("s_waitcnt lgkmcnt(0)")
    a(f"ds_read_b32 v{V_SN}, v{V_SCA}")

    def probs(dst):
        a("s_waitcnt lgkmcnt(0)")
        a(f"v_sub_f32 v{V_T0}, v{V_SN}, v{V_M}")
        a(f"v_mul_f32 v{V_T0}, s{S_LOG2E}, v{V_T0}")
        a(f"v_exp_f32 v{V_T0}, v{V_T0}")
        a(f"v_add_f32 v{V_L}, v{V_L}, v{V_T0}")
        a(f"v_cvt_pk_bf16_f32 v{dst}, v{V_T0}, v{V_T0}")

    def build_a(dst, src, j):
        for r in range(4):
            a(f"v_and_b32_dpp v{dst+r}, v{src}, v{V_MASK+r} row_newbcast:{bitrev4(j)} {DPPF}")

    probs(V_P2)
    build_a(V_A0, V_P2, 0)

    def v_step(n, j, last):
        r = dreg(n)
        A, An = (V_A0, V_A1) if j % 2 == 0 else (V_A1, V_A0)
        a(f"v_mfma_f32_16x16x32_bf16 v[{V_ACC}:{V_ACC+3}], v[{A}:{A+3}], v[{r}:{r+3}], v[{V_ACC}:{V_ACC+3}]")
        if j < 15:
            build_a(An, V_P2, j + 1)
        elif not last:
            build_a(An, V_P2N, 0)
            a(f"v_mov_b32 v{V_P2}, v{V_P2N}")
        if not last:
            if j == 1:
                a(f"v_add_u32 v{V_SCA}, 0x100, v{V_SCA}")
                a(f"ds_read_b32 v{V_SN}, v{V_SCA}")
            if j == 6:
                probs(V_P2N)
        elif j == 1:
            reduce64(a, "v_add_f32", V_L, V_T0)

    NT = c.NT
    assert 1 <= NT <= 15 and vm.issued == 256 + LA
    a(f"s_mov_b32 s{S_CNT}, {16 - NT}")
    a("L_vloop:")
    for j in range(16):
        n = 256 + j
        loop_feed(n, f"v{j}")
        v_step(n, j, False)
        ctl_hooks(j)
    gstamp()
    a(f"s_sub_u32 s{S_CNT}, s{S_CNT}, 1\ns_cmp_lg_u32 s{S_CNT}, 0\ns_cbranch_scc1 L_vloop")
    n0 = 512 - 16 * NT
    vm.issued, vm.done = n0 + LA, n0
    for n in range(n0, 512):
        static_feed(n, c.DT, max(c.DT, LA))
        v_step(n, n & 15, n >= 496)
        if n & 15 == 15:
            gstamp()
    if c.stamps:
        rstamp(a, V_ST, 42)
    a(f"v_and_b32 v{V_T0}, 15, v{V_LANE}\nv_lshlrev_b32 v{V_T0}, 5, v{V_T0}")
    a(f"v_lshrrev_b32 v{V_T1}, 4, v{V_LANE}\nv_lshlrev_b32 v{V_T1}, 4, v{V_T1}")
    a(f"s_lshl_b32 s{S_T0}, s{S_ROLE}, 9")
    a(f"v_add3_u32 v{V_T0}, v{V_T0}, v{V_T1}, s{S_T0}")
    a(f"s_lshl_b32 s{S_T0}, s{S_ROLE}, 2")
    a(f"v_mov_b32 v{V_T1}, s{S_T0}")
    a("s_mov_b64 exec, 1")
    a(f"ds_write_b32 v{V_T1}, v{V_M} offset:{L_ML}")
    a(f"ds_write_b32 v{V_T1}, v{V_L} offset:{L_ML+16}")
    a("s_mov_b32 exec_lo, -1\ns_mov_b32 exec_hi, 0")
    a(f"ds_write_b128 v{V_T0}, v[{V_ACC}:{V_ACC+3}] offset:{L_OP}")
    a("s_waitcnt lgkmcnt(0)\ns_barrier")
    if c.stamps:
        a("s_mov_b64 exec, -1")
        dump_stamps(a, V_ST, WS_ST, V_T0)
    a("s_endpgm")


def control(a, c, R):
    PA, PP, TG, W, VAL, CN, T, OWN = R, R + 1, R + 2, R + 3, R + 4, R + 5, R + 6, R + 7
    EXIT = 8 * (32 - c.NT - 1)
    a(f"s_cmp_lg_u32 s{S_ROLE}, 1\ns_cbranch_scc1 L_ctl_done")
    if c.clocal:
        a(f"v_lshlrev_b32 v{PP}, 2, v0\nv_add_u32 v{PP}, 1, v{PP}\nv_lshlrev_b32 v{PP}, 3, v{PP}")
    else:
        a(f"v_add_u32 v{PP}, 1, v0\nv_mul_u32_u24 v{PP}, 33, v{PP}")
    a(f"v_add_u32 v{PP}, s{S_ID}, v{PP}\nv_and_b32 v{PP}, 255, v{PP}\nv_lshlrev_b32 v{PP}, 7, v{PP}")
    a("s_mov_b64 exec, 0xff")
    a(f"buffer_load_dword v{TG}, v{PP}, s[{SRD_C}:{SRD_C+3}], 0 offen")
    a("s_mov_b64 exec, -1")
    a(f"v_add_u32 v{PP}, {WS_P}, v{PP}")
    a(f"s_lshl_b32 s{S_T0}, s{S_ID}, 7\ns_add_u32 s{S_T0}, s{S_T0}, {WS_P}")
    a(f"v_mov_b32 v{OWN}, s{S_T0}")
    a(f"v_mov_b32 v{PA}, {L_PROG}")
    a(f"s_lshl_b32 s{S_QC}, s{S_TS}, 9")
    a("s_waitcnt vmcnt(0)")
    a(f"v_add_u32 v{TG}, 1, v{TG}\nv_and_b32 v{TG}, 0x7fffff, v{TG}")
    a(f"s_mov_b32 s{S_CNT}, {SPIN_LIMIT}")
    a("L_ctl:")
    a(f"ds_read_b32 v{T}, v{PA}")
    a(f"s_sub_u32 s{S_CNT}, s{S_CNT}, 1\ns_cbranch_scc1 L_ctl_done")
    a("s_waitcnt lgkmcnt(0)")
    a(f"v_readfirstlane_b32 s{S_T1}, v{T}")
    a(f"s_cmp_ge_u32 s{S_T1}, {EXIT}\ns_cbranch_scc1 L_ctl_done")
    a(f"s_or_b32 s{S_T0}, s{S_QC}, s{S_T1}")
    a(f"v_mov_b32 v{T}, s{S_T0}")
    a("s_mov_b64 exec, 1")
    if not c.cskip & 1:
        if c.cst == "swap":
            a(f"global_atomic_swap v{OWN}, v{T}, s[{P_WS}:{P_WS+1}]")
        elif c.cst == "swap1":
            a(f"global_atomic_swap v{OWN}, v{T}, s[{P_WS}:{P_WS+1}] sc1")
        else:
            a(f"global_store_dword v{OWN}, v{T}, s[{P_WS}:{P_WS+1}] {c.cst}")
    a(f"s_mov_b64 exec, {(1 << c.cpeers) - 1:#x}")
    if not c.cskip & 2:
        a(f"global_load_dword v{W}, v{PP}, s[{P_WS}:{P_WS+1}] {c.cld}")
    a("s_mov_b64 exec, -1")
    a(f"v_mov_b32 v{VAL}, 0\nv_mov_b32 v{CN}, 0")
    a("s_waitcnt vmcnt(0)")
    a(f"s_mov_b64 exec, {(1 << c.cpeers) - 1:#x}")
    a(f"v_lshrrev_b32 v{T}, 9, v{W}")
    a(f"v_cmp_eq_u32 vcc, v{T}, v{TG}")
    a(f"v_and_b32 v{W}, 0x1ff, v{W}")
    a(f"v_cndmask_b32 v{VAL}, 0, v{W}, vcc")
    a(f"v_cndmask_b32 v{CN}, 0, 1, vcc")
    a("s_mov_b64 exec, -1")
    for n in (4, 2, 1):
        a(f"v_add_u32_dpp v{VAL}, v{VAL}, v{VAL} row_shl:{n} row_mask:0xf bank_mask:0xf bound_ctrl:0")
        a(f"v_add_u32_dpp v{CN}, v{CN}, v{CN} row_shl:{n} row_mask:0xf bank_mask:0xf bound_ctrl:0")
    a(f"v_readfirstlane_b32 s{S_T2}, v{VAL}\nv_readfirstlane_b32 s{S_T3}, v{CN}")
    a(f"s_add_i32 s{S_T1}, s{S_T1}, {c.cbias}\ns_mul_i32 s{S_T1}, s{S_T1}, s{S_T3}")
    a(f"s_cmp_lt_i32 s{S_T1}, s{S_T2}\ns_cselect_b32 s{S_T0}, {1 if c.cact else 0}, 0")
    a(f"v_mov_b32 v{T}, s{S_T0}")
    a(f"ds_write_b32 v{PA}, v{T} offset:4")
    a(f"s_sleep {c.csleep}")
    a("s_branch L_ctl")
    a("L_ctl_done:")


def oneshot_publish(a, c):
    T0, T1 = 104, 105
    a(f"s_cmp_lg_u32 s{S_ROLE}, 1\ns_cbranch_scc1 L_os_pub_done")
    a(f"s_memrealtime s[{S_ST}:{S_ST+1}]")
    a(f"s_lshl_b32 s{S_T0}, s{S_ID}, 7\ns_add_u32 s{S_T0}, s{S_T0}, {WS_P}")
    a(f"v_mov_b32 v106, s{S_T0}")
    a("s_waitcnt lgkmcnt(0)")
    a(f"s_mov_b32 s{S_QC}, s{S_ST}")
    a(f"v_mov_b32 v{T0}, s{S_TS}\nv_mov_b32 v{T1}, s{S_ST}")
    a("s_mov_b64 exec, 1")
    a(f"global_store_dwordx2 v106, v[{T0}:{T1}], s[{P_WS}:{P_WS+1}]")
    a("s_mov_b64 exec, -1")
    a(f"v_lshlrev_b32 v107, 2, v0\nv_add_u32 v107, 1, v107\nv_lshlrev_b32 v107, 3, v107")
    a(f"v_add_u32 v107, s{S_ID}, v107\nv_and_b32 v107, 255, v107\nv_lshlrev_b32 v107, 7, v107")
    a("s_mov_b64 exec, 0xff")
    a(f"buffer_load_dword v108, v107, s[{SRD_C}:{SRD_C+3}], 0 offen")
    a("s_mov_b64 exec, -1")
    a(f"v_add_u32 v107, {WS_P}, v107")
    a("L_os_pub_done:")


def oneshot_decide(a, c):
    W, VAL, CN, T = 104, 109, 110, 111
    a(f"s_cmp_lg_u32 s{S_ROLE}, 1\ns_cbranch_scc1 L_os_dec_done")
    a("s_mov_b64 exec, 0xff")
    a(f"global_load_dwordx2 v[{W}:{W+1}], v107, s[{P_WS}:{P_WS+1}] sc1")
    a("s_mov_b64 exec, -1")
    a(f"v_mov_b32 v{VAL}, 0\nv_mov_b32 v{CN}, 0")
    a("s_waitcnt vmcnt(0)")
    a("s_mov_b64 exec, 0xff")
    a(f"v_add_u32 v{T}, 1, v108")
    a(f"v_cmp_eq_u32 vcc, v{T}, v{W}")
    a(f"v_subrev_u32 v{T}, v{W+1}, s{S_QC}".replace(f"v_subrev_u32 v{T}, v{W+1}, s{S_QC}", f"v_sub_u32 v{T}, s{S_QC}, v{W+1}"))
    a(f"v_cndmask_b32 v{VAL}, 0, v{T}, vcc")
    a(f"v_cndmask_b32 v{CN}, 0, 1, vcc")
    a("s_mov_b64 exec, -1")
    for n in (4, 2, 1):
        a(f"v_add_u32_dpp v{VAL}, v{VAL}, v{VAL} row_shl:{n} row_mask:0xf bank_mask:0xf bound_ctrl:0")
        a(f"v_add_u32_dpp v{CN}, v{CN}, v{CN} row_shl:{n} row_mask:0xf bank_mask:0xf bound_ctrl:0")
    a(f"v_readfirstlane_b32 s{S_T2}, v{VAL}\nv_readfirstlane_b32 s{S_T3}, v{CN}")
    a(f"s_mov_b32 s{S_T0}, 0")
    for k in range(c.cmax):
        a(f"s_mul_i32 s{S_T1}, s{S_T3}, {c.coff + k * c.cgain}")
        a(f"s_cmp_gt_i32 s{S_T2}, s{S_T1}")
        a(f"s_addc_u32 s{S_T0}, s{S_T0}, 0")
    a(f"v_mov_b32 v{T}, s{S_T0}\nv_mov_b32 v{VAL}, {L_MODE}")
    a(f"ds_write_b32 v{VAL}, v{T}")
    a("L_os_dec_done:")


def aux(a, c):
    V_LANE, V_G, V_C = 0, 1, 2
    V_MASK, V_A0, V_A1, V_ACC = 4, 8, 12, 16
    V_X0, V_X1, V_T0, V_T1, V_T2, V_T3 = 20, 21, 22, 23, 24, 25
    V_OFF, V_H, V_GATE, V_Y1, V_Y2, V_C1, V_C2 = 26, 27, 28, 29, 30, 31, 32
    V_ST, V_JUNK, V_OFF2 = 33, 3, 57
    V_TQ, V_TQ2, V_TF, V_TS = 34, 102, 58, 100
    V_W1, V_B1, V_W2 = 36, 43, 50
    E = V_E = 60
    G0 = E + 16
    V_QA = 160
    WB = 128
    sc = c.sc
    coop = c.qmode == "coop"
    vm = VM(a)

    def build_a(dst, src, i):
        for r in range(4):
            a(f"v_and_b32_dpp v{dst+r}, v{src}, v{V_MASK+r} row_newbcast:{i} {DPPF}")

    def granule(dst, v0, v1, tag):
        a(f"v_mov_b32 v{dst}, v{v0}\nv_mov_b32 v{dst+1}, v{tag}\nv_mov_b32 v{dst+2}, v{v1}\nv_mov_b32 v{dst+3}, v{tag+1}")

    def tags_bad(regs):
        a(f"v_cmp_ne_u32 vcc, s{S_TS}, v{regs[0]+1}")
        for k, g in enumerate(regs):
            if k:
                a(f"v_cmp_ne_u32 s[{S_T2}:{S_T2+1}], s{S_TS}, v{g+1}")
                a(f"s_or_b64 vcc, vcc, s[{S_T2}:{S_T2+1}]")
            a(f"v_cmp_ne_u32 s[{S_T2}:{S_T2+1}], s{S_TS+1}, v{g+3}")
            a(f"s_or_b64 vcc, vcc, s[{S_T2}:{S_T2+1}]")

    def rot_index(dst, be, on):
        if on:
            a(f"s_lshl_b32 s{S_T2}, s{S_B}, 2")
            a(f"v_add_u32 v{dst}, s{S_T2}, v{V_C}")
        else:
            a(f"v_mov_b32 v{dst}, v{V_C}")
        if be:
            a(f"v_add_u32 v{dst}, 16, v{dst}")
        a(f"v_and_b32 v{dst}, 31, v{dst}")

    a(f"v_lshrrev_b32 v{V_G}, 4, v{V_LANE}\nv_and_b32 v{V_C}, 15, v{V_LANE}")
    a(f"v_lshlrev_b32 v{V_OFF}, 13, v{V_G}\nv_lshl_add_u32 v{V_OFF}, v{V_C}, 4, v{V_OFF}")
    if coop:
        a(f"v_lshrrev_b32 v{V_T0}, 2, v{V_C}\nv_lshlrev_b32 v{V_T0}, 10, v{V_T0}")
        a(f"v_and_b32 v{V_T1}, 3, v{V_C}\nv_lshlrev_b32 v{V_T1}, 3, v{V_T1}")
        a(f"v_lshl_add_u32 v{V_T1}, v{V_G}, 1, v{V_T1}")
        a(f"s_lshl_b32 s{S_T0}, s{S_B}, 7\ns_lshl_b32 s{S_T1}, s{S_ROLE}, 5\ns_add_u32 s{S_T0}, s{S_T0}, s{S_T1}")
        a(f"v_add3_u32 v{V_T0}, v{V_T0}, v{V_T1}, s{S_T0}")
        a(f"v_add_u32 v{V_T3}, 0x1000, v{V_T0}")
        a(f"s_lshl_b32 s{S_OFFA}, s{S_B}, 19\ns_lshl_b32 s{S_T1}, s{S_ROLE}, 17\ns_add_u32 s{S_OFFA}, s{S_OFFA}, s{S_T1}")
    else:
        a(f"s_lshl_b32 s{S_T0}, s{S_B}, 10\ns_lshl_b32 s{S_T1}, s{S_ROLE}, 8\ns_add_u32 s{S_T0}, s{S_T0}, s{S_T1}")
        for be, dst in ((0, V_T0), (1, V_T3)):
            rot_index(dst, be, c.rot)
            a(f"v_lshlrev_b32 v{dst}, 3, v{dst}\nv_lshl_add_u32 v{dst}, v{V_G}, 1, v{dst}")
            a(f"v_add_u32 v{dst}, s{S_T0}, v{dst}")
        a(f"s_lshl_b32 s{S_OFFA}, s{S_ROLE}, 20")
        a(f"s_lshl_b32 s{S_OFFB}, s{S_B}, 17" if c.rot else f"s_mov_b32 s{S_OFFB}, 0")
    a(f"v_lshrrev_b32 v{V_T2}, 1, v{V_C}")
    a(f"s_lshl_b32 s{S_T1}, s{S_B}, 5\ns_lshl_b32 s{S_T2}, s{S_ROLE}, 3\ns_add_u32 s{S_T1}, s{S_T1}, s{S_T2}")
    a(f"v_add_u32 v{V_T2}, s{S_T1}, v{V_T2}\nv_lshlrev_b32 v{V_T2}, 7, v{V_T2}")
    a(f"s_lshl_b32 s{S_T1}, s{S_ID}, 7")
    a(f"v_mov_b32 v{V_Y1}, s{S_T1}")
    if coop:
        a(f"s_lshl_b32 s{S_T1}, s{S_ROLE}, 6\ns_add_u32 s{S_T1}, s{S_T1}, s{S_H}")
        a(f"s_lshl_b32 s{S_QC}, s{S_T1}, 13")
        a(f"s_lshl_b32 s{S_T1}, s{S_T1}, 7")
        a(f"v_mov_b32 v{V_T1}, s{S_T1}")
    a(f"s_lshl_b32 s{S_T1}, s{S_H}, 8")
    a(f"s_sub_u32 s{S_T2}, 0x400000, s{S_T1}")
    a("s_waitcnt lgkmcnt(0)")
    if c.stamps:
        a(f"v_mov_b32 v{V_ST}, 0")
        a(f"v_writelane_b32 v{V_ST}, s{S_ST+4}, 16")
        rstamp(a, V_ST, 0)
    srd(a, SRD_B, P_WQ, f"s{S_T1}", None, f"s{S_T2}")
    srd(a, SRD_A, P_X, None, None, 8192 + 64)
    NW = 4 if coop else 32

    def wq_load(j):
        if coop:
            k = vm.op(f"buffer_load_dwordx4 v[{WB+4*j}:{WB+4*j+3}], v{V_OFF}, s[{SRD_B}:{SRD_B+3}], s{S_OFFA} offen {c.wqflags}")
            if j < NW - 1:
                a(f"s_add_u32 s{S_OFFA}, s{S_OFFA}, 32768")
        else:
            a(f"s_add_u32 s{S_T3}, s{S_OFFA}, s{S_OFFB}")
            k = vm.op(f"buffer_load_dwordx4 v[{WB+4*j}:{WB+4*j+3}], v{V_OFF}, s[{SRD_B}:{SRD_B+3}], s{S_T3} offen {c.wqflags}")
            if j < NW - 1:
                a(f"s_add_u32 s{S_OFFB}, s{S_OFFB}, 32768\ns_and_b32 s{S_OFFB}, s{S_OFFB}, 0xfffff")
        return k

    XS = (V_X0, V_X1)
    vm.op(f"buffer_load_ushort v{V_X0}, v{V_T0}, s[{SRD_A}:{SRD_A+3}], 0 offen {c.smflags}")
    kx = vm.op(f"buffer_load_ushort v{V_X1}, v{V_T3}, s[{SRD_A}:{SRD_A+3}], 0 offen {c.smflags}")
    wq_k = {}
    first = min(NW, c.wq_depth)
    head = min(first, 4)
    for j in range(head):
        wq_k[j] = wq_load(j)
    srd(a, SRD_C, P_WS, None, None, 0x8000)
    vm.op(f"buffer_load_dwordx2 v[{V_TF}:{V_TF+1}], v{V_T2}, s[{SRD_C}:{SRD_C+3}], 0 offen {c.smflags}")
    ke = vm.op(f"buffer_load_dwordx2 v[{V_TS}:{V_TS+1}], v{V_Y1}, s[{SRD_C}:{SRD_C+3}], 0 offen {c.smflags}")
    if coop:
        vm.op(f"buffer_load_dwordx2 v[{V_TQ}:{V_TQ+1}], v{V_T1}, s[{SRD_C}:{SRD_C+3}], 0 offen {c.smflags}")
        a(f"v_add_u32 v{V_T1}, 0x1000, v{V_T1}")
        ke = vm.op(f"buffer_load_dwordx2 v[{V_TQ2}:{V_TQ2+1}], v{V_T1}, s[{SRD_C}:{SRD_C+3}], 0 offen {c.smflags}")
    if c.touch:
        a("; first touch of the pages used later (address translation only, the values are discarded)")
        a(f"v_mov_b32 v{V_JUNK}, 0")
        a(f"v_mov_b32 v{V_T1}, 0")
        for p in (P_GW, P_W1, P_B1, P_W2, P_B2, P_WO, P_OUT):
            vm.op(f"global_load_ushort v{V_JUNK}, v{V_T1}, s[{p}:{p+1}] {c.smflags}")
        a(f"v_mov_b32 v{V_T1}, {WS_F}")
        vm.op(f"global_load_dword v{V_JUNK}, v{V_T1}, s[{P_WS}:{P_WS+1}] {c.smflags}")
        if c.touchv:
            a(f"s_lshl_b32 s{S_T0}, s{S_ID}, 20\ns_lshr_b32 s{S_T1}, s{S_ID}, 12")
            srd(a, SRD_E, P_V, f"s{S_T0}", f"s{S_T1}", 0x100000)
            a(f"v_mov_b32 v{V_T1}, 0")
            vm.op(f"buffer_load_dword v{V_JUNK}, v{V_T1}, s[{SRD_E}:{SRD_E+3}], 0 offen nt")
        if coop:
            a(f"v_mov_b32 v{V_T1}, {WS_Q}")
            vm.op(f"global_load_dword v{V_JUNK}, v{V_T1}, s[{P_WS}:{P_WS+1}] {c.smflags}")
    for j in range(head, first):
        wq_k[j] = wq_load(j)
    if c.stamps:
        rstamp(a, V_ST, 1)
    make_masks(a, V_LANE, V_MASK, V_T1, V_T2)

    if coop:
        a(f"v_mov_b32 v{V_T2}, 0\nv_mov_b32 v{V_T3}, {L_CNT}")
        a(f"ds_write_b32 v{V_T3}, v{V_T2}")
        for r in range(32):
            a(f"v_mov_b32 v{V_QA+r}, 0")
        a("s_waitcnt lgkmcnt(0)\ns_barrier")
        vm.wait(max(kx, wq_k[3]))
        if c.stamps:
            rstamp(a, V_ST, 2)
        for x in XS:
            a(f"v_lshl_or_b32 v{x}, v{x}, 16, v{x}")
        seq = [(j, bb) for j in range(4) for bb in range(8)]
        build_a(V_A0, XS[0], 0)
        for k, (j, bb) in enumerate(seq):
            A, An = (V_A0, V_A1) if k % 2 == 0 else (V_A1, V_A0)
            if k + 1 < len(seq):
                jn, bn = seq[k + 1]
                build_a(An, XS[bn >> 2], 4 * (bn & 3) + jn)
            acc = V_QA + 4 * bb
            a(f"v_mfma_f32_16x16x32_bf16 v[{acc}:{acc+3}], v[{A}:{A+3}], v[{WB+4*j}:{WB+4*j+3}], v[{acc}:{acc+3}]")
        if c.stamps:
            rstamp(a, V_ST, 3)
        a(f"v_lshlrev_b32 v{V_T0}, 5, v{V_C}\nv_lshl_add_u32 v{V_T0}, v{V_G}, 4, v{V_T0}")
        a(f"s_lshl_b32 s{S_T0}, s{S_ROLE}, 12")
        a(f"v_add_u32 v{V_T0}, s{S_T0}, v{V_T0}")
        a("s_mov_b32 exec_lo, -1\ns_mov_b32 exec_hi, 0")
        for bb in range(8):
            a(f"ds_write_b128 v{V_T0}, v[{V_QA+4*bb}:{V_QA+4*bb+3}] offset:{L_PQ + 512*bb}")
        a("s_mov_b64 exec, 1")
        a(f"v_mov_b32 v{V_T2}, 1")
        a(f"ds_add_u32 v{V_T3}, v{V_T2}")
        a("s_mov_b64 exec, -1")
        a(f"s_lshl_b32 s{S_T0}, s{S_B}, 10\ns_add_u32 s{S_QC}, s{S_QC}, s{S_T0}")
        a(f"v_lshlrev_b32 v{V_X1}, 4, v{V_LANE}\nv_add_u32 v{V_X1}, s{S_QC}, v{V_X1}")
        a(f"v_lshlrev_b32 v{V_T0}, 3, v{V_LANE}")
        a(f"s_lshl_b32 s{S_T0}, s{S_ROLE}, 10")
        a(f"v_add_u32 v{V_T0}, s{S_T0}, v{V_T0}")
        vm.wait(ke)
        for t in (V_TQ, V_TQ2, V_TF, V_TS):
            a(f"v_add_u32 v{t}, 1, v{t}\nv_add_u32 v{t+1}, 1, v{t+1}")
        a(f"s_mov_b32 s{S_T0}, {WS_Q}")
        srd(a, SRD_D, P_WS, f"s{S_T0}", None, 0x200000)
        a(f"s_mov_b32 s{S_CNT}, {SPIN_LIMIT}")
        a("L_qsync:")
        a(f"ds_read_b32 v{V_T2}, v{V_T3}")
        a(f"s_sub_u32 s{S_CNT}, s{S_CNT}, 1\ns_cbranch_scc1 L_qsync_out")
        a("s_waitcnt lgkmcnt(0)")
        a(f"v_readfirstlane_b32 s{S_T1}, v{V_T2}")
        a(f"s_cmp_lt_u32 s{S_T1}, 4\ns_cbranch_scc1 L_qsync")
        a("L_qsync_out:")
        for be in range(2):
            for w in range(4):
                a(f"ds_read_b64 v[{E+8*be+2*w}:{E+8*be+2*w+1}], v{V_T0} offset:{L_PQ + 4096*w + 512*be}")
        a(f"v_readfirstlane_b32 s{S_TS}, v{V_TS}\nv_readfirstlane_b32 s{S_TS+1}, v{V_TS+1}")
        a("s_waitcnt lgkmcnt(0)")
        for be in range(2):
            B = E + 8 * be
            for r in range(2):
                a(f"v_add_f32 v{B+r}, v{B+r}, v{B+2+r}\nv_add_f32 v{B+4+r}, v{B+4+r}, v{B+6+r}")
            for r in range(2):
                a(f"v_add_f32 v{B+r}, v{B+r}, v{B+4+r}")
            granule(G0 + 4 * be, B, B + 1, V_TQ2 if be else V_TQ)
        a(f"buffer_store_dwordx4 v[{G0}:{G0+3}], v{V_X1}, s[{SRD_D}:{SRD_D+3}], 0 offen {sc}")
        a(f"s_mov_b32 s{S_T0}, 0x40000")
        a(f"buffer_store_dwordx4 v[{G0+4}:{G0+7}], v{V_X1}, s[{SRD_D}:{SRD_D+3}], s{S_T0} offen {sc}")
        if c.stamps:
            rstamp(a, V_ST, 4)
        a(f"s_lshl_b32 s{S_T0}, s{S_ID}, 13\ns_lshl_b32 s{S_T1}, s{S_ROLE}, 11\ns_add_u32 s{S_T0}, s{S_T0}, s{S_T1}")
        a(f"v_lshlrev_b32 v{V_T0}, 4, v{V_LANE}\nv_add_u32 v{V_T0}, s{S_T0}, v{V_T0}")
        a(f"s_mov_b32 s{S_CNT}, {SPIN_LIMIT}")
        a("L_qpoll:")
        a(f"buffer_load_dwordx4 v[{E}:{E+3}], v{V_T0}, s[{SRD_D}:{SRD_D+3}], 0 offen {sc}")
        a(f"buffer_load_dwordx4 v[{E+4}:{E+7}], v{V_T0}, s[{SRD_D}:{SRD_D+3}], 0 offen offset:1024 {sc}")
        a(f"s_sub_u32 s{S_CNT}, s{S_CNT}, 1\ns_cbranch_scc1 L_qpoll_out")
        a("s_waitcnt vmcnt(0)")
        tags_bad((E, E + 4))
        if c.qsleep:
            a("s_cbranch_vccz L_qpoll_out")
            a(f"s_sleep {c.qsleep}")
            a("s_branch L_qpoll")
        else:
            a("s_cbranch_vccnz L_qpoll")
        a("L_qpoll_out:")
        if c.stamps:
            rstamp(a, V_ST, 7)
        a(f"v_add_f32 v{E}, v{E}, v{E+4}\nv_add_f32 v{E+1}, v{E+2}, v{E+6}")
        a(f"v_lshlrev_b32 v{V_T0}, 3, v{V_LANE}")
        a(f"s_lshl_b32 s{S_T0}, s{S_ROLE}, 9")
        a(f"v_add_u32 v{V_T0}, s{S_T0}, v{V_T0}")
        a(f"ds_write_b64 v{V_T0}, v[{E}:{E+1}] offset:{L_QP}")
        a("s_waitcnt lgkmcnt(0)\ns_barrier")
        vm.done = vm.issued
    else:
        for r in range(4):
            a(f"v_mov_b32 v{V_ACC+r}, 0")
        vm.wait(kx)
        if c.stamps:
            rstamp(a, V_ST, 2)
        for x in XS:
            a(f"v_lshl_or_b32 v{x}, v{x}, 16, v{x}")
        build_a(V_A0, XS[0], 0)
        nxt = first
        for j in range(32):
            A, An = (V_A0, V_A1) if j % 2 == 0 else (V_A1, V_A0)
            if j < 31:
                build_a(An, XS[(j + 1) >> 4], (j + 1) & 15)
            vm.wait(wq_k[j])
            if nxt < 32:
                wq_k[nxt] = wq_load(nxt)
                nxt += 1
            if c.stamps and j in (0, 8, 16, 24, 31):
                rstamp(a, V_ST, 3 + (0, 8, 16, 24, 31).index(j))
            a(f"v_mfma_f32_16x16x32_bf16 v[{V_ACC}:{V_ACC+3}], v[{A}:{A+3}], v[{WB+4*j}:{WB+4*j+3}], v[{V_ACC}:{V_ACC+3}]")
        a(f"v_lshlrev_b32 v{V_T0}, 5, v{V_C}\nv_lshl_add_u32 v{V_T0}, v{V_G}, 4, v{V_T0}")
        a(f"s_lshl_b32 s{S_T0}, s{S_ROLE}, 9")
        a(f"v_add_u32 v{V_T0}, s{S_T0}, v{V_T0}")
        a("s_mov_b32 exec_lo, -1\ns_mov_b32 exec_hi, 0")
        a(f"ds_write_b128 v{V_T0}, v[{V_ACC}:{V_ACC+3}] offset:{L_QP}")
        a("s_mov_b64 exec, -1")
        if c.ctl:
            a(f"v_mov_b32 v{V_T0}, {L_PROG}\nv_mov_b32 v{V_T2}, 0\nv_mov_b32 v{V_T3}, 0")
            a(f"ds_write_b64 v{V_T0}, v[{V_T2}:{V_T3}]")
        a("s_waitcnt lgkmcnt(0)\ns_barrier")
        vm.wait(vm.issued - 1)
        for t in (V_TF, V_TS):
            a(f"v_add_u32 v{t}, 1, v{t}\nv_add_u32 v{t+1}, 1, v{t+1}")
        a(f"v_readfirstlane_b32 s{S_TS}, v{V_TS}\nv_readfirstlane_b32 s{S_TS+1}, v{V_TS+1}")
    if c.stamps:
        rstamp(a, V_ST, 8)

    if c.ctl == 2:
        oneshot_publish(a, c)
    a(f"s_lshl_b32 s{S_T0}, s{S_B}, 10")
    srd(a, SRD_A, P_X, f"s{S_T0}", None, 1024 + 64)
    VB = V_E
    a(f"v_lshlrev_b32 v{V_T0}, 4, v{V_LANE}")
    a(f"buffer_load_dwordx4 v[{VB}:{VB+3}], v{V_T0}, s[{SRD_A}:{SRD_A+3}], 0 offen {c.smflags}")
    a(f"s_lshl_b32 s{S_T1}, s{S_H}, 5")
    a(f"v_lshlrev_b32 v{V_T1}, 1, v{V_C}")
    a(f"buffer_load_ushort v{V_H}, v{V_T1}, s[{SRD_A}:{SRD_A+3}], s{S_T1} offen {c.smflags}")
    srd(a, SRD_A, P_GW, None, None, 1024)
    a(f"buffer_load_dwordx4 v[{VB+8}:{VB+11}], v{V_T0}, s[{SRD_A}:{SRD_A+3}], 0 offen {c.smflags}")
    a(f"s_mul_i32 s{S_T1}, s{S_ROLE}, 896")
    a(f"v_lshlrev_b32 v{V_T1}, 1, v{V_LANE}")
    for base, ptr in ((V_W1, P_W1), (V_B1, P_B1), (V_W2, P_W2)):
        srd(a, SRD_A, ptr, None, None, 3584 + 64)
        for t in range(7):
            a(f"buffer_load_ushort v{base+t}, v{V_T1}, s[{SRD_A}:{SRD_A+3}], s{S_T1} offen offset:{128*t} {c.smflags}")
    srd(a, SRD_A, P_B2, None, None, 64)
    a(f"v_mov_b32 v{V_T2}, 0")
    a(f"buffer_load_ushort v{V_Y2}, v{V_T2}, s[{SRD_A}:{SRD_A+3}], 0 offen {c.smflags}")
    a("s_waitcnt vmcnt(0)")
    if c.stamps:
        rstamp(a, V_ST, 9)

    a(f"s_lshl_b32 s{S_T0}, s{S_H}, 17")
    srd(a, SRD_B, P_WO, f"s{S_T0}", None, 131072)
    a(f"v_lshlrev_b32 v{V_OFF}, 10, v{V_G}\nv_lshl_add_u32 v{V_OFF}, v{V_C}, 4, v{V_OFF}")
    a(f"s_lshl_b32 s{S_T0}, s{S_ROLE}, 8")
    a(f"v_add_u32 v{V_OFF}, s{S_T0}, v{V_OFF}")
    a(f"s_lshl_b32 s{S_OFFA}, s{S_B}, 14" if c.roto else f"s_mov_b32 s{S_OFFA}, 0")
    for j in range(32 if not (c.auxoff & 1) else 0):
        if c.ctl == 2 and j == c.cwhen:
            oneshot_decide(a, c)
        if j >= c.wo_depth:
            a(f"s_waitcnt vmcnt({c.wo_depth-1})")
        a(f"buffer_load_dwordx4 v[{WB+4*j}:{WB+4*j+3}], v{V_OFF}, s[{SRD_B}:{SRD_B+3}], s{S_OFFA} offen {c.woflags}")
        if j < 31:
            a(f"s_add_u32 s{S_OFFA}, s{S_OFFA}, 4096\ns_and_b32 s{S_OFFA}, s{S_OFFA}, 0x1ffff")
    if c.stamps:
        rstamp(a, V_ST, 10)

    def unpack8(src, dst):
        for r in range(4):
            a(f"v_lshlrev_b32 v{dst+2*r}, 16, v{src+r}")
            a(f"v_and_b32 v{dst+2*r+1}, s{S_HI16}, v{src+r}")

    def sum8(src, dst):
        a(f"v_add_f32 v{dst}, v{src}, v{src+1}")
        for e in range(2, 8):
            a(f"v_add_f32 v{dst}, v{dst}, v{src+e}")

    a("; gate")
    U = V_E + 12
    unpack8(VB, U)
    unpack8(VB + 8, U + 8)
    for e in range(8):
        a(f"v_mul_f32 v{U+e}, v{U+e}, v{U+8+e}")
    for r in range(4):
        a(f"v_cvt_pk_bf16_f32 v{U+8+r}, v{U+2*r}, v{U+2*r+1}")
    unpack8(U + 8, U)
    sum8(U, V_GATE)
    reduce64(a, "v_add_f32", V_GATE, V_T0)
    rne_bf16(a, V_GATE)
    a(f"v_mul_f32 v{V_GATE}, s{S_LOG2E}, v{V_GATE}")
    a(f"v_sub_f32 v{V_GATE}, 0, v{V_GATE}")
    a(f"v_exp_f32 v{V_GATE}, v{V_GATE}")
    a(f"v_add_f32 v{V_GATE}, 1.0, v{V_GATE}")
    a(f"v_rcp_f32 v{V_GATE}, v{V_GATE}")
    rne_bf16(a, V_GATE)

    unpack8(VB, U)
    sum8(U, V_T2)
    reduce64(a, "v_add_f32", V_T2, V_T0)
    a(f"v_mul_f32 v{V_T2}, {f2u(1/512):#x}, v{V_T2}")
    for e in range(8):
        a(f"v_sub_f32 v{U+e}, v{U+e}, v{V_T2}")
        a(f"v_mul_f32 v{U+e}, v{U+e}, v{U+e}")
    sum8(U, V_T3)
    reduce64(a, "v_add_f32", V_T3, V_T0)
    a(f"v_mul_f32 v{V_T3}, {f2u(1/512):#x}, v{V_T3}")
    rne_bf16(a, V_T2)
    rne_bf16(a, V_T3)
    a(f"v_add_f32 v{V_T3}, {f2u(1e-5):#x}, v{V_T3}")
    rne_bf16(a, V_T3)
    a(f"v_sqrt_f32 v{V_T3}, v{V_T3}")
    rne_bf16(a, V_T3)
    a(f"v_lshlrev_b32 v{V_H}, 16, v{V_H}")
    a(f"v_sub_f32 v{V_H}, v{V_H}, v{V_T2}")
    rne_bf16(a, V_H)
    div(a, V_H, V_H, V_T3, V_T0, V_T1)
    rne_bf16(a, V_H)
    if c.stamps:
        rstamp(a, V_ST, 11)

    for t in range(7):
        for base in (V_W1, V_B1, V_W2):
            a(f"v_lshlrev_b32 v{base+t}, 16, v{base+t}")
    kb = 0.7978845608028654
    c1 = -2.0 * kb * 1.4426950408889634
    a(f"v_mov_b32 v{V_C1}, {f2u(c1):#x}\nv_mov_b32 v{V_C2}, {f2u(c1 * 0.044715):#x}")
    a(f"v_mov_b32 v{V_Y1}, 0")
    a(f"v_mov_b32 v{V_T3}, 0")
    a(f"s_mov_b32 s{S_CNT}, {7 if not (c.auxoff & 2) else 1}")
    a("L_mlp:")
    for k in range(8):
        ua, ub, za, zb, p = E, E + 1, E + 2, E + 3, E + 4
        i0, i1 = 2 * k, 2 * k + 1

        def round2():
            a(f"v_cvt_pk_bf16_f32 v{p}, v{ua}, v{ub}")
            a(f"v_lshlrev_b32 v{ua}, 16, v{p}")
            a(f"v_and_b32 v{ub}, s{S_HI16}, v{p}")
        a(f"v_mul_f32_dpp v{ua}, v{V_W1}, v{V_H} row_newbcast:{i0} {DPPF}")
        a(f"v_mul_f32_dpp v{ub}, v{V_W1}, v{V_H} row_newbcast:{i1} {DPPF}")
        round2()
        a(f"v_add_f32_dpp v{ua}, v{V_B1}, v{ua} row_newbcast:{i0} {DPPF}")
        a(f"v_add_f32_dpp v{ub}, v{V_B1}, v{ub} row_newbcast:{i1} {DPPF}")
        round2()
        a(f"v_mul_f32 v{za}, v{ua}, v{ua}\nv_mul_f32 v{zb}, v{ub}, v{ub}")
        a(f"v_fma_f32 v{za}, v{za}, v{V_C2}, v{V_C1}\nv_fma_f32 v{zb}, v{zb}, v{V_C2}, v{V_C1}")
        a(f"v_mul_f32 v{za}, v{za}, v{ua}\nv_mul_f32 v{zb}, v{zb}, v{ub}")
        a(f"v_exp_f32 v{za}, v{za}\nv_exp_f32 v{zb}, v{zb}")
        a(f"v_add_f32 v{za}, 1.0, v{za}\nv_add_f32 v{zb}, 1.0, v{zb}")
        a(f"v_rcp_f32 v{za}, v{za}\nv_rcp_f32 v{zb}, v{zb}")
        a(f"v_mul_f32 v{ua}, v{ua}, v{za}\nv_mul_f32 v{ub}, v{ub}, v{zb}")
        round2()
        a(f"v_fmac_f32_dpp v{V_Y1}, v{V_W2}, v{ua} row_newbcast:{i0} {DPPF}")
        a(f"v_fmac_f32_dpp v{V_T3}, v{V_W2}, v{ub} row_newbcast:{i1} {DPPF}")
    for base in (V_W1, V_B1, V_W2):
        for t in range(6):
            a(f"v_mov_b32 v{base+t}, v{base+t+1}")
    a(f"s_sub_u32 s{S_CNT}, s{S_CNT}, 1\ns_cmp_lg_u32 s{S_CNT}, 0\ns_cbranch_scc1 L_mlp")
    a(f"v_add_f32 v{V_Y1}, v{V_Y1}, v{V_T3}")
    cross_rows(a, "v_add_f32", V_Y1, V_T0)
    a(f"v_lshlrev_b32 v{V_T0}, 2, v{V_C}")
    a(f"s_lshl_b32 s{S_T0}, s{S_ROLE}, 6")
    a(f"v_add_u32 v{V_T0}, s{S_T0}, v{V_T0}")
    a("s_mov_b64 exec, 0xffff")
    a(f"ds_write_b32 v{V_T0}, v{V_Y1} offset:{L_YP}")
    a("s_mov_b64 exec, -1")
    if c.stamps:
        rstamp(a, V_ST, 12)

    V_OA, V_OB, V_PUB, V_IN = V_X0, V_H, V_X1, V_OFF
    for be, dst in ((0, V_OA), (1, V_OB)):
        rot_index(dst, be, c.roto)
        a(f"v_lshlrev_b32 v{dst}, 4, v{dst}\nv_lshl_add_u32 v{dst}, v{V_G}, 2, v{dst}")
    a(f"v_lshrrev_b32 v{V_PUB}, 1, v{V_C}\nv_lshlrev_b32 v{V_PUB}, 12, v{V_PUB}")
    a(f"v_and_b32 v{V_T0}, 1, v{V_C}\nv_lshlrev_b32 v{V_T0}, 6, v{V_T0}")
    a(f"v_and_b32 v{V_T1}, 1, v{V_G}\nv_lshl_add_u32 v{V_T0}, v{V_T1}, 5, v{V_T0}")
    a(f"v_lshrrev_b32 v{V_T1}, 1, v{V_G}\nv_lshl_add_u32 v{V_T0}, v{V_T1}, 4, v{V_T0}")
    a(f"s_lshl_b32 s{S_T0}, s{S_ROLE}, 15\ns_lshl_b32 s{S_T1}, s{S_H}, 7\ns_add_u32 s{S_T0}, s{S_T0}, s{S_T1}")
    a(f"v_add3_u32 v{V_PUB}, v{V_PUB}, v{V_T0}, s{S_T0}")
    a(f"s_lshl_b32 s{S_T0}, s{S_B}, 17\ns_add_u32 s{S_T0}, s{S_T0}, {WS_F}")
    srd(a, SRD_D, P_WS, f"s{S_T0}", None, 0x20000)
    a(f"s_lshl_b32 s{S_T0}, s{S_H}, 12")
    a(f"v_lshlrev_b32 v{V_IN}, 4, v{V_LANE}\nv_add_u32 v{V_IN}, s{S_T0}, v{V_IN}")
    a(f"s_lshl_b32 s{S_T0}, s{S_B}, 10\ns_lshl_b32 s{S_T1}, s{S_H}, 5\ns_add_u32 s{S_T0}, s{S_T0}, s{S_T1}")
    srd(a, SRD_E, P_OUT, f"s{S_T0}", None, 64)
    for r in range(4):
        a(f"v_mov_b32 v{V_ACC+r}, 0")
    a(f"v_mov_b32 v{V_T3}, 0")
    a(f"v_mov_b32 v{G0+1}, v{V_TF}\nv_mov_b32 v{G0+3}, v{V_TF+1}")
    if c.ctl == 1:
        control(a, c, E + 24)
    a("s_waitcnt vmcnt(0) lgkmcnt(0)")
    a("s_barrier")
    if c.stamps:
        rstamp(a, V_ST, 13)

    MV, LV, OV = E, E + 4, E + 8
    a(f"ds_read_b128 v[{MV}:{MV+3}], v{V_T3} offset:{L_ML}")
    a(f"ds_read_b128 v[{LV}:{LV+3}], v{V_T3} offset:{L_ML+16}")
    for w in range(4):
        for be in range(2):
            a(f"ds_read_b32 v{OV+2*w+be}, v{V_OB if be else V_OA} offset:{L_OP + 512*w}")
    a("s_waitcnt lgkmcnt(8)")
    a(f"v_max3_f32 v{V_T0}, v{MV}, v{MV+1}, v{MV+2}\nv_max_f32 v{V_T0}, v{V_T0}, v{MV+3}")
    for w in range(4):
        a(f"v_sub_f32 v{MV+w}, v{MV+w}, v{V_T0}")
    for w in range(4):
        a(f"v_mul_f32 v{MV+w}, s{S_LOG2E}, v{MV+w}")
    for w in range(4):
        a(f"v_exp_f32 v{MV+w}, v{MV+w}")
    a(f"v_mul_f32 v{V_T1}, v{MV}, v{LV}")
    for w in range(1, 4):
        a(f"v_fmac_f32 v{V_T1}, v{MV+w}, v{LV+w}")
    a(f"v_rcp_f32 v{V_T2}, v{V_T1}")
    if c.newton:
        a(f"v_fma_f32 v{V_T0}, -v{V_T1}, v{V_T2}, 1.0")
        a(f"v_fmac_f32 v{V_T2}, v{V_T0}, v{V_T2}")
    a("s_waitcnt lgkmcnt(0)")
    for be in range(2):
        a(f"v_mul_f32 v{LV+be}, v{MV}, v{OV+be}")
    for w in range(1, 4):
        for be in range(2):
            a(f"v_fmac_f32 v{LV+be}, v{MV+w}, v{OV+2*w+be}")
    for be in range(2):
        a(f"v_mul_f32 v{LV+be}, v{LV+be}, v{V_T2}")
    for be in range(2):
        a(f"v_cvt_pk_bf16_f32 v{LV+be}, v{LV+be}, v{LV+be}")
    srcs = (LV, LV + 1)
    build_a(V_A0, srcs[0], 0)
    for j in range(32):
        A, An = (V_A0, V_A1) if j % 2 == 0 else (V_A1, V_A0)
        if j < 31:
            build_a(An, srcs[(j + 1) >> 4], (j + 1) & 15)
        a(f"v_mfma_f32_16x16x32_bf16 v[{V_ACC}:{V_ACC+3}], v[{A}:{A+3}], v[{WB+4*j}:{WB+4*j+3}], v[{V_ACC}:{V_ACC+3}]")
    a(f"v_mov_b32 v{G0}, v{V_ACC}\nv_mov_b32 v{G0+2}, v{V_ACC+1}")
    a(f"v_permlane32_swap_b32 v{G0}, v{V_ACC+2}")
    a(f"v_permlane32_swap_b32 v{G0+2}, v{V_ACC+3}")
    a(f"buffer_store_dwordx4 v[{G0}:{G0+3}], v{V_PUB}, s[{SRD_D}:{SRD_D+3}], 0 offen {sc}")
    if c.stamps:
        rstamp(a, V_ST, 14)
        a(f"s_cmp_lt_u32 s{S_ROLE}, {c.pollers}\ns_cbranch_scc1 L_consumer")
        dump_stamps(a, V_ST, WS_ST + 0x100000, V_T0)
        a("s_endpgm")
        a("L_consumer:")
    else:
        if c.pollers < 4:
            a(f"s_cmp_ge_u32 s{S_ROLE}, {c.pollers}\ns_cbranch_scc1 L_done")

    YA = E + 24
    a(f"v_and_b32 v{V_T0}, 7, v{V_LANE}\nv_lshlrev_b32 v{V_T0}, 3, v{V_T0}")
    a(f"v_lshrrev_b32 v{V_T2}, 5, v{V_LANE}\nv_lshl_add_u32 v{V_T0}, v{V_T2}, 2, v{V_T0}")
    for w in range(4):
        a(f"ds_read_b32 v{MV+w}, v{V_T0} offset:{L_YP + 64*w}")
    a(f"v_lshrrev_b32 v{V_OFF2}, 1, v{V_T0}")
    a(f"v_lshlrev_b32 v{V_Y2}, 16, v{V_Y2}")
    a(f"v_sub_f32 v{V_T1}, 1.0, v{V_GATE}")
    rne_bf16(a, V_T1)
    a("s_waitcnt lgkmcnt(0)")
    a(f"v_add_f32 v{MV}, v{MV}, v{MV+1}\nv_add_f32 v{MV+2}, v{MV+2}, v{MV+3}")
    a(f"v_add_f32 v{YA}, v{MV}, v{MV+2}")
    rne_bf16(a, YA)
    a(f"v_add_f32 v{YA}, v{YA}, v{V_Y2}")
    rne_bf16(a, YA)
    a(f"v_mul_f32 v{YA}, v{V_T1}, v{YA}")
    rne_bf16(a, YA)
    a(f"s_lshl_b32 s{S_T0}, s{S_ID}, 7")
    a(f"v_mov_b32 v{V_T3}, s{S_T0}")
    IN = E
    a(f"s_mov_b32 s{S_CNT}, {SPIN_LIMIT}")
    if c.fmask:
        MK = 84
        for t in range(4):
            a(f"s_mov_b64 s[{MK+2*t}:{MK+2*t+1}], -1")
        a("L_poll:")
        for t in range(4):
            a(f"s_mov_b64 exec, s[{MK+2*t}:{MK+2*t+1}]")
            a(f"s_cbranch_execz L_pskip{t}")
            a(f"buffer_load_dwordx4 v[{IN+4*t}:{IN+4*t+3}], v{V_IN}, s[{SRD_D}:{SRD_D+3}], 0 offen offset:{1024*t} {sc}")
            a(f"L_pskip{t}:")
        a("s_mov_b64 exec, -1")
        a(f"s_sub_u32 s{S_CNT}, s{S_CNT}, 1\ns_cbranch_scc1 L_poll_out")
        a("s_waitcnt vmcnt(0)")
        for t in range(4):
            a(f"v_cmp_ne_u32 s[{MK+2*t}:{MK+2*t+1}], s{S_TS}, v{IN+4*t+1}")
            a(f"v_cmp_ne_u32 vcc, s{S_TS+1}, v{IN+4*t+3}")
            a(f"s_or_b64 s[{MK+2*t}:{MK+2*t+1}], s[{MK+2*t}:{MK+2*t+1}], vcc")
        a(f"s_or_b64 vcc, s[{MK}:{MK+1}], s[{MK+2}:{MK+3}]")
        a(f"s_or_b64 s[{S_T2}:{S_T2+1}], s[{MK+4}:{MK+5}], s[{MK+6}:{MK+7}]")
        a(f"s_or_b64 vcc, vcc, s[{S_T2}:{S_T2+1}]")
    else:
        a("L_poll:")
        for t in range(4):
            a(f"buffer_load_dwordx4 v[{IN+4*t}:{IN+4*t+3}], v{V_IN}, s[{SRD_D}:{SRD_D+3}], 0 offen offset:{1024*t} {sc}")
        a(f"s_sub_u32 s{S_CNT}, s{S_CNT}, 1\ns_cbranch_scc1 L_poll_out")
        a("s_waitcnt vmcnt(0)")
        tags_bad((IN, IN + 4, IN + 8, IN + 12))
    if c.fsleep:
        a("s_cbranch_vccz L_poll_out")
        a(f"s_sleep {c.fsleep}")
        a("s_branch L_poll")
    else:
        a("s_cbranch_vccnz L_poll")
    a("L_poll_out:")
    for r in (0, 2):
        a(f"v_add_f32 v{IN+r}, v{IN+r}, v{IN+4+r}\nv_add_f32 v{IN+8+r}, v{IN+8+r}, v{IN+12+r}")
    for r in (0, 2):
        a(f"v_add_f32 v{IN+r}, v{IN+r}, v{IN+8+r}")
    a(f"v_permlane32_swap_b32 v{IN}, v{IN+2}")
    a(f"v_add_f32 v{IN}, v{IN}, v{IN+2}")
    a(f"v_add_f32_dpp v{IN}, v{IN}, v{IN} row_ror:8 {DPPF}")
    a(f"v_mov_b32 v{V_T0}, v{IN}")
    a(f"v_permlane16_swap_b32 v{IN}, v{V_T0}")
    a(f"v_add_f32 v{IN}, v{IN}, v{V_T0}")
    rne_bf16(a, IN)
    a(f"v_mul_f32 v{IN}, v{V_GATE}, v{IN}")
    rne_bf16(a, IN)
    a(f"v_add_f32 v{IN}, v{IN}, v{YA}")
    if c.tripwire:
        rstamp(a, V_ST, 15)
        a(f"v_readlane_b32 s{S_T0}, v{V_ST}, 16")
        a(f"s_sub_u32 s{S_T0}, s{S_ST}, s{S_T0}")
        a(f"s_cmp_gt_u32 s{S_T0}, {c.tripwire}\ns_cbranch_scc0 L_notrip")
        a(f"s_cmp_eq_u32 s{S_ID}, {c.tripid}\ns_cbranch_scc0 L_notrip")
        a(f"v_cvt_f32_u32 v{IN}, s{S_T0}")
        a("L_notrip:")
    a(f"v_cvt_pk_bf16_f32 v{IN}, v{IN}, v{IN}")
    a("s_mov_b32 exec_lo, 0xff\ns_mov_b32 exec_hi, 0xff")
    a(f"buffer_store_short v{IN}, v{V_OFF2}, s[{SRD_E}:{SRD_E+3}], 0 offen")
    a("s_mov_b64 exec, 1")
    a(f"buffer_store_dwordx2 v[{V_TS}:{V_TS+1}], v{V_T3}, s[{SRD_C}:{SRD_C+3}], 0 offen {c.esc}")
    if c.stamps:
        a("s_mov_b64 exec, -1")
        rstamp(a, V_ST, 15)
        dump_stamps(a, V_ST, WS_ST + 0x100000, V_T0)
        if c.dbgout:
            a(f"s_cmp_lg_u32 s{S_ID}, {c.dbgout-1}\ns_cbranch_scc1 L_done")
            a(f"v_readlane_b32 s{S_T0}, v{V_ST}, 16")
            a(f"v_subrev_u32 v{V_T1}, s{S_T0}, v{V_ST}")
            a(f"v_lshlrev_b32 v{V_T0}, 2, v{V_LANE}")
            a("s_mov_b64 exec, 0xffff")
            a(f"global_store_dword v{V_T0}, v{V_T1}, s[{P_DBG}:{P_DBG+1}]")


if __name__ == "__main__":
    out = sys.argv[1]
    kw = {}
    for s in sys.argv[2:]:
        k, v = s.split("=")
        kw[k] = int(v) if v.lstrip("-").isdigit() else v.replace("_", " ") if k.endswith("flags") or k in ("sc", "cst", "cld") else v
    open(out, "w").write(gen(**kw))
```

```python
import os, struct, sys
from asmlib import Asm

NAME = "gated_mix__mha_block_cached__mixer_token_mlp__decode_kernel"
HEAD = os.path.join(os.path.dirname(os.path.abspath(__file__)), "head.txt")
SPIN_LIMIT = 0x100000
DPPF = "row_mask:0xf bank_mask:0xf"

L_QP, L_OP, L_ML, L_YP = 0, 2048, 4096, 4352
L_CNT, L_TR, L_SC = 4608, 4864, 8192
L_PROG, L_MODE = 4616, 4620
L_PQ = L_SC
LDS_BYTES = 8192 + 16384
WS_E, WS_F, WS_Q = 0x0, 0x100000, 0x200000
WS_P = 0x10000
WS_ST = 0x800000

S_WG, S_WAVE = 2, 3
P_X, P_K, P_V, P_WQ, P_WO, P_BX, P_W1, P_B1 = 8, 10, 12, 14, 16, 18, 20, 22
P_W2, P_B2, P_GW, P_OUT, P_DBG, P_WS = 24, 26, 28, 30, 32, 34
S_B, S_H, S_ROLE = 36, 37, 38
S_HI16, S_MI1, S_MI0 = 39, 40, 42
S_LOG2E, S_SCALE = 44, 45
S_T0, S_T1, S_T2, S_T3 = 46, 47, 48, 49
S_CNT, S_ID = 50, 51
SRD_A, SRD_B, SRD_C, SRD_D, SRD_E = 52, 56, 60, 64, 68
S_OFFA, S_OFFB = 72, 73
S_TS = 74
S_ST = 76
S_QC = 82


NOTES = """;
;     scores by v_dot2 + a transposing DPP reduction, softmax with the wave's true row maximum,
; Hand-off through d_ws: 16-byte granules {v0, tag_lo, v1, tag_hi}; the tag of a consumer is its epoch
; LDS: 0 q partials, 2048 o partials, 4096 m / l, 4352 mixer partials, 8192 scores.
"""


def f2u(x):
    return struct.unpack("<I", struct.pack("<f", x))[0]


def bitrev4(j):
    return ((j & 1) << 3) | ((j & 2) << 1) | ((j & 4) >> 1) | ((j & 8) >> 3)


class Cfg:
    D = 5
    D0 = 6
    DP = 6
    PF = 48
    DT = 8
    NT = 2
    kvflags = "nt"
    prio = 2
    wo_depth = 1
    wq_depth = 6
    wqflags = ""
    woflags = ""
    smflags = ""
    sc = "sc1"
    rot = 1
    roto = 1
    touchv = 1
    remap = 1
    qmode = "local"
    qsleep = 0
    fsleep = 0
    fmask = 1
    pollers = 1
    newton = 1
    osc = ""
    esc = ""
    pairs = 1
    early = 1
    touch = 1
    stamps = 0
    auxoff = 0
    quick = 1
    fixdeep = -1
    ctl = 0
    DH = 7
    cbias = -3
    csleep = 24
    cact = 1
    cst = "sc1"
    cld = "sc1"
    cskip = 0
    cpeers = 8
    cwhen = 3
    coff = 24
    cgain = 44
    cmax = 5
    clocal = 1
    cpub = 0
    tripwire = 0
    tripid = 0
    dbgout = 0


def srd(a, reg, ptr, add_lo=None, add_hi=None, size=0):
    if add_lo is None:
        a(f"s_mov_b32 s{reg}, s{ptr}\ns_mov_b32 s{reg+1}, s{ptr+1}")
    else:
        a(f"s_add_u32 s{reg}, s{ptr}, {add_lo}")
        a(f"s_addc_u32 s{reg+1}, s{ptr+1}, {add_hi if add_hi is not None else 0}")
    a(f"s_mov_b32 s{reg+2}, {size}\ns_mov_b32 s{reg+3}, 0x20000")


def cross_rows(a, op, v, t):
    a(f"v_mov_b32 v{t}, v{v}")
    a(f"v_permlane16_swap_b32 v{v}, v{t}")
    a(f"{op} v{v}, v{v}, v{t}")
    a(f"v_mov_b32 v{t}, v{v}")
    a(f"v_permlane32_swap_b32 v{v}, v{t}")
    a(f"{op} v{v}, v{v}, v{t}")


def reduce64(a, op, v, t):
    for n in (8, 4, 2, 1):
        a(f"{op}_dpp v{v}, v{v}, v{v} row_ror:{n} {DPPF}")
    cross_rows(a, op, v, t)


def rne_bf16(a, v):
    a(f"v_cvt_pk_bf16_f32 v{v}, v{v}, v{v}")
    a(f"v_and_b32 v{v}, s{S_HI16}, v{v}")


def make_masks(a, vlane, m0, t0, t1):
    a(f"v_and_b32 v{t0}, 15, v{vlane}")
    a(f"v_and_b32 v{t1}, 1, v{t0}")
    a(f"v_lshlrev_b32 v{t1}, 4, v{t1}")
    a(f"v_mov_b32 v{m0}, 0xffff")
    a(f"v_lshlrev_b32 v{t1}, v{t1}, v{m0}")
    a(f"v_lshrrev_b32 v{t0}, 1, v{t0}")
    for r in range(4):
        a(f"v_cmp_eq_u32 vcc, {r}, v{t0}")
        a(f"v_cndmask_b32 v{m0+r}, 0, v{t1}, vcc")


def div(a, dst, num, den, t0, t1):
    a(f"v_rcp_f32 v{t0}, v{den}")
    a(f"v_mul_f32 v{t1}, v{num}, v{t0}")
    a(f"v_fma_f32 v{dst}, -v{den}, v{t1}, v{num}")
    a(f"v_fma_f32 v{dst}, v{dst}, v{t0}, v{t1}")


def rstamp(a, v, idx):
    a(f"s_memrealtime s[{S_ST}:{S_ST+1}]\ns_waitcnt lgkmcnt(0)")
    a(f"v_writelane_b32 v{v}, s{S_ST}, {idx}")


def dump_stamps(a, v, region, t):
    a(f"s_lshl_b32 s{S_ST+2}, s{S_ID}, 2\ns_add_u32 s{S_ST+2}, s{S_ST+2}, s{S_ROLE}\ns_lshl_b32 s{S_ST+2}, s{S_ST+2}, 8")
    a(f"s_add_u32 s{S_ST+2}, s{S_ST+2}, {region}")
    a(f"v_lshlrev_b32 v{t}, 2, v0\nv_add_u32 v{t}, s{S_ST+2}, v{t}")
    a(f"global_store_dword v{t}, v{v}, s[{P_WS}:{P_WS+1}]")


class VM:
    def __init__(self, a):
        self.a, self.issued, self.done = a, 0, 0

    def op(self, text):
        self.a(text)
        self.issued += 1
        return self.issued - 1

    def wait(self, k):
        if self.done <= k:
            self.a(f"s_waitcnt vmcnt({min(63, self.issued - k - 1)})")
            self.done = max(self.done, k + 1 if self.issued - k - 1 <= 63 else self.issued - 63)

    def gate(self, depth):
        k = self.issued - depth
        if k >= 0:
            self.wait(k)


def gen(**kw):
    c = Cfg()
    for k, v in kw.items():
        assert hasattr(c, k), k
        setattr(c, k, v)
    a = Asm()
    a(f".amdgcn_target \"amdgcn-amd-amdhsa--gfx950\"\n.text\n.globl {NAME}\n.p2align 8\n.type {NAME},@function\n{NAME}:")
    a(f"s_cmp_ge_u32 s{S_WG}, 256\ns_cbranch_scc1 L_done")
    a("v_lshrrev_b32 v1, 6, v0")
    a("v_and_b32 v0, 63, v0")
    a(f"v_readfirstlane_b32 s{S_WAVE}, v1")
    if c.stamps:
        a(f"s_memrealtime s[{S_ST+4}:{S_ST+5}]")
    if c.early and not c.stamps:
        a(f"s_cmp_ge_u32 s{S_WAVE}, 4\ns_cbranch_scc1 L_args_aux")
        a("s_load_dwordx4 s[8:11], s[0:1], 8\ns_branch L_args_done".replace("s[8:11]", "s[12:15]"))
        a("L_args_aux:")
    a("s_load_dwordx16 s[8:23], s[0:1], 0")
    a("s_load_dwordx8 s[24:31], s[0:1], 64")
    a("s_load_dwordx4 s[32:35], s[0:1], 96")
    if c.early and not c.stamps:
        a("L_args_done:")
    if c.remap:
        a(f"s_lshr_b32 s{S_B}, s{S_WG}, 3\ns_and_b32 s{S_B}, s{S_B}, 7")
        a(f"s_lshr_b32 s{S_H}, s{S_WG}, 6\ns_lshl_b32 s{S_H}, s{S_H}, 3\ns_and_b32 s{S_T0}, s{S_WG}, 7\ns_or_b32 s{S_H}, s{S_H}, s{S_T0}")
    else:
        a(f"s_lshr_b32 s{S_B}, s{S_WG}, 5\ns_and_b32 s{S_H}, s{S_WG}, 31")
    a(f"s_lshl_b32 s{S_ID}, s{S_B}, 5\ns_or_b32 s{S_ID}, s{S_ID}, s{S_H}")
    a(f"s_and_b32 s{S_ROLE}, s{S_WAVE}, 3")
    a(f"s_mov_b32 s{S_HI16}, 0xffff0000")
    a(f"s_mov_b32 s{S_LOG2E}, {f2u(1.4426950408889634):#x}")
    a(f"s_cmp_ge_u32 s{S_WAVE}, 4\ns_cbranch_scc1 L_aux")
    streamer(a, c)
    a("L_aux:")
    aux(a, c)
    a("L_done:\ns_endpgm")
    body = a.finish()
    head = open(HEAD).read()
    tail = f""".section .rodata,"a"
.p2align 6
.amdhsa_kernel {NAME}
  .amdhsa_next_free_vgpr 256
  .amdhsa_next_free_sgpr 96
  .amdhsa_accum_offset 256
  .amdhsa_group_segment_fixed_size 0
  .amdhsa_kernarg_size 112
  .amdhsa_user_sgpr_count 2
  .amdhsa_user_sgpr_kernarg_segment_ptr 1
  .amdhsa_system_sgpr_workgroup_id_x 1
  .amdhsa_float_denorm_mode_32 3
.end_amdhsa_kernel
"""
    return head + f"; @launch grid=(256,1,1) block=(512,1,1) lds={LDS_BYTES}\n" + NOTES + body + tail


def streamer(a, c):
    V_LANE, V_OFF, V_SCA = 0, 1, 2
    V_Q, V_MASK, V_A0, V_A1, V_ACC = 4, 8, 12, 16, 20
    V_P, V_T, V_U, V_X, V_S = 24, 26, 28, 30, 32
    V_T0, V_T1, V_M, V_L, V_P2, V_SN, V_P2N, V_ST = 33, 34, 35, 36, 37, 38, 39, 41
    V_TMP = 44
    QT = (32, 34, 37, 38, 39, 40, 42, 43)
    V_PA, V_ONE, V_MD = 40, 42, 43
    R = 16
    PF, D = c.PF, c.D
    assert 16 <= PF <= 53 and max(D, c.DT, c.DP) < R
    PFB = 256 - 4 * PF
    assert PFB >= 44

    def dreg(n):
        return PFB + 4 * (n if n < PF else (n - PF) % R)

    if c.prio:
        a(f"s_setprio {c.prio}")
    a(f"v_lshlrev_b32 v{V_OFF}, 4, v{V_LANE}")
    a(f"s_lshl_b32 s{S_T0}, s{S_ROLE}, 12")
    a(f"v_add_u32 v{V_OFF}, s{S_T0}, v{V_OFF}")
    a(f"s_lshl_b32 s{S_T0}, s{S_ID}, 20\ns_lshr_b32 s{S_T1}, s{S_ID}, 12")
    a(f"s_mov_b32 s{S_OFFA}, 0\ns_mov_b32 s{S_OFFB}, 0")
    a("s_waitcnt lgkmcnt(0)")
    pk, pv = (12, 14) if c.early and not c.stamps else (P_K, P_V)
    srd(a, SRD_A, pk, f"s{S_T0}", f"s{S_T1}", 0x100000)
    srd(a, SRD_B, pv, f"s{S_T0}", f"s{S_T1}", 0x100000)
    vm = VM(a)

    def load_text(n):
        r = dreg(n)
        s, so = (SRD_A, S_OFFA) if n < 256 else (SRD_B, S_OFFB)
        t = f"buffer_load_dwordx4 v[{r}:{r+3}], v{V_OFF}, s[{s}:{s+3}], s{so} offen offset:{(n & 3) * 1024} {c.kvflags}"
        if n & 3 == 3:
            t += f"\ns_add_u32 s{so}, s{so}, 16384"
        return t

    def issue():
        vm.op(load_text(vm.issued))

    if c.stamps:
        a(f"v_mov_b32 v{V_ST}, 0")
        a(f"v_writelane_b32 v{V_ST}, s{S_ST+4}, 43")
        a(f"s_getreg_b32 s{S_ST+2}, hwreg(HW_REG_XCC_ID)\nv_writelane_b32 v{V_ST}, s{S_ST+2}, 44")
        a(f"s_getreg_b32 s{S_ST+2}, hwreg(HW_REG_HW_ID)\nv_writelane_b32 v{V_ST}, s{S_ST+2}, 45")
        rstamp(a, V_ST, 32)
    marks = sorted(set((c.D0, 8, 12, 16, 24, PF - 1)))
    def setup():
        a(f"s_mov_b32 s{S_MI1}, 0xcccccccc\ns_mov_b32 s{S_MI1+1}, 0xcccccccc")
        a(f"s_mov_b32 s{S_MI0}, 0xaaaaaaaa\ns_mov_b32 s{S_MI0+1}, 0xaaaaaaaa")
        a(f"s_mov_b32 s{S_SCALE}, {f2u(128 ** -0.5):#x}")
        make_masks(a, V_LANE, V_MASK, V_T0, V_T1)
        a(f"v_lshlrev_b32 v{V_SCA}, 2, v{V_LANE}")
        a(f"s_lshl_b32 s{S_T0}, s{S_ROLE}, 12\ns_add_u32 s{S_T0}, s{S_T0}, {L_SC}")
        a(f"v_add_u32 v{V_SCA}, s{S_T0}, v{V_SCA}")
        a(f"v_mov_b32 v{V_M}, 0xff800000")
        a(f"v_mov_b32 v{V_L}, 0")
        for r in range(4):
            a(f"v_mov_b32 v{V_ACC+r}, 0")
        a(f"v_and_b32 v{V_T0}, 15, v{V_LANE}\nv_lshlrev_b32 v{V_T0}, 5, v{V_T0}")

    for n in range(PF):
        if n == c.D0:
            setup()
        if n == c.D0 and c.qmode == "coop":
            a("s_barrier")
        if n >= c.D0:
            vm.gate(c.DP)
            if c.stamps and n in marks:
                rstamp(a, V_ST, 33 + marks.index(n))
        issue()
    a("s_barrier")
    if PFB >= 60:
        QB = (V_TMP, V_TMP + 8, V_P, V_A0)
        for w in range(4):
            a(f"ds_read_b128 v[{QB[w]}:{QB[w]+3}], v{V_T0} offset:{L_QP + 512*w}")
            a(f"ds_read_b128 v[{QB[w]+4}:{QB[w]+7}], v{V_T0} offset:{L_QP + 512*w + 16}")
        a("s_waitcnt lgkmcnt(4)")
        for e in range(8):
            a(f"v_add_f32 v{QB[0]+e}, v{QB[0]+e}, v{QB[1]+e}")
        a("s_waitcnt lgkmcnt(0)")
        for e in range(8):
            a(f"v_add_f32 v{QB[2]+e}, v{QB[2]+e}, v{QB[3]+e}")
        for e in range(8):
            a(f"v_add_f32 v{QB[0]+e}, v{QB[0]+e}, v{QB[2]+e}")
        QS = V_TMP
    else:
        for rnd in range(2):
            for w, base in enumerate((V_P, V_A0)):
                ww = 2 * rnd + w
                a(f"ds_read_b128 v[{base}:{base+3}], v{V_T0} offset:{L_QP + 512*ww}")
                a(f"ds_read_b128 v[{base+4}:{base+7}], v{V_T0} offset:{L_QP + 512*ww + 16}")
            a("s_waitcnt lgkmcnt(0)")
            dst = (32, 33 + 1, 35 + 2, 38, 39, 40, 42, 43) if rnd == 0 else None
            for e in range(8):
                if rnd == 0:
                    a(f"v_add_f32 v{QT[e]}, v{V_P+e}, v{V_A0+e}")
                else:
                    a(f"v_add_f32 v{V_P+e}, v{V_P+e}, v{V_A0+e}")
        for e in range(8):
            a(f"v_add_f32 v{V_P+e}, v{V_P+e}, v{QT[e]}")
        QS = V_P
    for r in range(4):
        a(f"v_cvt_pk_bf16_f32 v{V_Q+r}, v{QS+2*r}, v{QS+2*r+1}")
    if c.stamps:
        rstamp(a, V_ST, 40)
        a(f"s_mov_b32 s{S_ST+3}, 0")

    def gstamp():
        if c.stamps:
            a(f"s_memrealtime s[{S_ST}:{S_ST+1}]\ns_waitcnt lgkmcnt(0)")
            a(f"s_mov_b32 m0, s{S_ST+3}")
            a(f"v_writelane_b32 v{V_ST}, s{S_ST}, m0")
            a(f"s_add_u32 s{S_ST+3}, s{S_ST+3}, 1")

    def k_reduce(j):
        if j & 1:
            t = V_T + ((j >> 1) & 1)
            a(f"v_add_f32_dpp v{t}, v{V_P}, v{V_P} row_ror:8 row_mask:0xf bank_mask:0x3")
            a(f"v_add_f32_dpp v{t}, v{V_P+1}, v{V_P+1} row_ror:8 row_mask:0xf bank_mask:0xc")
        if j & 3 == 3:
            u = V_U + ((j >> 2) & 1)
            a(f"v_add_f32_dpp v{u}, v{V_T}, v{V_T} row_ror:12 row_mask:0xf bank_mask:0x5")
            a(f"v_add_f32_dpp v{u}, v{V_T+1}, v{V_T+1} row_ror:4 row_mask:0xf bank_mask:0xa")
        if j & 7 == 7:
            x = V_X + ((j >> 3) & 1)
            a(f"v_cndmask_b32 v{V_T0}, v{V_U}, v{V_U+1}, s[{S_MI1}:{S_MI1+1}]")
            a(f"v_cndmask_b32 v{V_T1}, v{V_U+1}, v{V_U}, s[{S_MI1}:{S_MI1+1}]")
            a(f"v_add_f32_dpp v{x}, v{V_T1}, v{V_T0} quad_perm:[2,3,0,1] {DPPF}")
        if j == 15:
            a(f"v_cndmask_b32 v{V_T0}, v{V_X}, v{V_X+1}, s[{S_MI0}:{S_MI0+1}]")
            a(f"v_cndmask_b32 v{V_T1}, v{V_X+1}, v{V_X}, s[{S_MI0}:{S_MI0+1}]")
            a(f"v_add_f32_dpp v{V_S}, v{V_T1}, v{V_T0} quad_perm:[1,0,3,2] {DPPF}")
            rne_bf16(a, V_S)
            a(f"v_mul_f32 v{V_S}, s{S_SCALE}, v{V_S}")
            rne_bf16(a, V_S)
            a(f"v_max_f32 v{V_M}, v{V_M}, v{V_S}")
            a(f"ds_write_b32 v{V_SCA}, v{V_S}")
            a(f"v_add_u32 v{V_SCA}, 0x100, v{V_SCA}")

    def k_step(n, j):
        r = dreg(n)
        p = V_P + (j & 1)
        a(f"v_dot2_f32_bf16 v{p}, v{r}, v{V_Q}, 0")
        for e in range(1, 4):
            a(f"v_dot2_f32_bf16 v{p}, v{r+e}, v{V_Q+e}, v{p}")
        k_reduce(j)

    LA = c.DH if (c.ctl or c.fixdeep >= 0) else D

    def static_feed(n, depth, look):
        while vm.issued < min(512, n + look + 1):
            vm.gate(depth)
            issue()
        vm.wait(n)

    def loop_feed(n, tag):
        a(f"s_waitcnt vmcnt({LA-1})")
        if c.ctl or c.fixdeep >= 0:
            a(f"s_cbranch_vccnz L_deep_{tag}")
            a(f"s_waitcnt vmcnt({D-1})")
            a(f"L_deep_{tag}:")
        a(load_text(n + LA))

    def ctl_hooks(j):
        if not c.ctl:
            return
        if j in (7, 15) and c.ctl == 1:
            a("s_mov_b64 exec, 1")
            a(f"ds_add_u32 v{V_PA}, v{V_ONE}")
            a("s_mov_b64 exec, -1")
        if j == 1:
            a(f"ds_read_b32 v{V_MD}, v{V_PA} offset:4")
        if j == 6:
            a("s_waitcnt lgkmcnt(0)")
            a(f"v_readfirstlane_b32 s{S_T0}, v{V_MD}")
            if c.ctl == 2:
                a(f"s_cmp_lt_u32 s{S_OFFB+10}, s{S_T0}\ns_cselect_b64 vcc, -1, 0")
                a(f"s_addc_u32 s{S_OFFB+10}, s{S_OFFB+10}, 0")
            else:
                a(f"s_cmp_lg_u32 s{S_T0}, 0\ns_cselect_b64 vcc, -1, 0")

    a("; scores of the prefetched K rows")
    g0 = (PF + LA - D + 15) // 16
    if c.ctl:
        a(f"v_mov_b32 v{V_PA}, {L_PROG}\nv_mov_b32 v{V_ONE}, 1")
        a("s_mov_b64 vcc, 0")
        a(f"s_mov_b32 s{S_OFFB+10}, 0")
    if c.fixdeep >= 0:
        a(f"s_cmp_lt_u32 s{S_ROLE}, {c.fixdeep}\ns_cselect_b64 vcc, -1, 0")
    skip = set()
    for n in range(16 * g0):
        if n < PF:
            target = max(PF + min(n, LA), n + LA)
            while vm.issued < target:
                vm.gate(D)
                issue()
            vm.wait(n)
        else:
            static_feed(n, D, LA)
        if n in skip:
            k_reduce(n & 15)
        elif c.pairs and n % 2 == 0 and n + 1 < PF and vm.done > n + 1:
            r0, r1 = dreg(n), dreg(n + 1)
            a(f"v_dot2_f32_bf16 v{V_P}, v{r0}, v{V_Q}, 0")
            a(f"v_dot2_f32_bf16 v{V_P+1}, v{r1}, v{V_Q}, 0")
            for e in range(1, 4):
                a(f"v_dot2_f32_bf16 v{V_P}, v{r0+e}, v{V_Q+e}, v{V_P}")
                a(f"v_dot2_f32_bf16 v{V_P+1}, v{r1+e}, v{V_Q+e}, v{V_P+1}")
            skip.add(n + 1)
        else:
            k_step(n, n & 15)
        if c.ctl and n & 7 == 7:
            ctl_hooks(7)
        if n & 15 == 15:
            gstamp()
    assert vm.issued == 16 * g0 + LA, vm.issued
    a(f"s_mov_b32 s{S_CNT}, {15 - g0}")
    a("L_kloop:")
    for j in range(16):
        n = 16 * g0 + j
        loop_feed(n, f"k{j}")
        k_step(n, j)
        ctl_hooks(j)
    gstamp()
    a(f"s_sub_u32 s{S_CNT}, s{S_CNT}, 1\ns_cmp_lg_u32 s{S_CNT}, 0\ns_cbranch_scc1 L_kloop")
    vm.issued, vm.done = 240 + LA, 240
    for n in range(240, 256):
        static_feed(n, D, LA)
        k_step(n, n & 15)
        if c.ctl and n & 7 == 7:
            ctl_hooks(7)
    gstamp()
    if c.stamps:
        rstamp(a, V_ST, 41)
    a("; row maximum of this wave's 1024 scores")
    reduce64(a, "v_max_f32", V_M, V_T0)
    a(f"v_add_u32 v{V_SCA}, {-16*256 & 0xffffffff:#x}, v{V_SCA}")
    a("s_waitcnt lgkmcnt(0)")
    a(f"ds_read_b32 v{V_SN}, v{V_SCA}")

    def probs(dst):
        a("s_waitcnt lgkmcnt(0)")
        a(f"v_sub_f32 v{V_T0}, v{V_SN}, v{V_M}")
        a(f"v_mul_f32 v{V_T0}, s{S_LOG2E}, v{V_T0}")
        a(f"v_exp_f32 v{V_T0}, v{V_T0}")
        a(f"v_add_f32 v{V_L}, v{V_L}, v{V_T0}")
        a(f"v_cvt_pk_bf16_f32 v{dst}, v{V_T0}, v{V_T0}")

    def build_a(dst, src, j):
        for r in range(4):
            a(f"v_and_b32_dpp v{dst+r}, v{src}, v{V_MASK+r} row_newbcast:{bitrev4(j)} {DPPF}")

    probs(V_P2)
    build_a(V_A0, V_P2, 0)

    def v_step(n, j, last):
        r = dreg(n)
        A, An = (V_A0, V_A1) if j % 2 == 0 else (V_A1, V_A0)
        a(f"v_mfma_f32_16x16x32_bf16 v[{V_ACC}:{V_ACC+3}], v[{A}:{A+3}], v[{r}:{r+3}], v[{V_ACC}:{V_ACC+3}]")
        if j < 15:
            build_a(An, V_P2, j + 1)
        elif not last:
            build_a(An, V_P2N, 0)
            a(f"v_mov_b32 v{V_P2}, v{V_P2N}")
        if not last:
            if j == 1:
                a(f"v_add_u32 v{V_SCA}, 0x100, v{V_SCA}")
                a(f"ds_read_b32 v{V_SN}, v{V_SCA}")
            if j == 6:
                probs(V_P2N)
        elif j == 1:
            reduce64(a, "v_add_f32", V_L, V_T0)

    NT = c.NT
    assert 1 <= NT <= 15 and vm.issued == 256 + LA
    a(f"s_mov_b32 s{S_CNT}, {16 - NT}")
    a("L_vloop:")
    for j in range(16):
        n = 256 + j
        loop_feed(n, f"v{j}")
        v_step(n, j, False)
        ctl_hooks(j)
    gstamp()
    a(f"s_sub_u32 s{S_CNT}, s{S_CNT}, 1\ns_cmp_lg_u32 s{S_CNT}, 0\ns_cbranch_scc1 L_vloop")
    n0 = 512 - 16 * NT
    vm.issued, vm.done = n0 + LA, n0
    for n in range(n0, 512):
        static_feed(n, c.DT, max(c.DT, LA))
        v_step(n, n & 15, n >= 496)
        if n & 15 == 15:
            gstamp()
    if c.stamps:
        rstamp(a, V_ST, 42)
    a(f"v_and_b32 v{V_T0}, 15, v{V_LANE}\nv_lshlrev_b32 v{V_T0}, 5, v{V_T0}")
    a(f"v_lshrrev_b32 v{V_T1}, 4, v{V_LANE}\nv_lshlrev_b32 v{V_T1}, 4, v{V_T1}")
    a(f"s_lshl_b32 s{S_T0}, s{S_ROLE}, 9")
    a(f"v_add3_u32 v{V_T0}, v{V_T0}, v{V_T1}, s{S_T0}")
    a(f"s_lshl_b32 s{S_T0}, s{S_ROLE}, 2")
    a(f"v_mov_b32 v{V_T1}, s{S_T0}")
    a("s_mov_b64 exec, 1")
    a(f"ds_write_b32 v{V_T1}, v{V_M} offset:{L_ML}")
    a(f"ds_write_b32 v{V_T1}, v{V_L} offset:{L_ML+16}")
    a("s_mov_b32 exec_lo, -1\ns_mov_b32 exec_hi, 0")
    a(f"ds_write_b128 v{V_T0}, v[{V_ACC}:{V_ACC+3}] offset:{L_OP}")
    a("s_waitcnt lgkmcnt(0)\ns_barrier")
    if c.stamps:
        a("s_mov_b64 exec, -1")
        dump_stamps(a, V_ST, WS_ST, V_T0)
    a("s_endpgm")


def control(a, c, R):
    PA, PP, TG, W, VAL, CN, T, OWN = R, R + 1, R + 2, R + 3, R + 4, R + 5, R + 6, R + 7
    EXIT = 8 * (32 - c.NT - 1)
    a(f"s_cmp_lg_u32 s{S_ROLE}, 1\ns_cbranch_scc1 L_ctl_done")
    if c.cpub:
        a(f"v_add_u32 v{PP}, s{S_H}, v0\nv_and_b32 v{PP}, {c.cpub - 1}, v{PP}")
    elif c.clocal:
        a(f"v_lshlrev_b32 v{PP}, 2, v0\nv_add_u32 v{PP}, 1, v{PP}\nv_lshlrev_b32 v{PP}, 3, v{PP}")
    else:
        a(f"v_add_u32 v{PP}, 1, v0\nv_mul_u32_u24 v{PP}, 33, v{PP}")
    if not c.cpub:
        a(f"v_add_u32 v{PP}, s{S_ID}, v{PP}\nv_and_b32 v{PP}, 255, v{PP}")
    a(f"v_lshlrev_b32 v{PP}, 7, v{PP}")
    a("s_mov_b64 exec, 0xff")
    a(f"buffer_load_dword v{TG}, v{PP}, s[{SRD_C}:{SRD_C+3}], 0 offen")
    a("s_mov_b64 exec, -1")
    a(f"v_add_u32 v{PP}, {WS_P}, v{PP}")
    a(f"s_lshl_b32 s{S_T0}, s{S_ID}, 7\ns_add_u32 s{S_T0}, s{S_T0}, {WS_P}")
    a(f"v_mov_b32 v{OWN}, s{S_T0}")
    if c.cst == "line":
        a(f"v_lshl_add_u32 v{OWN}, v0, 2, v{OWN}")
    a(f"v_mov_b32 v{PA}, {L_PROG}")
    a(f"s_lshl_b32 s{S_QC}, s{S_TS}, 9")
    a("s_waitcnt vmcnt(0)")
    a(f"v_add_u32 v{TG}, 1, v{TG}\nv_and_b32 v{TG}, 0x7fffff, v{TG}")
    a(f"s_mov_b32 s{S_CNT}, {SPIN_LIMIT}")
    a("L_ctl:")
    a(f"ds_read_b32 v{T}, v{PA}")
    a(f"s_sub_u32 s{S_CNT}, s{S_CNT}, 1\ns_cbranch_scc1 L_ctl_done")
    a("s_waitcnt lgkmcnt(0)")
    a(f"v_readfirstlane_b32 s{S_T1}, v{T}")
    a(f"s_cmp_ge_u32 s{S_T1}, {EXIT}\ns_cbranch_scc1 L_ctl_done")
    a(f"s_or_b32 s{S_T0}, s{S_QC}, s{S_T1}")
    a(f"v_mov_b32 v{T}, s{S_T0}")
    a("s_mov_b64 exec, 1")
    if c.cpub:
        a(f"s_cmp_ge_u32 s{S_ID}, {c.cpub}\ns_cbranch_scc1 L_ctl_nopub")
    if not c.cskip & 1:
        if c.cst == "swap":
            a(f"global_atomic_swap v{OWN}, v{T}, s[{P_WS}:{P_WS+1}]")
        elif c.cst == "line":
            a("s_mov_b32 exec_lo, -1\ns_mov_b32 exec_hi, 0")
            a(f"global_store_dword v{OWN}, v{T}, s[{P_WS}:{P_WS+1}] sc1")
        elif c.cst == "swap1":
            a(f"global_atomic_swap v{OWN}, v{T}, s[{P_WS}:{P_WS+1}] sc1")
        else:
            a(f"global_store_dword v{OWN}, v{T}, s[{P_WS}:{P_WS+1}] {c.cst}")
    if c.cpub:
        a("L_ctl_nopub:")
    a(f"s_mov_b64 exec, {(1 << c.cpeers) - 1:#x}")
    if not c.cskip & 2:
        a(f"global_load_dword v{W}, v{PP}, s[{P_WS}:{P_WS+1}] {c.cld}")
    a("s_mov_b64 exec, -1")
    a(f"v_mov_b32 v{VAL}, 0\nv_mov_b32 v{CN}, 0")
    a("s_waitcnt vmcnt(0)")
    a(f"s_mov_b64 exec, {(1 << c.cpeers) - 1:#x}")
    a(f"v_lshrrev_b32 v{T}, 9, v{W}")
    a(f"v_cmp_eq_u32 vcc, v{T}, v{TG}")
    a(f"v_and_b32 v{W}, 0x1ff, v{W}")
    a(f"v_cndmask_b32 v{VAL}, 0, v{W}, vcc")
    a(f"v_cndmask_b32 v{CN}, 0, 1, vcc")
    a("s_mov_b64 exec, -1")
    for n in (4, 2, 1):
        a(f"v_add_u32_dpp v{VAL}, v{VAL}, v{VAL} row_shl:{n} row_mask:0xf bank_mask:0xf bound_ctrl:0")
        a(f"v_add_u32_dpp v{CN}, v{CN}, v{CN} row_shl:{n} row_mask:0xf bank_mask:0xf bound_ctrl:0")
    a(f"v_readfirstlane_b32 s{S_T2}, v{VAL}\nv_readfirstlane_b32 s{S_T3}, v{CN}")
    a(f"s_add_i32 s{S_T1}, s{S_T1}, {c.cbias}\ns_mul_i32 s{S_T1}, s{S_T1}, s{S_T3}")
    a(f"s_cmp_lt_i32 s{S_T1}, s{S_T2}\ns_cselect_b32 s{S_T0}, {1 if c.cact else 0}, 0")
    a(f"v_mov_b32 v{T}, s{S_T0}")
    a(f"ds_write_b32 v{PA}, v{T} offset:4")
    a(f"s_sleep {c.csleep}")
    a("s_branch L_ctl")
    a("L_ctl_done:")


def oneshot_publish(a, c):
    T0, T1 = 104, 105
    a(f"s_cmp_lg_u32 s{S_ROLE}, 1\ns_cbranch_scc1 L_os_pub_done")
    a(f"s_memrealtime s[{S_ST}:{S_ST+1}]")
    a(f"s_lshl_b32 s{S_T0}, s{S_ID}, 7\ns_add_u32 s{S_T0}, s{S_T0}, {WS_P}")
    a(f"v_mov_b32 v106, s{S_T0}")
    a("s_waitcnt lgkmcnt(0)")
    a(f"s_mov_b32 s{S_QC}, s{S_ST}")
    a(f"v_mov_b32 v{T0}, s{S_TS}\nv_mov_b32 v{T1}, s{S_ST}")
    a("s_mov_b64 exec, 1")
    a(f"global_store_dwordx2 v106, v[{T0}:{T1}], s[{P_WS}:{P_WS+1}]")
    a("s_mov_b64 exec, -1")
    a(f"v_lshlrev_b32 v107, 2, v0\nv_add_u32 v107, 1, v107\nv_lshlrev_b32 v107, 3, v107")
    a(f"v_add_u32 v107, s{S_ID}, v107\nv_and_b32 v107, 255, v107\nv_lshlrev_b32 v107, 7, v107")
    a("s_mov_b64 exec, 0xff")
    a(f"buffer_load_dword v108, v107, s[{SRD_C}:{SRD_C+3}], 0 offen")
    a("s_mov_b64 exec, -1")
    a(f"v_add_u32 v107, {WS_P}, v107")
    a("L_os_pub_done:")


def oneshot_decide(a, c):
    W, VAL, CN, T = 104, 109, 110, 111
    a(f"s_cmp_lg_u32 s{S_ROLE}, 1\ns_cbranch_scc1 L_os_dec_done")
    a("s_mov_b64 exec, 0xff")
    a(f"global_load_dwordx2 v[{W}:{W+1}], v107, s[{P_WS}:{P_WS+1}] sc1")
    a("s_mov_b64 exec, -1")
    a(f"v_mov_b32 v{VAL}, 0\nv_mov_b32 v{CN}, 0")
    a("s_waitcnt vmcnt(0)")
    a("s_mov_b64 exec, 0xff")
    a(f"v_add_u32 v{T}, 1, v108")
    a(f"v_cmp_eq_u32 vcc, v{T}, v{W}")
    a(f"v_subrev_u32 v{T}, v{W+1}, s{S_QC}".replace(f"v_subrev_u32 v{T}, v{W+1}, s{S_QC}", f"v_sub_u32 v{T}, s{S_QC}, v{W+1}"))
    a(f"v_cndmask_b32 v{VAL}, 0, v{T}, vcc")
    a(f"v_cndmask_b32 v{CN}, 0, 1, vcc")
    a("s_mov_b64 exec, -1")
    for n in (4, 2, 1):
        a(f"v_add_u32_dpp v{VAL}, v{VAL}, v{VAL} row_shl:{n} row_mask:0xf bank_mask:0xf bound_ctrl:0")
        a(f"v_add_u32_dpp v{CN}, v{CN}, v{CN} row_shl:{n} row_mask:0xf bank_mask:0xf bound_ctrl:0")
    a(f"v_readfirstlane_b32 s{S_T2}, v{VAL}\nv_readfirstlane_b32 s{S_T3}, v{CN}")
    a(f"s_mov_b32 s{S_T0}, 0")
    for k in range(c.cmax):
        a(f"s_mul_i32 s{S_T1}, s{S_T3}, {c.coff + k * c.cgain}")
        a(f"s_cmp_gt_i32 s{S_T2}, s{S_T1}")
        a(f"s_addc_u32 s{S_T0}, s{S_T0}, 0")
    a(f"v_mov_b32 v{T}, s{S_T0}\nv_mov_b32 v{VAL}, {L_MODE}")
    a(f"ds_write_b32 v{VAL}, v{T}")
    a("L_os_dec_done:")


def aux(a, c):
    V_LANE, V_G, V_C = 0, 1, 2
    V_MASK, V_A0, V_A1, V_ACC = 4, 8, 12, 16
    V_X0, V_X1, V_T0, V_T1, V_T2, V_T3 = 20, 21, 22, 23, 24, 25
    V_OFF, V_H, V_GATE, V_Y1, V_Y2, V_C1, V_C2 = 26, 27, 28, 29, 30, 31, 32
    V_ST, V_JUNK, V_OFF2 = 33, 3, 57
    V_TQ, V_TQ2, V_TF, V_TS = 34, 102, 58, 100
    V_W1, V_B1, V_W2 = 36, 43, 50
    E = V_E = 60
    G0 = E + 16
    V_QA = 160
    WB = 128
    sc = c.sc
    coop = c.qmode == "coop"
    vm = VM(a)

    def build_a(dst, src, i):
        for r in range(4):
            a(f"v_and_b32_dpp v{dst+r}, v{src}, v{V_MASK+r} row_newbcast:{i} {DPPF}")

    def granule(dst, v0, v1, tag):
        a(f"v_mov_b32 v{dst}, v{v0}\nv_mov_b32 v{dst+1}, v{tag}\nv_mov_b32 v{dst+2}, v{v1}\nv_mov_b32 v{dst+3}, v{tag+1}")

    def tags_bad(regs):
        a(f"v_cmp_ne_u32 vcc, s{S_TS}, v{regs[0]+1}")
        for k, g in enumerate(regs):
            if k:
                a(f"v_cmp_ne_u32 s[{S_T2}:{S_T2+1}], s{S_TS}, v{g+1}")
                a(f"s_or_b64 vcc, vcc, s[{S_T2}:{S_T2+1}]")
            a(f"v_cmp_ne_u32 s[{S_T2}:{S_T2+1}], s{S_TS+1}, v{g+3}")
            a(f"s_or_b64 vcc, vcc, s[{S_T2}:{S_T2+1}]")

    def rot_index(dst, be, on):
        if on:
            a(f"s_lshl_b32 s{S_T2}, s{S_B}, 2")
            a(f"v_add_u32 v{dst}, s{S_T2}, v{V_C}")
        else:
            a(f"v_mov_b32 v{dst}, v{V_C}")
        if be:
            a(f"v_add_u32 v{dst}, 16, v{dst}")
        a(f"v_and_b32 v{dst}, 31, v{dst}")

    a(f"v_lshrrev_b32 v{V_G}, 4, v{V_LANE}\nv_and_b32 v{V_C}, 15, v{V_LANE}")
    a(f"v_lshlrev_b32 v{V_OFF}, 13, v{V_G}\nv_lshl_add_u32 v{V_OFF}, v{V_C}, 4, v{V_OFF}")
    if coop:
        a(f"v_lshrrev_b32 v{V_T0}, 2, v{V_C}\nv_lshlrev_b32 v{V_T0}, 10, v{V_T0}")
        a(f"v_and_b32 v{V_T1}, 3, v{V_C}\nv_lshlrev_b32 v{V_T1}, 3, v{V_T1}")
        a(f"v_lshl_add_u32 v{V_T1}, v{V_G}, 1, v{V_T1}")
        a(f"s_lshl_b32 s{S_T0}, s{S_B}, 7\ns_lshl_b32 s{S_T1}, s{S_ROLE}, 5\ns_add_u32 s{S_T0}, s{S_T0}, s{S_T1}")
        a(f"v_add3_u32 v{V_T0}, v{V_T0}, v{V_T1}, s{S_T0}")
        a(f"v_add_u32 v{V_T3}, 0x1000, v{V_T0}")
        a(f"s_lshl_b32 s{S_OFFA}, s{S_B}, 19\ns_lshl_b32 s{S_T1}, s{S_ROLE}, 17\ns_add_u32 s{S_OFFA}, s{S_OFFA}, s{S_T1}")
    else:
        a(f"s_lshl_b32 s{S_T0}, s{S_B}, 10\ns_lshl_b32 s{S_T1}, s{S_ROLE}, 8\ns_add_u32 s{S_T0}, s{S_T0}, s{S_T1}")
        for be, dst in ((0, V_T0), (1, V_T3)):
            rot_index(dst, be, c.rot)
            a(f"v_lshlrev_b32 v{dst}, 3, v{dst}\nv_lshl_add_u32 v{dst}, v{V_G}, 1, v{dst}")
            a(f"v_add_u32 v{dst}, s{S_T0}, v{dst}")
        a(f"s_lshl_b32 s{S_OFFA}, s{S_ROLE}, 20")
        a(f"s_lshl_b32 s{S_OFFB}, s{S_B}, 17" if c.rot else f"s_mov_b32 s{S_OFFB}, 0")
    a(f"v_lshrrev_b32 v{V_T2}, 1, v{V_C}")
    a(f"s_lshl_b32 s{S_T1}, s{S_B}, 5\ns_lshl_b32 s{S_T2}, s{S_ROLE}, 3\ns_add_u32 s{S_T1}, s{S_T1}, s{S_T2}")
    a(f"v_add_u32 v{V_T2}, s{S_T1}, v{V_T2}\nv_lshlrev_b32 v{V_T2}, 7, v{V_T2}")
    a(f"s_lshl_b32 s{S_T1}, s{S_ID}, 7")
    a(f"v_mov_b32 v{V_Y1}, s{S_T1}")
    if coop:
        a(f"s_lshl_b32 s{S_T1}, s{S_ROLE}, 6\ns_add_u32 s{S_T1}, s{S_T1}, s{S_H}")
        a(f"s_lshl_b32 s{S_QC}, s{S_T1}, 13")
        a(f"s_lshl_b32 s{S_T1}, s{S_T1}, 7")
        a(f"v_mov_b32 v{V_T1}, s{S_T1}")
    a(f"s_lshl_b32 s{S_T1}, s{S_H}, 8")
    a(f"s_sub_u32 s{S_T2}, 0x400000, s{S_T1}")
    a("s_waitcnt lgkmcnt(0)")
    if c.stamps:
        a(f"v_mov_b32 v{V_ST}, 0")
        a(f"v_writelane_b32 v{V_ST}, s{S_ST+4}, 16")
        rstamp(a, V_ST, 0)
    srd(a, SRD_B, P_WQ, f"s{S_T1}", None, f"s{S_T2}")
    srd(a, SRD_A, P_X, None, None, 8192 + 64)
    NW = 4 if coop else 32

    def wq_load(j):
        if coop:
            k = vm.op(f"buffer_load_dwordx4 v[{WB+4*j}:{WB+4*j+3}], v{V_OFF}, s[{SRD_B}:{SRD_B+3}], s{S_OFFA} offen {c.wqflags}")
            if j < NW - 1:
                a(f"s_add_u32 s{S_OFFA}, s{S_OFFA}, 32768")
        else:
            a(f"s_add_u32 s{S_T3}, s{S_OFFA}, s{S_OFFB}")
            k = vm.op(f"buffer_load_dwordx4 v[{WB+4*j}:{WB+4*j+3}], v{V_OFF}, s[{SRD_B}:{SRD_B+3}], s{S_T3} offen {c.wqflags}")
            if j < NW - 1:
                a(f"s_add_u32 s{S_OFFB}, s{S_OFFB}, 32768\ns_and_b32 s{S_OFFB}, s{S_OFFB}, 0xfffff")
        return k

    XS = (V_X0, V_X1)
    vm.op(f"buffer_load_ushort v{V_X0}, v{V_T0}, s[{SRD_A}:{SRD_A+3}], 0 offen {c.smflags}")
    kx = vm.op(f"buffer_load_ushort v{V_X1}, v{V_T3}, s[{SRD_A}:{SRD_A+3}], 0 offen {c.smflags}")
    wq_k = {}
    first = min(NW, c.wq_depth)
    head = min(first, 4)
    for j in range(head):
        wq_k[j] = wq_load(j)
    srd(a, SRD_C, P_WS, None, None, 0x8000)
    vm.op(f"buffer_load_dwordx2 v[{V_TF}:{V_TF+1}], v{V_T2}, s[{SRD_C}:{SRD_C+3}], 0 offen {c.smflags}")
    ke = vm.op(f"buffer_load_dwordx2 v[{V_TS}:{V_TS+1}], v{V_Y1}, s[{SRD_C}:{SRD_C+3}], 0 offen {c.smflags}")
    if coop:
        vm.op(f"buffer_load_dwordx2 v[{V_TQ}:{V_TQ+1}], v{V_T1}, s[{SRD_C}:{SRD_C+3}], 0 offen {c.smflags}")
        a(f"v_add_u32 v{V_T1}, 0x1000, v{V_T1}")
        ke = vm.op(f"buffer_load_dwordx2 v[{V_TQ2}:{V_TQ2+1}], v{V_T1}, s[{SRD_C}:{SRD_C+3}], 0 offen {c.smflags}")
    if c.touch:
        a("; first touch of the pages used later (address translation only, the values are discarded)")
        a(f"v_mov_b32 v{V_JUNK}, 0")
        a(f"v_mov_b32 v{V_T1}, 0")
        for p in (P_GW, P_W1, P_B1, P_W2, P_B2, P_WO, P_OUT):
            vm.op(f"global_load_ushort v{V_JUNK}, v{V_T1}, s[{p}:{p+1}] {c.smflags}")
        a(f"v_mov_b32 v{V_T1}, {WS_F}")
        vm.op(f"global_load_dword v{V_JUNK}, v{V_T1}, s[{P_WS}:{P_WS+1}] {c.smflags}")
        if c.touchv:
            a(f"s_lshl_b32 s{S_T0}, s{S_ID}, 20\ns_lshr_b32 s{S_T1}, s{S_ID}, 12")
            srd(a, SRD_E, P_V, f"s{S_T0}", f"s{S_T1}", 0x100000)
            a(f"v_mov_b32 v{V_T1}, 0")
            vm.op(f"buffer_load_dword v{V_JUNK}, v{V_T1}, s[{SRD_E}:{SRD_E+3}], 0 offen nt")
        if coop:
            a(f"v_mov_b32 v{V_T1}, {WS_Q}")
            vm.op(f"global_load_dword v{V_JUNK}, v{V_T1}, s[{P_WS}:{P_WS+1}] {c.smflags}")
    for j in range(head, first):
        wq_k[j] = wq_load(j)
    if c.stamps:
        rstamp(a, V_ST, 1)
    make_masks(a, V_LANE, V_MASK, V_T1, V_T2)

    if coop:
        a(f"v_mov_b32 v{V_T2}, 0\nv_mov_b32 v{V_T3}, {L_CNT}")
        a(f"ds_write_b32 v{V_T3}, v{V_T2}")
        for r in range(32):
            a(f"v_mov_b32 v{V_QA+r}, 0")
        a("s_waitcnt lgkmcnt(0)\ns_barrier")
        vm.wait(max(kx, wq_k[3]))
        if c.stamps:
            rstamp(a, V_ST, 2)
        for x in XS:
            a(f"v_lshl_or_b32 v{x}, v{x}, 16, v{x}")
        seq = [(j, bb) for j in range(4) for bb in range(8)]
        build_a(V_A0, XS[0], 0)
        for k, (j, bb) in enumerate(seq):
            A, An = (V_A0, V_A1) if k % 2 == 0 else (V_A1, V_A0)
            if k + 1 < len(seq):
                jn, bn = seq[k + 1]
                build_a(An, XS[bn >> 2], 4 * (bn & 3) + jn)
            acc = V_QA + 4 * bb
            a(f"v_mfma_f32_16x16x32_bf16 v[{acc}:{acc+3}], v[{A}:{A+3}], v[{WB+4*j}:{WB+4*j+3}], v[{acc}:{acc+3}]")
        if c.stamps:
            rstamp(a, V_ST, 3)
        a(f"v_lshlrev_b32 v{V_T0}, 5, v{V_C}\nv_lshl_add_u32 v{V_T0}, v{V_G}, 4, v{V_T0}")
        a(f"s_lshl_b32 s{S_T0}, s{S_ROLE}, 12")
        a(f"v_add_u32 v{V_T0}, s{S_T0}, v{V_T0}")
        a("s_mov_b32 exec_lo, -1\ns_mov_b32 exec_hi, 0")
        for bb in range(8):
            a(f"ds_write_b128 v{V_T0}, v[{V_QA+4*bb}:{V_QA+4*bb+3}] offset:{L_PQ + 512*bb}")
        a("s_mov_b64 exec, 1")
        a(f"v_mov_b32 v{V_T2}, 1")
        a(f"ds_add_u32 v{V_T3}, v{V_T2}")
        a("s_mov_b64 exec, -1")
        a(f"s_lshl_b32 s{S_T0}, s{S_B}, 10\ns_add_u32 s{S_QC}, s{S_QC}, s{S_T0}")
        a(f"v_lshlrev_b32 v{V_X1}, 4, v{V_LANE}\nv_add_u32 v{V_X1}, s{S_QC}, v{V_X1}")
        a(f"v_lshlrev_b32 v{V_T0}, 3, v{V_LANE}")
        a(f"s_lshl_b32 s{S_T0}, s{S_ROLE}, 10")
        a(f"v_add_u32 v{V_T0}, s{S_T0}, v{V_T0}")
        vm.wait(ke)
        for t in (V_TQ, V_TQ2, V_TF, V_TS):
            a(f"v_add_u32 v{t}, 1, v{t}\nv_add_u32 v{t+1}, 1, v{t+1}")
        a(f"s_mov_b32 s{S_T0}, {WS_Q}")
        srd(a, SRD_D, P_WS, f"s{S_T0}", None, 0x200000)
        a(f"s_mov_b32 s{S_CNT}, {SPIN_LIMIT}")
        a("L_qsync:")
        a(f"ds_read_b32 v{V_T2}, v{V_T3}")
        a(f"s_sub_u32 s{S_CNT}, s{S_CNT}, 1\ns_cbranch_scc1 L_qsync_out")
        a("s_waitcnt lgkmcnt(0)")
        a(f"v_readfirstlane_b32 s{S_T1}, v{V_T2}")
        a(f"s_cmp_lt_u32 s{S_T1}, 4\ns_cbranch_scc1 L_qsync")
        a("L_qsync_out:")
        for be in range(2):
            for w in range(4):
                a(f"ds_read_b64 v[{E+8*be+2*w}:{E+8*be+2*w+1}], v{V_T0} offset:{L_PQ + 4096*w + 512*be}")
        a(f"v_readfirstlane_b32 s{S_TS}, v{V_TS}\nv_readfirstlane_b32 s{S_TS+1}, v{V_TS+1}")
        a("s_waitcnt lgkmcnt(0)")
        for be in range(2):
            B = E + 8 * be
            for r in range(2):
                a(f"v_add_f32 v{B+r}, v{B+r}, v{B+2+r}\nv_add_f32 v{B+4+r}, v{B+4+r}, v{B+6+r}")
            for r in range(2):
                a(f"v_add_f32 v{B+r}, v{B+r}, v{B+4+r}")
            granule(G0 + 4 * be, B, B + 1, V_TQ2 if be else V_TQ)
        a(f"buffer_store_dwordx4 v[{G0}:{G0+3}], v{V_X1}, s[{SRD_D}:{SRD_D+3}], 0 offen {sc}")
        a(f"s_mov_b32 s{S_T0}, 0x40000")
        a(f"buffer_store_dwordx4 v[{G0+4}:{G0+7}], v{V_X1}, s[{SRD_D}:{SRD_D+3}], s{S_T0} offen {sc}")
        if c.stamps:
            rstamp(a, V_ST, 4)
        a(f"s_lshl_b32 s{S_T0}, s{S_ID}, 13\ns_lshl_b32 s{S_T1}, s{S_ROLE}, 11\ns_add_u32 s{S_T0}, s{S_T0}, s{S_T1}")
        a(f"v_lshlrev_b32 v{V_T0}, 4, v{V_LANE}\nv_add_u32 v{V_T0}, s{S_T0}, v{V_T0}")
        a(f"s_mov_b32 s{S_CNT}, {SPIN_LIMIT}")
        a("L_qpoll:")
        a(f"buffer_load_dwordx4 v[{E}:{E+3}], v{V_T0}, s[{SRD_D}:{SRD_D+3}], 0 offen {sc}")
        a(f"buffer_load_dwordx4 v[{E+4}:{E+7}], v{V_T0}, s[{SRD_D}:{SRD_D+3}], 0 offen offset:1024 {sc}")
        a(f"s_sub_u32 s{S_CNT}, s{S_CNT}, 1\ns_cbranch_scc1 L_qpoll_out")
        a("s_waitcnt vmcnt(0)")
        tags_bad((E, E + 4))
        if c.qsleep:
            a("s_cbranch_vccz L_qpoll_out")
            a(f"s_sleep {c.qsleep}")
            a("s_branch L_qpoll")
        else:
            a("s_cbranch_vccnz L_qpoll")
        a("L_qpoll_out:")
        if c.stamps:
            rstamp(a, V_ST, 7)
        a(f"v_add_f32 v{E}, v{E}, v{E+4}\nv_add_f32 v{E+1}, v{E+2}, v{E+6}")
        a(f"v_lshlrev_b32 v{V_T0}, 3, v{V_LANE}")
        a(f"s_lshl_b32 s{S_T0}, s{S_ROLE}, 9")
        a(f"v_add_u32 v{V_T0}, s{S_T0}, v{V_T0}")
        a(f"ds_write_b64 v{V_T0}, v[{E}:{E+1}] offset:{L_QP}")
        a("s_waitcnt lgkmcnt(0)\ns_barrier")
        vm.done = vm.issued
    else:
        for r in range(4):
            a(f"v_mov_b32 v{V_ACC+r}, 0")
        vm.wait(kx)
        if c.stamps:
            rstamp(a, V_ST, 2)
        for x in XS:
            a(f"v_lshl_or_b32 v{x}, v{x}, 16, v{x}")
        build_a(V_A0, XS[0], 0)
        nxt = first
        for j in range(32):
            A, An = (V_A0, V_A1) if j % 2 == 0 else (V_A1, V_A0)
            if j < 31:
                build_a(An, XS[(j + 1) >> 4], (j + 1) & 15)
            vm.wait(wq_k[j])
            if nxt < 32:
                wq_k[nxt] = wq_load(nxt)
                nxt += 1
            if c.stamps and j in (0, 8, 16, 24, 31):
                rstamp(a, V_ST, 3 + (0, 8, 16, 24, 31).index(j))
            a(f"v_mfma_f32_16x16x32_bf16 v[{V_ACC}:{V_ACC+3}], v[{A}:{A+3}], v[{WB+4*j}:{WB+4*j+3}], v[{V_ACC}:{V_ACC+3}]")
        a(f"v_lshlrev_b32 v{V_T0}, 5, v{V_C}\nv_lshl_add_u32 v{V_T0}, v{V_G}, 4, v{V_T0}")
        a(f"s_lshl_b32 s{S_T0}, s{S_ROLE}, 9")
        a(f"v_add_u32 v{V_T0}, s{S_T0}, v{V_T0}")
        a("s_mov_b32 exec_lo, -1\ns_mov_b32 exec_hi, 0")
        a(f"ds_write_b128 v{V_T0}, v[{V_ACC}:{V_ACC+3}] offset:{L_QP}")
        a("s_mov_b64 exec, -1")
        if c.ctl:
            a(f"v_mov_b32 v{V_T0}, {L_PROG}\nv_mov_b32 v{V_T2}, 0\nv_mov_b32 v{V_T3}, 0")
            a(f"ds_write_b64 v{V_T0}, v[{V_T2}:{V_T3}]")
        a("s_waitcnt lgkmcnt(0)\ns_barrier")
        vm.wait(vm.issued - 1)
        for t in (V_TF, V_TS):
            a(f"v_add_u32 v{t}, 1, v{t}\nv_add_u32 v{t+1}, 1, v{t+1}")
        a(f"v_readfirstlane_b32 s{S_TS}, v{V_TS}\nv_readfirstlane_b32 s{S_TS+1}, v{V_TS+1}")
    if c.stamps:
        rstamp(a, V_ST, 8)

    if c.ctl == 2:
        oneshot_publish(a, c)
    a(f"s_lshl_b32 s{S_T0}, s{S_B}, 10")
    srd(a, SRD_A, P_X, f"s{S_T0}", None, 1024 + 64)
    VB = V_E
    a(f"v_lshlrev_b32 v{V_T0}, 4, v{V_LANE}")
    a(f"buffer_load_dwordx4 v[{VB}:{VB+3}], v{V_T0}, s[{SRD_A}:{SRD_A+3}], 0 offen {c.smflags}")
    a(f"s_lshl_b32 s{S_T1}, s{S_H}, 5")
    a(f"v_lshlrev_b32 v{V_T1}, 1, v{V_C}")
    a(f"buffer_load_ushort v{V_H}, v{V_T1}, s[{SRD_A}:{SRD_A+3}], s{S_T1} offen {c.smflags}")
    srd(a, SRD_A, P_GW, None, None, 1024)
    a(f"buffer_load_dwordx4 v[{VB+8}:{VB+11}], v{V_T0}, s[{SRD_A}:{SRD_A+3}], 0 offen {c.smflags}")
    a(f"s_mul_i32 s{S_T1}, s{S_ROLE}, 896")
    a(f"v_lshlrev_b32 v{V_T1}, 1, v{V_LANE}")
    for base, ptr in ((V_W1, P_W1), (V_B1, P_B1), (V_W2, P_W2)):
        srd(a, SRD_A, ptr, None, None, 3584 + 64)
        for t in range(7):
            a(f"buffer_load_ushort v{base+t}, v{V_T1}, s[{SRD_A}:{SRD_A+3}], s{S_T1} offen offset:{128*t} {c.smflags}")
    srd(a, SRD_A, P_B2, None, None, 64)
    a(f"v_mov_b32 v{V_T2}, 0")
    a(f"buffer_load_ushort v{V_Y2}, v{V_T2}, s[{SRD_A}:{SRD_A+3}], 0 offen {c.smflags}")
    a("s_waitcnt vmcnt(0)")
    if c.stamps:
        rstamp(a, V_ST, 9)

    a(f"s_lshl_b32 s{S_T0}, s{S_H}, 17")
    srd(a, SRD_B, P_WO, f"s{S_T0}", None, 131072)
    a(f"v_lshlrev_b32 v{V_OFF}, 10, v{V_G}\nv_lshl_add_u32 v{V_OFF}, v{V_C}, 4, v{V_OFF}")
    a(f"s_lshl_b32 s{S_T0}, s{S_ROLE}, 8")
    a(f"v_add_u32 v{V_OFF}, s{S_T0}, v{V_OFF}")
    a(f"s_lshl_b32 s{S_OFFA}, s{S_B}, 14" if c.roto else f"s_mov_b32 s{S_OFFA}, 0")
    for j in range(32 if not (c.auxoff & 1) else 0):
        if c.ctl == 2 and j == c.cwhen:
            oneshot_decide(a, c)
        if j >= c.wo_depth:
            a(f"s_waitcnt vmcnt({c.wo_depth-1})")
        a(f"buffer_load_dwordx4 v[{WB+4*j}:{WB+4*j+3}], v{V_OFF}, s[{SRD_B}:{SRD_B+3}], s{S_OFFA} offen {c.woflags}")
        if j < 31:
            a(f"s_add_u32 s{S_OFFA}, s{S_OFFA}, 4096\ns_and_b32 s{S_OFFA}, s{S_OFFA}, 0x1ffff")
    if c.stamps:
        rstamp(a, V_ST, 10)

    def unpack8(src, dst):
        for r in range(4):
            a(f"v_lshlrev_b32 v{dst+2*r}, 16, v{src+r}")
            a(f"v_and_b32 v{dst+2*r+1}, s{S_HI16}, v{src+r}")

    def sum8(src, dst):
        a(f"v_add_f32 v{dst}, v{src}, v{src+1}")
        for e in range(2, 8):
            a(f"v_add_f32 v{dst}, v{dst}, v{src+e}")

    a("; gate")
    U = V_E + 12
    unpack8(VB, U)
    unpack8(VB + 8, U + 8)
    for e in range(8):
        a(f"v_mul_f32 v{U+e}, v{U+e}, v{U+8+e}")
    for r in range(4):
        a(f"v_cvt_pk_bf16_f32 v{U+8+r}, v{U+2*r}, v{U+2*r+1}")
    unpack8(U + 8, U)
    sum8(U, V_GATE)
    reduce64(a, "v_add_f32", V_GATE, V_T0)
    rne_bf16(a, V_GATE)
    a(f"v_mul_f32 v{V_GATE}, s{S_LOG2E}, v{V_GATE}")
    a(f"v_sub_f32 v{V_GATE}, 0, v{V_GATE}")
    a(f"v_exp_f32 v{V_GATE}, v{V_GATE}")
    a(f"v_add_f32 v{V_GATE}, 1.0, v{V_GATE}")
    a(f"v_rcp_f32 v{V_GATE}, v{V_GATE}")
    rne_bf16(a, V_GATE)

    unpack8(VB, U)
    sum8(U, V_T2)
    reduce64(a, "v_add_f32", V_T2, V_T0)
    a(f"v_mul_f32 v{V_T2}, {f2u(1/512):#x}, v{V_T2}")
    for e in range(8):
        a(f"v_sub_f32 v{U+e}, v{U+e}, v{V_T2}")
        a(f"v_mul_f32 v{U+e}, v{U+e}, v{U+e}")
    sum8(U, V_T3)
    reduce64(a, "v_add_f32", V_T3, V_T0)
    a(f"v_mul_f32 v{V_T3}, {f2u(1/512):#x}, v{V_T3}")
    rne_bf16(a, V_T2)
    rne_bf16(a, V_T3)
    a(f"v_add_f32 v{V_T3}, {f2u(1e-5):#x}, v{V_T3}")
    rne_bf16(a, V_T3)
    a(f"v_sqrt_f32 v{V_T3}, v{V_T3}")
    rne_bf16(a, V_T3)
    a(f"v_lshlrev_b32 v{V_H}, 16, v{V_H}")
    a(f"v_sub_f32 v{V_H}, v{V_H}, v{V_T2}")
    rne_bf16(a, V_H)
    div(a, V_H, V_H, V_T3, V_T0, V_T1)
    rne_bf16(a, V_H)
    if c.stamps:
        rstamp(a, V_ST, 11)

    for t in range(7):
        for base in (V_W1, V_B1, V_W2):
            a(f"v_lshlrev_b32 v{base+t}, 16, v{base+t}")
    kb = 0.7978845608028654
    c1 = -2.0 * kb * 1.4426950408889634
    a(f"v_mov_b32 v{V_C1}, {f2u(c1):#x}\nv_mov_b32 v{V_C2}, {f2u(c1 * 0.044715):#x}")
    a(f"v_mov_b32 v{V_Y1}, 0")
    a(f"v_mov_b32 v{V_T3}, 0")
    a(f"s_mov_b32 s{S_CNT}, {7 if not (c.auxoff & 2) else 1}")
    a("L_mlp:")
    for k in range(8):
        ua, ub, za, zb, p = E, E + 1, E + 2, E + 3, E + 4
        i0, i1 = 2 * k, 2 * k + 1

        def round2():
            a(f"v_cvt_pk_bf16_f32 v{p}, v{ua}, v{ub}")
            a(f"v_lshlrev_b32 v{ua}, 16, v{p}")
            a(f"v_and_b32 v{ub}, s{S_HI16}, v{p}")
        a(f"v_mul_f32_dpp v{ua}, v{V_W1}, v{V_H} row_newbcast:{i0} {DPPF}")
        a(f"v_mul_f32_dpp v{ub}, v{V_W1}, v{V_H} row_newbcast:{i1} {DPPF}")
        round2()
        a(f"v_add_f32_dpp v{ua}, v{V_B1}, v{ua} row_newbcast:{i0} {DPPF}")
        a(f"v_add_f32_dpp v{ub}, v{V_B1}, v{ub} row_newbcast:{i1} {DPPF}")
        round2()
        a(f"v_mul_f32 v{za}, v{ua}, v{ua}\nv_mul_f32 v{zb}, v{ub}, v{ub}")
        a(f"v_fma_f32 v{za}, v{za}, v{V_C2}, v{V_C1}\nv_fma_f32 v{zb}, v{zb}, v{V_C2}, v{V_C1}")
        a(f"v_mul_f32 v{za}, v{za}, v{ua}\nv_mul_f32 v{zb}, v{zb}, v{ub}")
        a(f"v_exp_f32 v{za}, v{za}\nv_exp_f32 v{zb}, v{zb}")
        a(f"v_add_f32 v{za}, 1.0, v{za}\nv_add_f32 v{zb}, 1.0, v{zb}")
        a(f"v_rcp_f32 v{za}, v{za}\nv_rcp_f32 v{zb}, v{zb}")
        a(f"v_mul_f32 v{ua}, v{ua}, v{za}\nv_mul_f32 v{ub}, v{ub}, v{zb}")
        round2()
        a(f"v_fmac_f32_dpp v{V_Y1}, v{V_W2}, v{ua} row_newbcast:{i0} {DPPF}")
        a(f"v_fmac_f32_dpp v{V_T3}, v{V_W2}, v{ub} row_newbcast:{i1} {DPPF}")
    for base in (V_W1, V_B1, V_W2):
        for t in range(6):
            a(f"v_mov_b32 v{base+t}, v{base+t+1}")
    a(f"s_sub_u32 s{S_CNT}, s{S_CNT}, 1\ns_cmp_lg_u32 s{S_CNT}, 0\ns_cbranch_scc1 L_mlp")
    a(f"v_add_f32 v{V_Y1}, v{V_Y1}, v{V_T3}")
    cross_rows(a, "v_add_f32", V_Y1, V_T0)
    a(f"v_lshlrev_b32 v{V_T0}, 2, v{V_C}")
    a(f"s_lshl_b32 s{S_T0}, s{S_ROLE}, 6")
    a(f"v_add_u32 v{V_T0}, s{S_T0}, v{V_T0}")
    a("s_mov_b64 exec, 0xffff")
    a(f"ds_write_b32 v{V_T0}, v{V_Y1} offset:{L_YP}")
    a("s_mov_b64 exec, -1")
    if c.stamps:
        rstamp(a, V_ST, 12)

    V_OA, V_OB, V_PUB, V_IN = V_X0, V_H, V_X1, V_OFF
    for be, dst in ((0, V_OA), (1, V_OB)):
        rot_index(dst, be, c.roto)
        a(f"v_lshlrev_b32 v{dst}, 4, v{dst}\nv_lshl_add_u32 v{dst}, v{V_G}, 2, v{dst}")
    a(f"v_lshrrev_b32 v{V_PUB}, 1, v{V_C}\nv_lshlrev_b32 v{V_PUB}, 12, v{V_PUB}")
    a(f"v_and_b32 v{V_T0}, 1, v{V_C}\nv_lshlrev_b32 v{V_T0}, 6, v{V_T0}")
    a(f"v_and_b32 v{V_T1}, 1, v{V_G}\nv_lshl_add_u32 v{V_T0}, v{V_T1}, 5, v{V_T0}")
    a(f"v_lshrrev_b32 v{V_T1}, 1, v{V_G}\nv_lshl_add_u32 v{V_T0}, v{V_T1}, 4, v{V_T0}")
    a(f"s_lshl_b32 s{S_T0}, s{S_ROLE}, 15\ns_lshl_b32 s{S_T1}, s{S_H}, 7\ns_add_u32 s{S_T0}, s{S_T0}, s{S_T1}")
    a(f"v_add3_u32 v{V_PUB}, v{V_PUB}, v{V_T0}, s{S_T0}")
    a(f"s_lshl_b32 s{S_T0}, s{S_B}, 17\ns_add_u32 s{S_T0}, s{S_T0}, {WS_F}")
    srd(a, SRD_D, P_WS, f"s{S_T0}", None, 0x20000)
    a(f"s_lshl_b32 s{S_T0}, s{S_H}, 12")
    a(f"v_lshlrev_b32 v{V_IN}, 4, v{V_LANE}\nv_add_u32 v{V_IN}, s{S_T0}, v{V_IN}")
    a(f"s_lshl_b32 s{S_T0}, s{S_B}, 10\ns_lshl_b32 s{S_T1}, s{S_H}, 5\ns_add_u32 s{S_T0}, s{S_T0}, s{S_T1}")
    srd(a, SRD_E, P_OUT, f"s{S_T0}", None, 64)
    for r in range(4):
        a(f"v_mov_b32 v{V_ACC+r}, 0")
    a(f"v_mov_b32 v{V_T3}, 0")
    a(f"v_mov_b32 v{G0+1}, v{V_TF}\nv_mov_b32 v{G0+3}, v{V_TF+1}")
    if c.ctl == 1:
        control(a, c, E + 24)
    a("s_waitcnt vmcnt(0) lgkmcnt(0)")
    a("s_barrier")
    if c.stamps:
        rstamp(a, V_ST, 13)

    MV, LV, OV = E, E + 4, E + 8
    a(f"ds_read_b128 v[{MV}:{MV+3}], v{V_T3} offset:{L_ML}")
    a(f"ds_read_b128 v[{LV}:{LV+3}], v{V_T3} offset:{L_ML+16}")
    for w in range(4):
        for be in range(2):
            a(f"ds_read_b32 v{OV+2*w+be}, v{V_OB if be else V_OA} offset:{L_OP + 512*w}")
    a("s_waitcnt lgkmcnt(8)")
    a(f"v_max3_f32 v{V_T0}, v{MV}, v{MV+1}, v{MV+2}\nv_max_f32 v{V_T0}, v{V_T0}, v{MV+3}")
    for w in range(4):
        a(f"v_sub_f32 v{MV+w}, v{MV+w}, v{V_T0}")
    for w in range(4):
        a(f"v_mul_f32 v{MV+w}, s{S_LOG2E}, v{MV+w}")
    for w in range(4):
        a(f"v_exp_f32 v{MV+w}, v{MV+w}")
    a(f"v_mul_f32 v{V_T1}, v{MV}, v{LV}")
    for w in range(1, 4):
        a(f"v_fmac_f32 v{V_T1}, v{MV+w}, v{LV+w}")
    a(f"v_rcp_f32 v{V_T2}, v{V_T1}")
    if c.newton:
        a(f"v_fma_f32 v{V_T0}, -v{V_T1}, v{V_T2}, 1.0")
        a(f"v_fmac_f32 v{V_T2}, v{V_T0}, v{V_T2}")
    a("s_waitcnt lgkmcnt(0)")
    for be in range(2):
        a(f"v_mul_f32 v{LV+be}, v{MV}, v{OV+be}")
    for w in range(1, 4):
        for be in range(2):
            a(f"v_fmac_f32 v{LV+be}, v{MV+w}, v{OV+2*w+be}")
    for be in range(2):
        a(f"v_mul_f32 v{LV+be}, v{LV+be}, v{V_T2}")
    for be in range(2):
        a(f"v_cvt_pk_bf16_f32 v{LV+be}, v{LV+be}, v{LV+be}")
    srcs = (LV, LV + 1)
    build_a(V_A0, srcs[0], 0)
    for j in range(32):
        A, An = (V_A0, V_A1) if j % 2 == 0 else (V_A1, V_A0)
        if j < 31:
            build_a(An, srcs[(j + 1) >> 4], (j + 1) & 15)
        a(f"v_mfma_f32_16x16x32_bf16 v[{V_ACC}:{V_ACC+3}], v[{A}:{A+3}], v[{WB+4*j}:{WB+4*j+3}], v[{V_ACC}:{V_ACC+3}]")
    a(f"v_mov_b32 v{G0}, v{V_ACC}\nv_mov_b32 v{G0+2}, v{V_ACC+1}")
    a(f"v_permlane32_swap_b32 v{G0}, v{V_ACC+2}")
    a(f"v_permlane32_swap_b32 v{G0+2}, v{V_ACC+3}")
    a(f"buffer_store_dwordx4 v[{G0}:{G0+3}], v{V_PUB}, s[{SRD_D}:{SRD_D+3}], 0 offen {sc}")
    if c.stamps:
        rstamp(a, V_ST, 14)
        a(f"s_cmp_lt_u32 s{S_ROLE}, {c.pollers}\ns_cbranch_scc1 L_consumer")
        dump_stamps(a, V_ST, WS_ST + 0x100000, V_T0)
        a("s_endpgm")
        a("L_consumer:")
    else:
        if c.pollers < 4:
            a(f"s_cmp_ge_u32 s{S_ROLE}, {c.pollers}\ns_cbranch_scc1 L_done")

    YA = E + 24
    a(f"v_and_b32 v{V_T0}, 7, v{V_LANE}\nv_lshlrev_b32 v{V_T0}, 3, v{V_T0}")
    a(f"v_lshrrev_b32 v{V_T2}, 5, v{V_LANE}\nv_lshl_add_u32 v{V_T0}, v{V_T2}, 2, v{V_T0}")
    for w in range(4):
        a(f"ds_read_b32 v{MV+w}, v{V_T0} offset:{L_YP + 64*w}")
    a(f"v_lshrrev_b32 v{V_OFF2}, 1, v{V_T0}")
    a(f"v_lshlrev_b32 v{V_Y2}, 16, v{V_Y2}")
    a(f"v_sub_f32 v{V_T1}, 1.0, v{V_GATE}")
    rne_bf16(a, V_T1)
    a("s_waitcnt lgkmcnt(0)")
    a(f"v_add_f32 v{MV}, v{MV}, v{MV+1}\nv_add_f32 v{MV+2}, v{MV+2}, v{MV+3}")
    a(f"v_add_f32 v{YA}, v{MV}, v{MV+2}")
    rne_bf16(a, YA)
    a(f"v_add_f32 v{YA}, v{YA}, v{V_Y2}")
    rne_bf16(a, YA)
    a(f"v_mul_f32 v{YA}, v{V_T1}, v{YA}")
    rne_bf16(a, YA)
    a(f"s_lshl_b32 s{S_T0}, s{S_ID}, 7")
    a(f"v_mov_b32 v{V_T3}, s{S_T0}")
    IN = E
    a(f"s_mov_b32 s{S_CNT}, {SPIN_LIMIT}")
    if c.fmask:
        MK = 84
        for t in range(4):
            a(f"s_mov_b64 s[{MK+2*t}:{MK+2*t+1}], -1")
        a("L_poll:")
        for t in range(4):
            a(f"s_mov_b64 exec, s[{MK+2*t}:{MK+2*t+1}]")
            a(f"s_cbranch_execz L_pskip{t}")
            a(f"buffer_load_dwordx4 v[{IN+4*t}:{IN+4*t+3}], v{V_IN}, s[{SRD_D}:{SRD_D+3}], 0 offen offset:{1024*t} {sc}")
            a(f"L_pskip{t}:")
        a("s_mov_b64 exec, -1")
        a(f"s_sub_u32 s{S_CNT}, s{S_CNT}, 1\ns_cbranch_scc1 L_poll_out")
        a("s_waitcnt vmcnt(0)")
        for t in range(4):
            a(f"v_cmp_ne_u32 s[{MK+2*t}:{MK+2*t+1}], s{S_TS}, v{IN+4*t+1}")
            a(f"v_cmp_ne_u32 vcc, s{S_TS+1}, v{IN+4*t+3}")
            a(f"s_or_b64 s[{MK+2*t}:{MK+2*t+1}], s[{MK+2*t}:{MK+2*t+1}], vcc")
        a(f"s_or_b64 vcc, s[{MK}:{MK+1}], s[{MK+2}:{MK+3}]")
        a(f"s_or_b64 s[{S_T2}:{S_T2+1}], s[{MK+4}:{MK+5}], s[{MK+6}:{MK+7}]")
        a(f"s_or_b64 vcc, vcc, s[{S_T2}:{S_T2+1}]")
    else:
        a("L_poll:")
        for t in range(4):
            a(f"buffer_load_dwordx4 v[{IN+4*t}:{IN+4*t+3}], v{V_IN}, s[{SRD_D}:{SRD_D+3}], 0 offen offset:{1024*t} {sc}")
        a(f"s_sub_u32 s{S_CNT}, s{S_CNT}, 1\ns_cbranch_scc1 L_poll_out")
        a("s_waitcnt vmcnt(0)")
        tags_bad((IN, IN + 4, IN + 8, IN + 12))
    if c.fsleep:
        a("s_cbranch_vccz L_poll_out")
        a(f"s_sleep {c.fsleep}")
        a("s_branch L_poll")
    else:
        a("s_cbranch_vccnz L_poll")
    a("L_poll_out:")
    for r in (0, 2):
        a(f"v_add_f32 v{IN+r}, v{IN+r}, v{IN+4+r}\nv_add_f32 v{IN+8+r}, v{IN+8+r}, v{IN+12+r}")
    for r in (0, 2):
        a(f"v_add_f32 v{IN+r}, v{IN+r}, v{IN+8+r}")
    a(f"v_permlane32_swap_b32 v{IN}, v{IN+2}")
    a(f"v_add_f32 v{IN}, v{IN}, v{IN+2}")
    a(f"v_add_f32_dpp v{IN}, v{IN}, v{IN} row_ror:8 {DPPF}")
    a(f"v_mov_b32 v{V_T0}, v{IN}")
    a(f"v_permlane16_swap_b32 v{IN}, v{V_T0}")
    a(f"v_add_f32 v{IN}, v{IN}, v{V_T0}")
    rne_bf16(a, IN)
    a(f"v_mul_f32 v{IN}, v{V_GATE}, v{IN}")
    rne_bf16(a, IN)
    a(f"v_add_f32 v{IN}, v{IN}, v{YA}")
    if c.tripwire:
        rstamp(a, V_ST, 15)
        a(f"v_readlane_b32 s{S_T0}, v{V_ST}, 16")
        a(f"s_sub_u32 s{S_T0}, s{S_ST}, s{S_T0}")
        a(f"s_cmp_gt_u32 s{S_T0}, {c.tripwire}\ns_cbranch_scc0 L_notrip")
        a(f"s_cmp_eq_u32 s{S_ID}, {c.tripid}\ns_cbranch_scc0 L_notrip")
        a(f"v_cvt_f32_u32 v{IN}, s{S_T0}")
        a("L_notrip:")
    a(f"v_cvt_pk_bf16_f32 v{IN}, v{IN}, v{IN}")
    a("s_mov_b32 exec_lo, 0xff\ns_mov_b32 exec_hi, 0xff")
    a(f"buffer_store_short v{IN}, v{V_OFF2}, s[{SRD_E}:{SRD_E+3}], 0 offen {c.osc}")
    a("s_mov_b64 exec, 1")
    if c.esc != "none":
        a(f"buffer_store_dwordx2 v[{V_TS}:{V_TS+1}], v{V_T3}, s[{SRD_C}:{SRD_C+3}], 0 offen {c.esc}")
    if c.stamps:
        a("s_mov_b64 exec, -1")
        rstamp(a, V_ST, 15)
        dump_stamps(a, V_ST, WS_ST + 0x100000, V_T0)
        if c.dbgout:
            a(f"s_cmp_lg_u32 s{S_ID}, {c.dbgout-1}\ns_cbranch_scc1 L_done")
            a(f"v_readlane_b32 s{S_T0}, v{V_ST}, 16")
            a(f"v_subrev_u32 v{V_T1}, s{S_T0}, v{V_ST}")
            a(f"v_lshlrev_b32 v{V_T0}, 2, v{V_LANE}")
            a("s_mov_b64 exec, 0xffff")
            a(f"global_store_dword v{V_T0}, v{V_T1}, s[{P_DBG}:{P_DBG+1}]")


if __name__ == "__main__":
    out = sys.argv[1]
    kw = {}
    for s in sys.argv[2:]:
        k, v = s.split("=")
        kw[k] = int(v) if v.lstrip("-").isdigit() else v.replace("_", " ") if k.endswith("flags") or k in ("sc", "cst", "cld", "osc", "esc") else v
    open(out, "w").write(gen(**kw))
```
